```python
import torch

def _softmax(x, axis=-1):
    return torch.softmax(x, dim=axis)
def _gelu(x):
    return torch.nn.functional.gelu(x, approximate="tanh")
def _silu(x):
    return torch.nn.functional.silu(x)
def _sigmoid(x):
    return torch.sigmoid(x)
def _layernorm(x, axis=-1, eps=1e-5):
    m = x.mean(dim=axis, keepdim=True)
    v = x.var(dim=axis, keepdim=True, unbiased=False)
    return (x - m) / torch.sqrt(v + eps)
def _scatter_add(tgt, idx, src, axis=0):
    return tgt.clone().index_add_(axis, idx, src)
def _segment_sum(src, seg, n):
    out = torch.zeros((n,) + src.shape[1:], dtype=src.dtype)
    return out.index_add_(0, seg, src)
def _pad(x, pw):
    flat = tuple(v for pair in reversed(pw) for v in pair)
    return torch.nn.functional.pad(x, flat)

kernel_name = 'sequential_preLN__sliding_block_cached__geglu_ffn__decode'

def setup_inputs():

    _w = (lambda a: (lambda t: t.to(torch.bfloat16) if t.is_floating_point() else t)(torch.as_tensor(a)))
    def _A_setup():
        B, Sq, D = 1, 1, 1024
        Hq, Hkv, Sk, Dh = 32, 4, 65536, 128
        assert Hq % Hkv == 0, (Hq, Hkv)
        return {
            "x": _w((lambda *s: torch.randn(*s, dtype=torch.bfloat16) * 0.05)(B, Sq, D)),
            "k_cache": _w((lambda *s: torch.randn(*s, dtype=torch.bfloat16) * 3.2)(B, Hkv, Sk, Dh)),
            "v_cache": _w((lambda *s: torch.randn(*s, dtype=torch.bfloat16) * 0.4)(B, Hkv, Sk, Dh)),
            "wq": _w((lambda *s: torch.randn(*s, dtype=torch.bfloat16) * 3.2)(D, Hq * Dh) * (D ** -0.5)),
            "wo": _w((lambda *s: torch.randn(*s, dtype=torch.bfloat16) * 0.4)(Hq * Dh, D) * ((Hq * Dh) ** -0.5)),
        }
    _A_in = _A_setup()

    def _B_setup():
        B, S, D, F = 1, 1, 1024, 3584
        return {
            "x": _w((lambda *s: torch.randn(*s, dtype=torch.bfloat16) * 0.05)(B, S, D)),
            "w_gate": _w((lambda *s: torch.randn(*s, dtype=torch.bfloat16) * 0.05)(D, F)),
            "w_up": _w((lambda *s: torch.randn(*s, dtype=torch.bfloat16) * 0.05)(D, F)),
            "w_down": _w((lambda *s: torch.randn(*s, dtype=torch.bfloat16) * 0.05)(F, D)),
        }
    _B_in = _B_setup()

    return {
        "A_x": _A_in["x"],
        "A_k_cache": _A_in["k_cache"],
        "A_v_cache": _A_in["v_cache"],
        "A_wq": _A_in["wq"],
        "A_wo": _A_in["wo"],
        "B_x": _B_in["x"],
        "B_w_gate": _B_in["w_gate"],
        "B_w_up": _B_in["w_up"],
        "B_w_down": _B_in["w_down"],
    }

def reference(A_x, A_k_cache, A_v_cache, A_wq, A_wo, B_x, B_w_gate, B_w_up, B_w_down):
    def _A_ref(x, k_cache, v_cache, wq, wo):
        B, Sq, D = x.shape
        Hq, Dh = 32, 128
        Hkv, Sk = k_cache.shape[1], k_cache.shape[2]
        W = min(4096, max(256, Sk // 4))
        rep = Hq // Hkv
        q = (lambda x, *d: x.permute(*d))((x @ wq).reshape(B, Sq, Hq, Dh), 0, 2, 1, 3)
        k = (lambda x, n, axis: torch.repeat_interleave(x, n, dim=axis))(k_cache[:, :, Sk - W:, :], rep, axis=1)
        v = (lambda x, n, axis: torch.repeat_interleave(x, n, dim=axis))(v_cache[:, :, Sk - W:, :], rep, axis=1)
        scores = torch.einsum("bhqd,bhkd->bhqk", q, k) * (Dh ** -0.5)
        p = _softmax(scores, axis=-1)
        o = torch.einsum("bhqk,bhkd->bhqd", p, v)
        return (lambda x, *d: x.permute(*d))(o, 0, 2, 1, 3).reshape(B, Sq, Hq * Dh) @ wo

    def _B_ref(x, w_gate, w_up, w_down):
        return (_gelu(x @ w_gate) * (x @ w_up)) @ w_down

    x = A_x
    h = x + _A_ref(_layernorm(x, axis=-1), A_k_cache, A_v_cache, A_wq, A_wo)
    h2 = h + _B_ref(_layernorm(h, axis=-1), B_w_gate, B_w_up, B_w_down)
    return h2
```

```python
import re
KNAME = "sequential_preLN__sliding_block_cached__geglu_ffn__decode_kernel"

TRANS = ("v_exp_", "v_log_", "v_rcp_", "v_rsq_", "v_sqrt_", "v_sin_", "v_cos_")
DPPMOD = ("quad_perm", "row_shl", "row_shr", "row_ror", "wave_shl", "wave_shr", "wave_rol", "wave_ror",
          "row_mirror", "row_half_mirror", "row_bcast", "row_newbcast")
NODST_S = ("s_cmp", "s_cbranch", "s_waitcnt", "s_barrier", "s_nop", "s_endpgm", "s_setprio", "s_sleep",
           "s_branch", "s_bitcmp", "s_setreg", "s_sethalt", "s_trap")
MFMA_PASS = {"16x16x32": 4, "16x16x16": 4, "32x32x16": 8, "32x32x8": 8, "4x4x4": 2}

def regs_of(tok):
    tok = tok.strip()
    tok = tok.strip("|")
    if tok.startswith("-"): tok = tok[1:].strip("|")
    if tok.startswith("neg(") or tok.startswith("abs("): tok = tok[4:-1]
    m = re.fullmatch(r"([vsa])(\d+)", tok)
    if m: return {(m.group(1), int(m.group(2)))}
    m = re.fullmatch(r"([vsa])\[(\d+):(\d+)\]", tok)
    if m: return {(m.group(1), i) for i in range(int(m.group(2)), int(m.group(3)) + 1)}
    if tok == "vcc": return {("x", "vcc_lo"), ("x", "vcc_hi")}
    if tok in ("vcc_lo", "vcc_hi", "exec_lo", "exec_hi", "m0"): return {("x", tok)}
    if tok == "exec": return {("x", "exec_lo"), ("x", "exec_hi")}
    return set()

class I:
    def __init__(self, text):
        self.text = text
        t = text.split(";")[0].strip()
        self.label = None; self.op = None
        self.defs = set(); self.uses = set()
        self.kind = "none"
        if not t: return
        if t.endswith(":"):
            self.label = t[:-1]; self.kind = "label"; return
        if t.startswith("."):
            self.kind = "dir"; return
        parts = t.split(None, 1)
        op = self.op = parts[0]
        rest = parts[1] if len(parts) > 1 else ""
        raw = [x.strip() for x in re.split(r",(?![^\[]*\])", rest)] if rest else []
        mods = ""
        if raw:
            last = raw[-1].split(None, 1)
            if last:
                raw[-1] = last[0]
                mods = last[1] if len(last) > 1 else ""
        self.ops = raw; self.mods = mods
        R = [regs_of(x) for x in raw]
        U = lambda l: set().union(*l) if l else set()
        self.dpp = any(m in mods for m in DPPMOD)
        self.trans = op.startswith(TRANS)
        self.movebits = ("dst_sel:" in mods and "dst_sel:DWORD" not in mods) or op.startswith("v_fma_mixhi") or \
            op.startswith("v_fma_mixlo") or ("op_sel:" in mods and not op.startswith("v_pk_") and not op.startswith("v_mfma"))
        self.wide_store = set(); self.srcs = set()
        self.ldsdma = False
        if op.startswith("v_mfma"):
            self.kind = "mfma"
            self.D, self.A, self.B, self.C = R[0], R[1], R[2], R[3]
            self.defs = R[0]; self.uses = R[1] | R[2] | R[3]
            self.npass = [v for k, v in MFMA_PASS.items() if k in op][0]
        elif op.startswith("v_"):
            self.kind = "valu"
            self.dot = op.startswith("v_dot")
            if op.startswith("v_permlane") or op.startswith("v_swap"):
                self.defs = R[0] | R[1]; self.uses = R[0] | R[1]
            elif re.match(r"v_(add|sub|subrev)_co_|v_mad_u64_u32|v_div_scale", op):
                self.defs = R[0] | R[1]; self.uses = U(R[2:])
            elif re.match(r"v_(addc|subb|subbrev)_co_", op):
                self.defs = R[0] | R[1]; self.uses = U(R[2:])
            elif op.startswith("v_cmpx"):
                raise ValueError("avoid v_cmpx")
            elif op.startswith("v_nop"):
                pass
            else:
                self.defs = R[0]; self.uses = U(R[1:])
                self.srcs = set(self.uses) | (R[0] if op.startswith(("v_fmac", "v_mac")) else set())
                if re.match(r"v_(fmac|mac|dot2c|dot4c|pk_fmac|writelane|fma_mixhi|fma_mixlo)", op) or self.dpp or self.movebits:
                    self.uses |= R[0]
                if op.startswith("v_cndmask") and len(raw) == 3: self.uses |= regs_of("vcc")
                if op.startswith("v_div_fmas"): self.uses |= regs_of("vcc")
        elif op.startswith("buffer_") or op.startswith("global_"):
            self.kind = "vmem"
            full = rest
            if op.startswith("buffer_load"):
                if re.search(r"\blds\b", full):
                    self.ldsdma = True; self.uses = U(R) | regs_of("m0")
                else:
                    self.defs = R[0]; self.uses = U(R[1:])
            elif op.startswith("global_load_lds"):
                self.ldsdma = True; self.uses = U(R) | regs_of("m0")
            elif op.startswith("global_load"):
                self.defs = R[0]; self.uses = U(R[1:])
            elif op.startswith("buffer_store"):
                self.uses = U(R)
                if "x3" in op or "x4" in op: self.wide_store = R[0]
            elif op.startswith("global_store"):
                self.uses = U(R)
                if "x3" in op or "x4" in op: self.wide_store = R[1]
            elif op.startswith("global_atomic"):
                if re.search(r"\bsc0\b", full): self.defs = R[0]; self.uses = U(R[1:])
                else: self.uses = U(R)
            elif op.startswith("buffer_atomic"):
                self.uses = U(R)
                if re.search(r"\bsc0\b", full): self.defs = R[0]
            elif op.startswith("buffer_inv") or op.startswith("buffer_wbl2"):
                pass
            else: raise ValueError(op)
        elif op.startswith("ds_"):
            self.kind = "ds"
            if op.startswith("ds_read") or "_rtn" in op or "permute" in op or op.startswith("ds_swizzle"):
                self.defs = R[0]; self.uses = U(R[1:])
            else:
                self.uses = U(R)
        elif op.startswith("s_load") or op.startswith("s_buffer_load") or op.startswith("s_memrealtime") or op.startswith("s_memtime"):
            self.kind = "smem"; self.defs = R[0]; self.uses = U(R[1:])
        elif op.startswith("s_"):
            self.kind = "salu"
            if op.startswith(NODST_S):
                self.uses = U(R)
                if "vcc" in op: self.uses |= regs_of("vcc")
                if "exec" in op: self.uses |= regs_of("exec")
            else:
                self.defs = R[0]; self.uses = U(R[1:])
                if "saveexec" in op: self.defs |= regs_of("exec"); self.uses |= regs_of("exec")
                if re.match(r"s_(addk|mulk|cmov|bitset)", op): self.uses |= R[0]
        else:
            raise ValueError("unknown op " + text)
    def states(self):
        if self.kind in ("label", "dir", "none"): return 0
        if self.op == "s_nop": return int(self.ops[0], 0) + 1
        return 1

def isv(r): return r[0] in ("v", "a")
def iss(r): return r[0] == "s" or r in (("x", "vcc_lo"), ("x", "vcc_hi"))

def need(p, c):
    n = 0
    if p.kind == "valu":
        pv = {r for r in p.defs if isv(r)}; ps = {r for r in p.defs if iss(r)}
        if ps:
            if c.kind == "vmem" and ps & c.uses: n = max(n, 5)
            if c.kind == "valu" and ps & c.uses:
                n = max(n, 4 if (c.op.startswith(("v_readlane", "v_writelane", "v_div_fmas"))) else 2)
            if c.kind == "mfma" and ps & c.uses: n = max(n, 2)
        if pv:
            if c.kind == "valu":
                if pv & c.uses:
                    if (c.dpp and pv & c.srcs) or c.op.startswith("v_permlane"): n = max(n, 2)
                    if c.op.startswith(("v_readlane", "v_readfirstlane")): n = max(n, 1)
                    if p.trans or p.movebits: n = max(n, 1)
                if p.movebits and pv & c.defs: n = max(n, 1)
            if c.kind == "mfma" and pv & c.uses: n = max(n, 2)
            if p.dot and c.kind in ("valu", "mfma", "vmem", "ds") and pv & (c.uses | c.defs):
                same = c.op == p.op and len(c.ops) >= 3 and not (pv & (regs_of(c.ops[1]) | regs_of(c.ops[2])))
                if not same: n = max(n, 3)
            if p.trans and c.kind in ("vmem", "ds") and pv & c.uses: n = max(n, 1)
    if p.kind == "vmem" and p.wide_store & c.defs:
        n = max(n, 2 if c.kind in ("valu", "mfma") else 1)
    if p.kind == "salu" and ("x", "m0") in p.defs and c.kind == "vmem" and c.ldsdma: n = max(n, 1)
    if p.kind == "mfma":
        k = {2: 0, 4: 1, 8: 2, 16: 3}[p.npass]
        if c.kind == "mfma":
            if p.D & c.C:
                if p.D == c.C and p.npass == c.npass: n = max(n, [2, 0, 0, 0][k])
                else: n = max(n, [4, 6, 10, 18][k])
            if p.D & (c.A | c.B): n = max(n, [5, 8, 12, 20][k])
            if p.D & c.D and not (p.D == c.C): n = max(n, [5, 8, 12, 20][k])
        elif c.kind in ("valu", "vmem", "ds"):
            if p.D & (c.uses | c.defs): n = max(n, [5, 8, 12, 20][k])
            if c.kind == "valu" and p.C & c.defs: n = max(n, [1, 3, 7, 15][k])
    return n

def insert_nops(lines):
    ins = [I(l) for l in lines]
    def maps():
        labs = {x.label: i for i, x in enumerate(ins) if x.label}
        srcs = {}
        for i, x in enumerate(ins):
            if x.op and (x.op.startswith("s_cbranch") or x.op == "s_branch"):
                srcs.setdefault(labs[x.ops[0]], []).append(i)
        return srcs
    srcs = maps()
    i = 0
    while i < len(ins):
        c = ins[i]
        if c.kind in ("label", "dir", "none") or c.op == "s_nop":
            i += 1; continue
        worst = 0
        stack = [(i - 1, 0)]; seen = {}
        while stack:
            j, d = stack.pop()
            while j >= 0 and d < 21:
                if seen.get(j, 99) <= d: break
                seen[j] = d
                p = ins[j]
                if p.label:
                    for s_ in srcs.get(j, []): stack.append((s_, d))
                    k = j - 1
                    while k >= 0 and ins[k].kind in ("dir", "none"): k -= 1
                    if k >= 0 and ins[k].op in ("s_branch", "s_endpgm"): break
                    j -= 1; continue
                if p.kind not in ("dir", "none"):
                    worst = max(worst, need(p, c) - d)
                    d += p.states()
                j -= 1
        if worst > 0:
            new = []
            w = worst
            while w > 0:
                k = min(w, 16); new.append(I(f"    s_nop {k-1}")); w -= k
            ins[i:i] = new
            srcs = maps()
            i += len(new)
        i += 1
    return ins

def check_counters(ins):
    vm = []; lg = []; errs = []
    for idx, x in enumerate(ins):
        if x.kind == "none" and "@reset" in x.text: vm = []; lg = []
        if x.kind in ("label", "dir", "none"): continue
        if x.op == "s_endpgm": vm = []; lg = []; continue
        if x.op == "s_waitcnt":
            t = x.text
            m = re.search(r"vmcnt\((\d+)\)", t)
            if m:
                n = int(m.group(1))
                while len(vm) > n: vm.pop(0)
            m = re.search(r"lgkmcnt\((\d+)\)", t)
            if m:
                n = int(m.group(1))
                if n == 0: lg = []
                elif not any(k == "smem" for k, _ in lg):
                    while len(lg) > n: lg.pop(0)
            continue
        touched = x.uses | x.defs
        for d in vm:
            bad = d & touched if not (x.kind == "vmem" and x.defs and not (d & x.uses)) else set()
            if bad: errs.append(f"vm-pending {sorted(bad)[:3]} at {idx}: {x.text.strip()}")
        for k, d in lg:
            same = (x.kind == "ds" and k == "ds" and not (d & x.uses))
            if d & touched and not same: errs.append(f"lgkm-pending {sorted(d & touched)[:3]} at {idx}: {x.text.strip()}")
        if x.kind == "vmem":
            vm.append(set(x.defs))
            if len(vm) > 63: errs.append(f"vmcnt overflow at {idx}")
        if x.kind == "ds": lg.append(("ds", set(x.defs)))
        if x.kind == "smem": lg.append(("smem", set(x.defs)))
    return errs

class A:
    def __init__(self):
        self.l = []; self.nlab = 0
    def __call__(self, s):
        for line in s.strip("\n").split("\n"):
            t = line.strip()
            if not t: continue
            self.l.append(t if t.split(";")[0].strip().endswith(":") else "    " + t)
    def lab(self, p="L"):
        self.nlab += 1
        return f"{p}_{self.nlab}"
    def finish(self, check=True):
        ins = insert_nops(self.l)
        if check:
            e = check_counters(ins)
            for x in e[:20]: print("COUNTER:", x)
            assert not e
        mv = max([r[1] for x in ins for r in (x.defs | x.uses) if r[0] == "v"] + [0]) + 1
        ms = max([r[1] for x in ins for r in (x.defs | x.uses) if r[0] == "s"] + [0]) + 1
        self.maxv, self.maxs = mv, ms
        return "\n".join(x.text for x in ins) + "\n"

def header():
    src = open("sequential_preLN__sliding_block_cached__geglu_ffn__decode.s.ref").read()
    return "".join(l + "\n" for l in src.split("\n") if l.startswith(";") and "@launch" not in l and "Override" not in l and "grid=ceil" not in l)

def desc(name, vgpr, sgpr=102):
    acc = (vgpr + 3) // 4 * 4
    return f""".p2align 6
.amdhsa_kernel {name}
  .amdhsa_next_free_vgpr {acc}
  .amdhsa_next_free_sgpr {sgpr}
  .amdhsa_accum_offset {acc}
  .amdhsa_group_segment_fixed_size 0
  .amdhsa_kernarg_size 96
  .amdhsa_user_sgpr_count 2
  .amdhsa_user_sgpr_kernarg_segment_ptr 1
  .amdhsa_system_sgpr_workgroup_id_x 1
.end_amdhsa_kernel
"""

def wrap(kernels):
    out = header()
    if len(kernels) == 1:
        n, b, g, bl, lds, v = kernels[0]
        out += f"; @launch grid=({g},1,1) block=({bl},1,1) lds={lds}\n"
    else:
        for n, b, g, bl, lds, v in kernels:
            out += f"; @launch kernel={n} grid=({g},1,1) block=({bl},1,1) lds={lds}\n"
    out += '.amdgcn_target "amdgcn-amd-amdhsa--gfx950"\n.text\n'
    seen = []
    for n, b, g, bl, lds, v in kernels:
        if n in seen: continue
        seen.append(n)
        out += f".globl {n}\n.p2align 8\n.type {n},@function\n{n}:\n{b}\n"
    out += '.section .rodata,"a"\n'
    seen = []
    for n, b, g, bl, lds, v in kernels:
        if n in seen: continue
        seen.append(n)
        out += desc(n, v)
    return out
```

```python
import sys
from asm import *
PROUND = int(sys.argv[2]) if len(sys.argv) > 2 else 0
QP, SS, OP, HP, HH, GP, FP = 0, 0x100000, 0x200000, 0x300000, 0x400000, 0x410000, 0x500000

def prolog(a, nwg):
    a(f"""
    s_cmp_ge_u32 s2, {nwg}
    s_cbranch_scc1 {a.end}
    s_load_dwordx16 s[4:19], s[0:1], 0
    s_load_dwordx8 s[20:27], s[0:1], 64
    s_waitcnt lgkmcnt(0)
    """)
def epilog(a):
    a(f"{a.end}:\ns_endpgm")
def newk(n):
    a = A(); a.end = f"END_{n}"; a.pref = n; return a
def bfround(a, v):
    a(f"v_cvt_pk_bf16_f32 v{v}, v{v}, v{v}\nv_lshlrev_b32 v{v}, 16, v{v}")
def wred(a, v, t, op):
    a(f"""
    {op} v{v}, v{v}, v{v} quad_perm:[1,0,3,2] row_mask:0xf bank_mask:0xf
    {op} v{v}, v{v}, v{v} quad_perm:[2,3,0,1] row_mask:0xf bank_mask:0xf
    {op} v{v}, v{v}, v{v} row_half_mirror row_mask:0xf bank_mask:0xf
    {op} v{v}, v{v}, v{v} row_mirror row_mask:0xf bank_mask:0xf
    v_mov_b32 v{t}, v{v}
    v_permlane16_swap_b32 v{v}, v{t}
    {op} v{v}, v{v}, v{t}
    v_mov_b32 v{t}, v{v}
    v_permlane32_swap_b32 v{v}, v{t}
    {op} v{v}, v{v}, v{t}
    """)
def blocksum(a, v, t, ldsoff):
    wred(a, v, t, "v_add_f32")
    a(f"""
    v_lshrrev_b32 v{t}, 6, v0
    v_lshlrev_b32 v{t}, 2, v{t}
    ds_write_b32 v{t}, v{v} offset:{ldsoff}
    s_waitcnt lgkmcnt(0)
    s_barrier
    v_mov_b32 v{t}, 0
    ds_read_b128 v[{t}:{t+3}], v{t} offset:{ldsoff}
    s_waitcnt lgkmcnt(0)
    v_add_f32 v{t}, v{t}, v{t+1}
    v_add_f32 v{t+2}, v{t+2}, v{t+3}
    v_add_f32 v{v}, v{t}, v{t+2}
    """)
def layernorm(a):
    a("v_add_f32 v8, v4, v5\nv_add_f32 v9, v6, v7\nv_add_f32 v8, v8, v9")
    blocksum(a, 8, 12, 4096)
    a("v_mul_f32 v8, 0x3a800000, v8")
    a("v_mov_b32 v9, 0")
    for k in range(4):
        a(f"v_sub_f32 v10, v{4+k}, v8\nv_fmac_f32 v9, v10, v10")
    blocksum(a, 9, 12, 4112)
    a("v_mul_f32 v9, 0x3a800000, v9")
    bfround(a, 8); bfround(a, 9)
    a("v_add_f32 v9, 0x3727c5ac, v9"); bfround(a, 9)
    a("v_sqrt_f32 v9, v9"); bfround(a, 9)
    a("v_rcp_f32 v10, v9")
    for k in range(4):
        a(f"v_sub_f32 v{4+k}, v{4+k}, v8"); bfround(a, 4+k)
        a(f"v_mul_f32 v11, v{4+k}, v10\nv_fma_f32 v12, -v11, v9, v{4+k}\nv_fma_f32 v{4+k}, v12, v10, v11"); bfround(a, 4+k)
    a("v_lshlrev_b32 v1, 4, v0\nds_write_b128 v1, v[4:7]\ns_waitcnt lgkmcnt(0)\ns_barrier")
def gemv(a, wp, rowb, nr, s_row0, s_col0, s_ldsx, outp_s, s_outoff):
    a(f"""
    s_mul_i32 s40, {s_row0}, {rowb}
    s_lshl_b32 s41, {s_col0}, 1
    s_add_u32 s40, s40, s41
    s_add_u32 s42, s{wp}, s40
    s_addc_u32 s43, s{wp+1}, 0
    v_lshlrev_b32 v1, 2, v0
    v_mov_b32 v2, {s_ldsx}
    v_mov_b32 v4, 0
    v_mov_b32 v5, 0
    """)
    for r0 in range(0, nr, 32):
        for r in range(32):
            a(f"global_load_dword v{16+r}, v1, s[42:43] nt\ns_add_u32 s42, s42, {rowb}\ns_addc_u32 s43, s43, 0")
        for r in range(0, 32, 4):
            a(f"ds_read_b128 v[{48+r}:{51+r}], v2 offset:{4*(r0+r)}")
        a("s_waitcnt vmcnt(0) lgkmcnt(0)")
        for r in range(32):
            a(f"v_lshlrev_b32 v6, 16, v{16+r}\nv_and_b32 v7, 0xffff0000, v{16+r}\nv_fmac_f32 v4, v6, v{48+r}\nv_fmac_f32 v5, v7, v{48+r}")
    a(f"""
    s_add_u32 s42, s26, {s_outoff}
    s_addc_u32 s43, s27, 0
    v_lshlrev_b32 v1, 3, v0
    global_store_dwordx2 v1, v[4:5], s[42:43]
    """)
def sumparts(a, vacc, n, vaddr, base, stride, width=1):
    suf = {1: "dword", 4: "dwordx4"}[width]
    a(f"s_add_u32 s42, s26, {base}\ns_addc_u32 s43, s27, 0")
    for k in range(width): a(f"v_mov_b32 v{vacc+k}, 0")
    B = 8
    for k0 in range(0, n, B):
        for k in range(B):
            d = f"v{16+k}" if width == 1 else f"v[{16+4*k}:{19+4*k}]"
            a(f"global_load_{suf} {d}, v{vaddr}, s[42:43]\ns_add_u32 s42, s42, {stride}\ns_addc_u32 s43, s43, 0")
        a("s_waitcnt vmcnt(0)")
        for k in range(B):
            for e in range(width): a(f"v_add_f32 v{vacc+e}, v{vacc+e}, v{16+width*k+e}")
K = []
def done(a, n, grid, lds):
    epilog(a)
    K.append((n, a.finish(), grid, 256, lds, max(a.maxv, 8)))

a = newk("q"); prolog(a, 256)
a("v_lshlrev_b32 v1, 3, v0\nglobal_load_dwordx2 v[2:3], v1, s[4:5]\ns_waitcnt vmcnt(0)")
a("v_lshlrev_b32 v4, 16, v2\nv_and_b32 v5, 0xffff0000, v2\nv_lshlrev_b32 v6, 16, v3\nv_and_b32 v7, 0xffff0000, v3")
layernorm(a)
a("s_lshr_b32 s30, s2, 3\ns_lshl_b32 s31, s30, 5\ns_and_b32 s32, s2, 7\ns_lshl_b32 s32, s32, 9\ns_lshl_b32 s33, s31, 2")
a(f"s_lshl_b32 s34, s30, 14\ns_lshl_b32 s35, s32, 2\ns_add_u32 s34, s34, s35\ns_add_u32 s34, s34, {QP}")
gemv(a, 10, 8192, 32, "s31", "s32", "s33", 26, "s34")
done(a, "bq_kernel", 256, 4224)

a = newk("sc"); prolog(a, 256)
a("s_lshr_b32 s30, s2, 6\ns_and_b32 s31, s2, 63\nv_lshlrev_b32 v1, 4, v0\ns_lshl_b32 s32, s30, 12\nv_add_u32 v2, s32, v1")
sumparts(a, 4, 32, 2, QP, 16384, 4)
for k in range(4): bfround(a, 4+k)
a("ds_write_b128 v1, v[4:7]\ns_waitcnt lgkmcnt(0)\ns_barrier")
a(f"""
s_lshl_b32 s33, s30, 24
s_lshl_b32 s34, s31, 14
s_add_u32 s33, s33, s34
s_add_u32 s33, s33, {(65536-4096)*256}
s_add_u32 s42, s6, s33
s_addc_u32 s43, s7, 0
v_and_b32 v2, 63, v0
v_lshlrev_b32 v3, 8, v2
v_lshrrev_b32 v8, 6, v0
v_lshlrev_b32 v9, 10, v8
v_mov_b32 v4, 0
v_mov_b32 v5, 0
""")
for c in range(16): a(f"global_load_dwordx4 v[{16+4*c}:{19+4*c}], v3, s[42:43] offset:{16*c}")
a("s_waitcnt vmcnt(0)")
for c in range(16):
    a(f"ds_read_b128 v[80:83], v9 offset:{32*c}\nds_read_b128 v[84:87], v9 offset:{32*c+16}\nds_read_b128 v[88:91], v9 offset:{512+32*c}\nds_read_b128 v[92:95], v9 offset:{512+32*c+16}\ns_waitcnt lgkmcnt(0)")
    for e in range(4):
        a(f"v_lshlrev_b32 v6, 16, v{16+4*c+e}\nv_and_b32 v7, 0xffff0000, v{16+4*c+e}")
        a(f"v_fmac_f32 v4, v6, v{80+2*e}\nv_fmac_f32 v4, v7, v{81+2*e}\nv_fmac_f32 v5, v6, v{88+2*e}\nv_fmac_f32 v5, v7, v{89+2*e}")
for v in (4, 5):
    bfround(a, v); a(f"v_mul_f32 v{v}, 0x3db504f3, v{v}"); bfround(a, v)
a(f"""
s_lshl_b32 s33, s30, 17
s_lshl_b32 s34, s31, 8
s_add_u32 s33, s33, s34
s_add_u32 s33, s33, {SS}
s_add_u32 s42, s26, s33
s_addc_u32 s43, s27, 0
v_lshlrev_b32 v8, 15, v8
v_lshl_add_u32 v8, v2, 2, v8
global_store_dword v8, v4, s[42:43]
v_add_u32 v8, 0x4000, v8
global_store_dword v8, v5, s[42:43]
""")
done(a, "bs_kernel", 256, 4224)

a = newk("pv"); prolog(a, 256)
a(f"""
s_lshr_b32 s30, s2, 6
s_and_b32 s31, s2, 63
s_lshl_b32 s33, s30, 17
s_add_u32 s33, s33, {SS}
s_add_u32 s42, s26, s33
s_addc_u32 s43, s27, 0
v_and_b32 v2, 63, v0
v_lshrrev_b32 v8, 6, v0
v_lshlrev_b32 v3, 15, v8
v_lshl_add_u32 v9, v2, 4, v3
s_lshl_b32 s34, s31, 8
v_lshl_add_u32 v10, v2, 2, v3
v_add_u32 v10, s34, v10
s_mov_b32 s36, 0x3fb8aa3b
""")
for hh in range(2):
    for c in range(16):
        a(f"global_load_dwordx4 v[{16+4*c}:{19+4*c}], v9, s[42:43]\nv_add_u32 v9, 0x400, v9")
    a(f"global_load_dword v{4+hh}, v10, s[42:43]\nv_add_u32 v10, 0x4000, v10\ns_waitcnt vmcnt(0)")
    a("v_mov_b32 v6, v16")
    for c in range(1, 64): a(f"v_max_f32 v6, v6, v{16+c}")
    wred(a, 6, 12, "v_max_f32")
    a("v_mov_b32 v7, 0")
    for c in range(64): a(f"v_sub_f32 v11, v{16+c}, v6\nv_mul_f32 v11, s36, v11\nv_exp_f32 v11, v11\nv_add_f32 v7, v7, v11")
    wred(a, 7, 12, "v_add_f32")
    a(f"v_sub_f32 v11, v{4+hh}, v6\nv_mul_f32 v11, s36, v11\nv_exp_f32 v11, v11\nv_rcp_f32 v7, v7\nv_mul_f32 v{4+hh}, v11, v7")
    if PROUND: bfround(a, 4+hh)
a(f"""
v_lshlrev_b32 v9, 9, v8
v_lshl_add_u32 v3, v2, 2, v9
ds_write_b32 v3, v4
ds_write_b32 v3, v5 offset:256
s_lshl_b32 s33, s30, 24
s_lshl_b32 s34, s31, 14
s_add_u32 s33, s33, s34
s_add_u32 s33, s33, {(65536-4096)*256}
s_add_u32 s42, s8, s33
s_addc_u32 s43, s9, 0
v_lshlrev_b32 v3, 2, v2
""")
for p in range(64):
    if p == 60: a("s_waitcnt vmcnt(0)")
    a(f"global_load_dword v{16+p}, v3, s[42:43]\nv_add_u32 v3, 0x100, v3")
a("s_waitcnt vmcnt(0) lgkmcnt(0)\nv_mov_b32 v4, 0\nv_mov_b32 v5, 0\nv_mov_b32 v6, 0\nv_mov_b32 v7, 0")
for p0 in range(0, 64, 4):
    a(f"ds_read_b128 v[80:83], v9 offset:{4*p0}\nds_read_b128 v[84:87], v9 offset:{256+4*p0}\ns_waitcnt lgkmcnt(0)")
    for e in range(4):
        a(f"v_lshlrev_b32 v10, 16, v{16+p0+e}\nv_and_b32 v11, 0xffff0000, v{16+p0+e}\nv_fmac_f32 v4, v10, v{80+e}\nv_fmac_f32 v5, v11, v{80+e}\nv_fmac_f32 v6, v10, v{84+e}\nv_fmac_f32 v7, v11, v{84+e}")
a(f"""
s_lshl_b32 s33, s31, 14
s_lshl_b32 s34, s30, 12
s_add_u32 s33, s33, s34
s_add_u32 s33, s33, {OP}
s_add_u32 s42, s26, s33
s_addc_u32 s43, s27, 0
v_lshlrev_b32 v8, 10, v8
v_lshl_add_u32 v8, v2, 3, v8
global_store_dwordx2 v8, v[4:5], s[42:43]
global_store_dwordx2 v8, v[6:7], s[42:43] offset:512
""")
done(a, "bp_kernel", 256, 4224)

a = newk("wo"); prolog(a, 256)
a("s_lshr_b32 s30, s2, 1\ns_lshl_b32 s31, s30, 5\ns_and_b32 s32, s2, 1\ns_lshl_b32 s32, s32, 9\nv_and_b32 v2, 31, v0\nv_lshlrev_b32 v3, 2, v2\ns_lshl_b32 s33, s31, 2\nv_add_u32 v2, s33, v3")
sumparts(a, 4, 64, 2, OP, 16384); bfround(a, 4)
a("ds_write_b32 v3, v4\ns_waitcnt lgkmcnt(0)\ns_barrier")
a(f"s_lshl_b32 s34, s30, 12\ns_lshl_b32 s35, s32, 2\ns_add_u32 s34, s34, s35\ns_add_u32 s34, s34, {HP}")
gemv(a, 12, 2048, 32, "s31", "s32", "0", 26, "s34")
done(a, "bo_kernel", 256, 4224)

a = newk("hr"); prolog(a, 4)
a("s_lshl_b32 s30, s2, 8\nv_add_u32 v3, s30, v0\nv_lshlrev_b32 v2, 2, v3\nv_lshlrev_b32 v3, 1, v3\nglobal_load_ushort v5, v3, s[4:5]")
sumparts(a, 4, 128, 2, HP, 4096); bfround(a, 4)
a("v_lshlrev_b32 v5, 16, v5\nv_add_f32 v4, v4, v5"); bfround(a, 4)
a(f"s_add_u32 s42, s26, {HH}\ns_addc_u32 s43, s27, 0\nglobal_store_dword v2, v4, s[42:43]")
done(a, "bh_kernel", 4, 0)

a = newk("gu"); prolog(a, 224)
a(f"s_add_u32 s42, s26, {HH}\ns_addc_u32 s43, s27, 0\nv_lshlrev_b32 v1, 4, v0\nglobal_load_dwordx4 v[4:7], v1, s[42:43]\ns_waitcnt vmcnt(0)")
layernorm(a)
a(f"""
s_mul_i32 s30, s2, 4682
s_lshr_b32 s30, s30, 16
s_mul_i32 s36, s30, 14
s_sub_u32 s36, s2, s36
s_cmp_ge_u32 s36, 7
s_cselect_b32 s44, s18, s16
s_cselect_b32 s45, s19, s17
s_cselect_b32 s37, 7, 0
s_sub_u32 s32, s36, s37
s_lshl_b32 s32, s32, 9
s_lshl_b32 s31, s30, 6
s_lshl_b32 s33, s31, 2
s_mul_i32 s34, s30, {2*3584*4}
s_lshl_b32 s35, s36, 11
s_add_u32 s34, s34, s35
s_add_u32 s34, s34, {GP}
""")
gemv(a, 44, 7168, 64, "s31", "s32", "s33", 26, "s34")
done(a, "bg_kernel", 224, 4224)

a = newk("dn"); prolog(a, 224)
a("s_lshr_b32 s30, s2, 1\ns_lshl_b32 s31, s30, 5\ns_and_b32 s32, s2, 1\ns_lshl_b32 s32, s32, 9\nv_and_b32 v2, 31, v0\nv_lshlrev_b32 v3, 2, v2\ns_lshl_b32 s33, s31, 2\nv_add_u32 v2, s33, v3")
sumparts(a, 4, 16, 2, GP, 2*3584*4); bfround(a, 4)
sumparts(a, 5, 16, 2, GP + 3584*4, 2*3584*4); bfround(a, 5)
a("""
v_mul_f32 v6, v4, v4
v_mul_f32 v6, 0x3d372713, v6
v_fma_f32 v6, v6, v4, v4
v_mul_f32 v6, 0xc0135761, v6
v_exp_f32 v6, v6
v_add_f32 v6, 1.0, v6
v_rcp_f32 v6, v6
v_mul_f32 v4, v4, v6
""")
bfround(a, 4); a("v_mul_f32 v4, v4, v5"); bfround(a, 4)
a("ds_write_b32 v3, v4\ns_waitcnt lgkmcnt(0)\ns_barrier")
a(f"s_lshl_b32 s34, s30, 12\ns_lshl_b32 s35, s32, 2\ns_add_u32 s34, s34, s35\ns_add_u32 s34, s34, {FP}")
gemv(a, 20, 2048, 32, "s31", "s32", "0", 26, "s34")
done(a, "bd_kernel", 224, 4224)

a = newk("fr"); prolog(a, 4)
a(f"s_lshl_b32 s30, s2, 8\nv_add_u32 v3, s30, v0\nv_lshlrev_b32 v2, 2, v3\nv_lshlrev_b32 v3, 1, v3\ns_add_u32 s42, s26, {HH}\ns_addc_u32 s43, s27, 0\nglobal_load_dword v5, v2, s[42:43]")
sumparts(a, 4, 112, 2, FP, 4096); bfround(a, 4)
a("v_add_f32 v4, v4, v5\nv_cvt_pk_bf16_f32 v4, v4, v4\nglobal_store_short v3, v4, s[22:23]")
done(a, "bf_kernel", 4, 0)
open(sys.argv[1], "w").write(wrap(K))
```

```python
import sys
from asm import *
PROUND = int(sys.argv[2]) if len(sys.argv) > 2 else 0
MODE = int(sys.argv[3]) if len(sys.argv) > 3 else 0
QP, SS, OP, HP, HH, GP, FP = 0, 0x100000, 0x200000, 0x300000, 0x400000, 0x410000, 0x500000

def prolog(a, nwg):
    a(f"""
    s_cmp_ge_u32 s2, {nwg}
    s_cbranch_scc1 {a.end}
    s_load_dwordx16 s[4:19], s[0:1], 0
    s_load_dwordx8 s[20:27], s[0:1], 64
    s_waitcnt lgkmcnt(0)
    """)
def epilog(a):
    a(f"{a.end}:\ns_endpgm")
def newk(n):
    a = A(); a.end = f"END_{n}"; a.pref = n; return a
def bfround(a, v, lvl=3):
    if MODE >= lvl: return
    a(f"v_cvt_pk_bf16_f32 v{v}, v{v}, v{v}\nv_lshlrev_b32 v{v}, 16, v{v}")
def wred(a, v, t, op):
    a(f"""
    {op} v{v}, v{v}, v{v} quad_perm:[1,0,3,2] row_mask:0xf bank_mask:0xf
    {op} v{v}, v{v}, v{v} quad_perm:[2,3,0,1] row_mask:0xf bank_mask:0xf
    {op} v{v}, v{v}, v{v} row_half_mirror row_mask:0xf bank_mask:0xf
    {op} v{v}, v{v}, v{v} row_mirror row_mask:0xf bank_mask:0xf
    v_mov_b32 v{t}, v{v}
    v_permlane16_swap_b32 v{v}, v{t}
    {op} v{v}, v{v}, v{t}
    v_mov_b32 v{t}, v{v}
    v_permlane32_swap_b32 v{v}, v{t}
    {op} v{v}, v{v}, v{t}
    """)
def blocksum(a, v, t, ldsoff):
    wred(a, v, t, "v_add_f32")
    a(f"""
    v_lshrrev_b32 v{t}, 6, v0
    v_lshlrev_b32 v{t}, 2, v{t}
    ds_write_b32 v{t}, v{v} offset:{ldsoff}
    s_waitcnt lgkmcnt(0)
    s_barrier
    v_mov_b32 v{t}, 0
    ds_read_b128 v[{t}:{t+3}], v{t} offset:{ldsoff}
    s_waitcnt lgkmcnt(0)
    v_add_f32 v{t}, v{t}, v{t+1}
    v_add_f32 v{t+2}, v{t+2}, v{t+3}
    v_add_f32 v{v}, v{t}, v{t+2}
    """)
def layernorm(a):
    a("v_add_f32 v8, v4, v5\nv_add_f32 v9, v6, v7\nv_add_f32 v8, v8, v9")
    blocksum(a, 8, 12, 4096)
    a("v_mul_f32 v8, 0x3a800000, v8")
    a("v_mov_b32 v9, 0")
    for k in range(4):
        a(f"v_sub_f32 v10, v{4+k}, v8\nv_fmac_f32 v9, v10, v10")
    blocksum(a, 9, 12, 4112)
    a("v_mul_f32 v9, 0x3a800000, v9")
    bfround(a, 8); bfround(a, 9)
    a("v_add_f32 v9, 0x3727c5ac, v9"); bfround(a, 9)
    a("v_sqrt_f32 v9, v9"); bfround(a, 9)
    a("v_rcp_f32 v10, v9")
    for k in range(4):
        a(f"v_sub_f32 v{4+k}, v{4+k}, v8"); bfround(a, 4+k)
        a(f"v_mul_f32 v11, v{4+k}, v10\nv_fma_f32 v12, -v11, v9, v{4+k}\nv_fma_f32 v{4+k}, v12, v10, v11"); bfround(a, 4+k)
    a("v_lshlrev_b32 v1, 4, v0\nds_write_b128 v1, v[4:7]\ns_waitcnt lgkmcnt(0)\ns_barrier")
def gemv(a, wp, rowb, nr, s_row0, s_col0, s_ldsx, outp_s, s_outoff):
    a(f"""
    s_mul_i32 s40, {s_row0}, {rowb}
    s_lshl_b32 s41, {s_col0}, 1
    s_add_u32 s40, s40, s41
    s_add_u32 s42, s{wp}, s40
    s_addc_u32 s43, s{wp+1}, 0
    v_lshlrev_b32 v1, 2, v0
    v_mov_b32 v2, {s_ldsx}
    v_mov_b32 v4, 0
    v_mov_b32 v5, 0
    """)
    for r0 in range(0, nr, 32):
        for r in range(32):
            a(f"global_load_dword v{16+r}, v1, s[42:43] nt\ns_add_u32 s42, s42, {rowb}\ns_addc_u32 s43, s43, 0")
        for r in range(0, 32, 4):
            a(f"ds_read_b128 v[{48+r}:{51+r}], v2 offset:{4*(r0+r)}")
        a("s_waitcnt vmcnt(0) lgkmcnt(0)")
        for r in range(32):
            a(f"v_lshlrev_b32 v6, 16, v{16+r}\nv_and_b32 v7, 0xffff0000, v{16+r}\nv_fmac_f32 v4, v6, v{48+r}\nv_fmac_f32 v5, v7, v{48+r}")
    a(f"""
    s_add_u32 s42, s26, {s_outoff}
    s_addc_u32 s43, s27, 0
    v_lshlrev_b32 v1, 3, v0
    global_store_dwordx2 v1, v[4:5], s[42:43]
    """)
def sumparts(a, vacc, n, vaddr, base, stride, width=1):
    suf = {1: "dword", 4: "dwordx4"}[width]
    a(f"s_add_u32 s42, s26, {base}\ns_addc_u32 s43, s27, 0")
    for k in range(width): a(f"v_mov_b32 v{vacc+k}, 0")
    B = 8
    for k0 in range(0, n, B):
        for k in range(B):
            d = f"v{16+k}" if width == 1 else f"v[{16+4*k}:{19+4*k}]"
            a(f"global_load_{suf} {d}, v{vaddr}, s[42:43]\ns_add_u32 s42, s42, {stride}\ns_addc_u32 s43, s43, 0")
        a("s_waitcnt vmcnt(0)")
        for k in range(B):
            for e in range(width): a(f"v_add_f32 v{vacc+e}, v{vacc+e}, v{16+width*k+e}")
K = []
def done(a, n, grid, lds):
    epilog(a)
    K.append((n, a.finish(), grid, 256, lds, max(a.maxv, 8)))

a = newk("q"); prolog(a, 256)
a("v_lshlrev_b32 v1, 3, v0\nglobal_load_dwordx2 v[2:3], v1, s[4:5]\ns_waitcnt vmcnt(0)")
a("v_lshlrev_b32 v4, 16, v2\nv_and_b32 v5, 0xffff0000, v2\nv_lshlrev_b32 v6, 16, v3\nv_and_b32 v7, 0xffff0000, v3")
layernorm(a)
a("s_lshr_b32 s30, s2, 3\ns_lshl_b32 s31, s30, 5\ns_and_b32 s32, s2, 7\ns_lshl_b32 s32, s32, 9\ns_lshl_b32 s33, s31, 2")
a(f"s_lshl_b32 s34, s30, 14\ns_lshl_b32 s35, s32, 2\ns_add_u32 s34, s34, s35\ns_add_u32 s34, s34, {QP}")
gemv(a, 10, 8192, 32, "s31", "s32", "s33", 26, "s34")
done(a, "bq_kernel", 256, 4224)

a = newk("sc"); prolog(a, 256)
a("s_lshr_b32 s30, s2, 6\ns_and_b32 s31, s2, 63\nv_lshlrev_b32 v1, 4, v0\ns_lshl_b32 s32, s30, 12\nv_add_u32 v2, s32, v1")
sumparts(a, 4, 32, 2, QP, 16384, 4)
for k in range(4): bfround(a, 4+k)
a("ds_write_b128 v1, v[4:7]\ns_waitcnt lgkmcnt(0)\ns_barrier")
a(f"""
s_lshl_b32 s33, s30, 24
s_lshl_b32 s34, s31, 14
s_add_u32 s33, s33, s34
s_add_u32 s33, s33, {(65536-4096)*256}
s_add_u32 s42, s6, s33
s_addc_u32 s43, s7, 0
v_and_b32 v2, 63, v0
v_lshlrev_b32 v3, 8, v2
v_lshrrev_b32 v8, 6, v0
v_lshlrev_b32 v9, 10, v8
v_mov_b32 v4, 0
v_mov_b32 v5, 0
""")
for c in range(16): a(f"global_load_dwordx4 v[{16+4*c}:{19+4*c}], v3, s[42:43] offset:{16*c}")
a("s_waitcnt vmcnt(0)")
for c in range(16):
    a(f"ds_read_b128 v[80:83], v9 offset:{32*c}\nds_read_b128 v[84:87], v9 offset:{32*c+16}\nds_read_b128 v[88:91], v9 offset:{512+32*c}\nds_read_b128 v[92:95], v9 offset:{512+32*c+16}\ns_waitcnt lgkmcnt(0)")
    for e in range(4):
        a(f"v_lshlrev_b32 v6, 16, v{16+4*c+e}\nv_and_b32 v7, 0xffff0000, v{16+4*c+e}")
        a(f"v_fmac_f32 v4, v6, v{80+2*e}\nv_fmac_f32 v4, v7, v{81+2*e}\nv_fmac_f32 v5, v6, v{88+2*e}\nv_fmac_f32 v5, v7, v{89+2*e}")
for v in (4, 5):
    bfround(a, v, 2); a(f"v_mul_f32 v{v}, 0x3db504f3, v{v}"); bfround(a, v, 1)
a(f"""
s_lshl_b32 s33, s30, 17
s_lshl_b32 s34, s31, 8
s_add_u32 s33, s33, s34
s_add_u32 s33, s33, {SS}
s_add_u32 s42, s26, s33
s_addc_u32 s43, s27, 0
v_lshlrev_b32 v8, 15, v8
v_lshl_add_u32 v8, v2, 2, v8
global_store_dword v8, v4, s[42:43]
v_add_u32 v8, 0x4000, v8
global_store_dword v8, v5, s[42:43]
""")
done(a, "bs_kernel", 256, 4224)

a = newk("pv"); prolog(a, 256)
a(f"""
s_lshr_b32 s30, s2, 6
s_and_b32 s31, s2, 63
s_lshl_b32 s33, s30, 17
s_add_u32 s33, s33, {SS}
s_add_u32 s42, s26, s33
s_addc_u32 s43, s27, 0
v_and_b32 v2, 63, v0
v_lshrrev_b32 v8, 6, v0
v_lshlrev_b32 v3, 15, v8
v_lshl_add_u32 v9, v2, 4, v3
s_lshl_b32 s34, s31, 8
v_lshl_add_u32 v10, v2, 2, v3
v_add_u32 v10, s34, v10
s_mov_b32 s36, 0x3fb8aa3b
""")
for hh in range(2):
    for c in range(16):
        a(f"global_load_dwordx4 v[{16+4*c}:{19+4*c}], v9, s[42:43]\nv_add_u32 v9, 0x400, v9")
    a(f"global_load_dword v{4+hh}, v10, s[42:43]\nv_add_u32 v10, 0x4000, v10\ns_waitcnt vmcnt(0)")
    a("v_mov_b32 v6, v16")
    for c in range(1, 64): a(f"v_max_f32 v6, v6, v{16+c}")
    wred(a, 6, 12, "v_max_f32")
    a("v_mov_b32 v7, 0")
    for c in range(64): a(f"v_sub_f32 v11, v{16+c}, v6\nv_mul_f32 v11, s36, v11\nv_exp_f32 v11, v11\nv_add_f32 v7, v7, v11")
    wred(a, 7, 12, "v_add_f32")
    a(f"v_sub_f32 v11, v{4+hh}, v6\nv_mul_f32 v11, s36, v11\nv_exp_f32 v11, v11\nv_rcp_f32 v7, v7\nv_mul_f32 v{4+hh}, v11, v7")
    if PROUND: bfround(a, 4+hh)
a(f"""
v_lshlrev_b32 v9, 9, v8
v_lshl_add_u32 v3, v2, 2, v9
ds_write_b32 v3, v4
ds_write_b32 v3, v5 offset:256
s_lshl_b32 s33, s30, 24
s_lshl_b32 s34, s31, 14
s_add_u32 s33, s33, s34
s_add_u32 s33, s33, {(65536-4096)*256}
s_add_u32 s42, s8, s33
s_addc_u32 s43, s9, 0
v_lshlrev_b32 v3, 2, v2
""")
for p in range(64):
    if p == 60: a("s_waitcnt vmcnt(0)")
    a(f"global_load_dword v{16+p}, v3, s[42:43]\nv_add_u32 v3, 0x100, v3")
a("s_waitcnt vmcnt(0) lgkmcnt(0)\nv_mov_b32 v4, 0\nv_mov_b32 v5, 0\nv_mov_b32 v6, 0\nv_mov_b32 v7, 0")
for p0 in range(0, 64, 4):
    a(f"ds_read_b128 v[80:83], v9 offset:{4*p0}\nds_read_b128 v[84:87], v9 offset:{256+4*p0}\ns_waitcnt lgkmcnt(0)")
    for e in range(4):
        a(f"v_lshlrev_b32 v10, 16, v{16+p0+e}\nv_and_b32 v11, 0xffff0000, v{16+p0+e}\nv_fmac_f32 v4, v10, v{80+e}\nv_fmac_f32 v5, v11, v{80+e}\nv_fmac_f32 v6, v10, v{84+e}\nv_fmac_f32 v7, v11, v{84+e}")
a(f"""
s_lshl_b32 s33, s31, 14
s_lshl_b32 s34, s30, 12
s_add_u32 s33, s33, s34
s_add_u32 s33, s33, {OP}
s_add_u32 s42, s26, s33
s_addc_u32 s43, s27, 0
v_lshlrev_b32 v8, 10, v8
v_lshl_add_u32 v8, v2, 3, v8
global_store_dwordx2 v8, v[4:5], s[42:43]
global_store_dwordx2 v8, v[6:7], s[42:43] offset:512
""")
done(a, "bp_kernel", 256, 4224)

a = newk("wo"); prolog(a, 256)
a("s_lshr_b32 s30, s2, 1\ns_lshl_b32 s31, s30, 5\ns_and_b32 s32, s2, 1\ns_lshl_b32 s32, s32, 9\nv_and_b32 v2, 31, v0\nv_lshlrev_b32 v3, 2, v2\ns_lshl_b32 s33, s31, 2\nv_add_u32 v2, s33, v3")
sumparts(a, 4, 64, 2, OP, 16384); bfround(a, 4)
a("ds_write_b32 v3, v4\ns_waitcnt lgkmcnt(0)\ns_barrier")
a(f"s_lshl_b32 s34, s30, 12\ns_lshl_b32 s35, s32, 2\ns_add_u32 s34, s34, s35\ns_add_u32 s34, s34, {HP}")
gemv(a, 12, 2048, 32, "s31", "s32", "0", 26, "s34")
done(a, "bo_kernel", 256, 4224)

a = newk("hr"); prolog(a, 4)
a("s_lshl_b32 s30, s2, 8\nv_add_u32 v3, s30, v0\nv_lshlrev_b32 v2, 2, v3\nv_lshlrev_b32 v3, 1, v3\nglobal_load_ushort v5, v3, s[4:5]")
sumparts(a, 4, 128, 2, HP, 4096); bfround(a, 4)
a("v_lshlrev_b32 v5, 16, v5\nv_add_f32 v4, v4, v5"); bfround(a, 4)
a(f"s_add_u32 s42, s26, {HH}\ns_addc_u32 s43, s27, 0\nglobal_store_dword v2, v4, s[42:43]")
done(a, "bh_kernel", 4, 0)

a = newk("gu"); prolog(a, 224)
a(f"s_add_u32 s42, s26, {HH}\ns_addc_u32 s43, s27, 0\nv_lshlrev_b32 v1, 4, v0\nglobal_load_dwordx4 v[4:7], v1, s[42:43]\ns_waitcnt vmcnt(0)")
layernorm(a)
a(f"""
s_mul_i32 s30, s2, 4682
s_lshr_b32 s30, s30, 16
s_mul_i32 s36, s30, 14
s_sub_u32 s36, s2, s36
s_cmp_ge_u32 s36, 7
s_cselect_b32 s44, s18, s16
s_cselect_b32 s45, s19, s17
s_cselect_b32 s37, 7, 0
s_sub_u32 s32, s36, s37
s_lshl_b32 s32, s32, 9
s_lshl_b32 s31, s30, 6
s_lshl_b32 s33, s31, 2
s_mul_i32 s34, s30, {2*3584*4}
s_lshl_b32 s35, s36, 11
s_add_u32 s34, s34, s35
s_add_u32 s34, s34, {GP}
""")
gemv(a, 44, 7168, 64, "s31", "s32", "s33", 26, "s34")
done(a, "bg_kernel", 224, 4224)

a = newk("dn"); prolog(a, 224)
a("s_lshr_b32 s30, s2, 1\ns_lshl_b32 s31, s30, 5\ns_and_b32 s32, s2, 1\ns_lshl_b32 s32, s32, 9\nv_and_b32 v2, 31, v0\nv_lshlrev_b32 v3, 2, v2\ns_lshl_b32 s33, s31, 2\nv_add_u32 v2, s33, v3")
sumparts(a, 4, 16, 2, GP, 2*3584*4); bfround(a, 4)
sumparts(a, 5, 16, 2, GP + 3584*4, 2*3584*4); bfround(a, 5)
a("""
v_mul_f32 v6, v4, v4
v_mul_f32 v6, 0x3d372713, v6
v_fma_f32 v6, v6, v4, v4
v_mul_f32 v6, 0xc0135761, v6
v_exp_f32 v6, v6
v_add_f32 v6, 1.0, v6
v_rcp_f32 v6, v6
v_mul_f32 v4, v4, v6
""")
bfround(a, 4); a("v_mul_f32 v4, v4, v5"); bfround(a, 4)
a("ds_write_b32 v3, v4\ns_waitcnt lgkmcnt(0)\ns_barrier")
a(f"s_lshl_b32 s34, s30, 12\ns_lshl_b32 s35, s32, 2\ns_add_u32 s34, s34, s35\ns_add_u32 s34, s34, {FP}")
gemv(a, 20, 2048, 32, "s31", "s32", "0", 26, "s34")
done(a, "bd_kernel", 224, 4224)

a = newk("fr"); prolog(a, 4)
a(f"s_lshl_b32 s30, s2, 8\nv_add_u32 v3, s30, v0\nv_lshlrev_b32 v2, 2, v3\nv_lshlrev_b32 v3, 1, v3\ns_add_u32 s42, s26, {HH}\ns_addc_u32 s43, s27, 0\nglobal_load_dword v5, v2, s[42:43]")
sumparts(a, 4, 112, 2, FP, 4096); bfround(a, 4)
a("v_add_f32 v4, v4, v5\nv_cvt_pk_bf16_f32 v4, v4, v4\nglobal_store_short v3, v4, s[22:23]")
done(a, "bf_kernel", 4, 0)
open(sys.argv[1], "w").write(wrap(K))
```

```python
import sys
from asm import *
KOFF = (65536 - 4096) * 256
XT, Q1, Q2, O2, O3, H1, F1, GU = 0x1000, 0x10000, 0x30000, 0x40000, 0x140000, 0x150000, 0x170000, 0x200000
GUS = 2304
PX, PO, PG, KR, SC, QC, CQ, CO, CG, CD, VERD, E1A, AP = 0, 16, 32, 48, 64, 72, 76, 80, 84, 88, 92, 96, 100
QL, SL, ST, KL, VL, OT, PQ, POo, PD, PGU, LDS = 256, 2560, 3584, 4096, 20480, 36864, 41984, 46080, 50176, 54272, 62464
sJ, sI, sG, sK, sSET, sT, sBUD, sVERD = 28, 29, 30, 31, 32, 33, 40, 41
sTAG, sE1, sE2, sE3, sX1, sX2, sL2E, sGC = 34, 35, 36, 37, 38, 39, 42, 43
sODD, sB1, sB2, sB3, sN8, sSC = 44, 46, 48, 50, 52, 54
sA, sB, sC, sD = 56, 58, 60, 62
t0, t1, t2, t3 = 96, 97, 98, 99
STAMP0 = 64
vL, vN, vKB, vT, vT8, vZ, vONE, vM = 0, 2, 3, 4, 5, 6, 7, 8
vF, vPW, vPR, vH2 = 12, 13, 14, 15
DEF = dict(dev=1, bud=20000, local=1,
           xsig={3: 1, 5: 2, 7: 3}, ogate={0: 1, 2: 2, 4: 3}, owin=5, osig={11: 1, 13: 2, 15: 3},
           ggate={0: 1, 2: 2, 4: 3}, gwin=5, dgate={0: 1, 3: 2}, e1gate=None, prewarm=1, gsleep=1)

def R(b, n=4): return f"v[{b}:{b+n-1}]"
def S2(b): return f"s[{b}:{b+1}]"
def DPP(ctl, bank=0xf): return f"{ctl} row_mask:0xf bank_mask:{bank:#x}"
LAM = [4 * (e % 4) + e // 4 for e in range(8)]

class K(A):
    def __init__(a, P):
        super().__init__(); a.P = P; a.ns = 0
    def stamp(a, i):
        if a.P["dev"]: a(f"s_memrealtime s[{STAMP0+2*i}:{STAMP0+2*i+1}]")
    def budget(a, top):
        a(f"s_sub_u32 s{sBUD}, s{sBUD}, 1\ns_cbranch_scc0 {top}\ns_mov_b32 s{sBUD}, 0")
    def gate(a, addr, off, thr, sleep=None, tmp=1):
        top, done = a.lab("gt"), a.lab("gd")
        if sleep is None: sleep = a.P["gsleep"]
        a(f"{top}:\nds_read_b32 v{tmp}, v{addr} offset:{off}\ns_waitcnt lgkmcnt(0)\nv_readfirstlane_b32 s{t0}, v{tmp}\ns_cmp_ge_u32 s{t0}, {thr}\ns_cbranch_scc1 {done}")
        if sleep: a(f"s_sleep {sleep}")
        a.budget(top); a(f"{done}:")
    def sig_add(a, addr, off):
        a(f"s_mov_b64 exec, 1\nds_add_u32 v{addr}, v{vONE} offset:{off}\ns_mov_b64 exec, -1")
    def sadd(a, d, base, off):
        a(f"s_add_u32 s{d}, s{base}, {off}\ns_addc_u32 s{d+1}, s{base+1}, 0")
    def bf(a, v):
        a(f"v_cvt_pk_bf16_f32 v{v}, v{v}, v{v}\nv_lshlrev_b32 v{v}, 16, v{v}")
    def masks(a):
        a(f"""
        v_and_b32 v1, 1, v{vN}
        v_lshlrev_b32 v1, 4, v1
        v_mov_b32 v{vM+3}, 0xffff
        v_lshlrev_b32 v1, v1, v{vM+3}
        v_lshrrev_b32 v{vH2}, 1, v{vN}
        """)
        for d in range(4): a(f"v_cmp_eq_u32 vcc, {d}, v{vH2}\nv_cndmask_b32 v{vM+d}, 0, v1, vcc")
    def consts(a):
        a(f"""
        s_mov_b32 s{sTAG}, 0x07060500
        s_mov_b32 s{sE1}, 0x07060501
        s_mov_b32 s{sE2}, 0x07060502
        s_mov_b32 s{sE3}, 0x07060503
        s_mov_b32 s{sX1}, 0x04000c0c
        s_mov_b32 s{sX2}, 0x0706000c
        s_mov_b32 s{sL2E}, 0x3fb8aa3b
        s_mov_b32 s{sL2E+1}, 0x3fb8aa3b
        s_mov_b32 s{sODD}, 0xaaaaaaaa
        s_mov_b32 s{sODD+1}, 0xaaaaaaaa
        s_mov_b32 s{sVERD}, 0
        v_mov_b32 v{vZ}, 0
        v_mov_b32 v{vONE}, 1
        v_mov_b32 v{vF}, s{sK}
        v_lshlrev_b32 v{vF}, 2, v{vF}
        v_lshlrev_b32 v{vPR}, 4, v{vL}
        """)
    def pwaddr(a, stride):
        a(f"""
        v_and_b32 v1, 1, v{vKB}
        v_lshlrev_b32 v1, 4, v1
        v_lshl_or_b32 v{vPW}, v{vN}, 5, v1
        v_lshrrev_b32 v1, 1, v{vKB}
        v_lshl_or_b32 v{vPW}, v1, 9, v{vPW}
        s_mul_i32 s{t0}, s{sK}, {stride}
        v_add_u32 v{vPW}, s{t0}, v{vPW}
        """)
    def epoch_barrier(a):
        a(f"""
        s_waitcnt lgkmcnt(0)
        s_add_u32 s{sT}, s{sT}, 0x9e3779b9
        s_barrier
        v_mov_b32 v{vT}, s{sT}
        v_and_b32 v{vT8}, 0xff, v{vT}
        """)
    def abuild(a, dst, t, lam, bank=0xf):
        for d in range(4): a(f"v_and_b32_dpp v{dst+d}, v{vH2}, v{vM+d} {DPP(f'row_newbcast:{lam[t]}', bank)}")
    def gemv(a, W, acc, A0, bank=0xf, fill=None):
        fill = list(fill or [])
        a.abuild(A0, 0, LAM, bank)
        for t in range(8):
            if t < 7: a.abuild(A0 + 4 * ((t + 1) & 1), t + 1, LAM, bank)
            for m, w in enumerate(W):
                a(f"v_mfma_f32_16x16x32_bf16 {R(acc+4*m)}, {R(A0+4*(t&1))}, {R(w+4*t)}, {R(acc+4*m) if t else 0}")
                if fill: a(fill.pop(0))
        for f in fill: a(f)
    def lstore(a, ins):
        if not a.P["local"]:
            a(ins + " sc1"); return
        l1, l2 = a.lab("ls"), a.lab("le")
        a(f"s_cmp_eq_u32 s{sVERD}, 1\ns_cbranch_scc1 {l1}\n{ins} sc1\ns_branch {l2}\n{l1}:\n{ins}\n{l2}:")
    def getverd(a, tmp):
        a(f"v_readfirstlane_b32 s{sVERD}, v{tmp}")
    def publish(a, acc, base, cnt, r0, vaddr, sbase):
        skip = a.lab("pub")
        a(f"""
        ds_write_b128 v{vPW}, {R(acc)} offset:{base}
        s_mov_b64 exec, 1
        ds_add_rtn_u32 v1, v{vZ}, v{vONE} offset:{cnt}
        s_mov_b64 exec, -1
        """)
        for w in range(4): a(f"ds_read_b128 {R(r0+4*w)}, v{vPR} offset:{base+1024*w}")
        a(f"""
        ds_read_b32 v{r0+16}, v{vZ} offset:{VERD}
        s_waitcnt lgkmcnt(0)
        v_readfirstlane_b32 s{t0}, v1
        v_pk_add_f32 {R(r0,2)}, {R(r0,2)}, {R(r0+4,2)}
        v_pk_add_f32 {R(r0+8,2)}, {R(r0+8,2)}, {R(r0+12,2)}
        s_cmp_eq_u32 s{t0}, 3
        s_cbranch_scc0 {skip}
        v_readfirstlane_b32 s{sVERD}, v{r0+16}
        v_pk_add_f32 {R(r0+2,2)}, {R(r0+2,2)}, {R(r0+6,2)}
        v_pk_add_f32 {R(r0+10,2)}, {R(r0+10,2)}, {R(r0+14,2)}
        v_pk_add_f32 {R(r0,2)}, {R(r0,2)}, {R(r0+8,2)}
        v_pk_add_f32 {R(r0+2,2)}, {R(r0+2,2)}, {R(r0+10,2)}
        v_perm_b32 v{r0}, v{r0}, v{vT}, s{sTAG}
        s_mov_b32 exec_hi, 0
        """)
        a.lstore(f"global_store_dwordx4 v{vaddr}, {R(r0)}, {S2(sbase)}")
        a(f"s_mov_b32 exec_hi, -1\n{skip}:")
    def tagcheck(a, d, n, tmp):
        if n == 1:
            a(f"v_xor_b32 v{d}, v{d}, v{vT8}\nv_cmp_ne_u32_sdwa vcc, v{d}, v{vZ} src0_sel:BYTE_0 src1_sel:DWORD")
        else:
            for v in range(4): a(f"v_xor_b32 v{d+4*v}, v{d+4*v}, v{vT8}")
            a(f"v_or3_b32 v{tmp}, v{d}, v{d+4}, v{d+8}\nv_or_b32 v{tmp}, v{tmp}, v{d+12}\nv_cmp_ne_u32_sdwa vcc, v{tmp}, v{vZ} src0_sel:BYTE_0 src1_sel:DWORD")
    def poll(a, loads, d, n, tmp=1, first=None, pre=None, sleep=0):
        top, done = a.lab("pl"), a.lab("pd")
        ent = None
        if first:
            ent = a.lab("pe")
            a(loads); a(first); a(f"s_branch {ent}")
        a(f"{top}:")
        if pre: a(pre)
        a(loads)
        if ent: a(f"{ent}:")
        a("s_waitcnt vmcnt(0)")
        a.tagcheck(d, n, tmp)
        a(f"s_cbranch_vccz {done}")
        if sleep: a(f"s_sleep {sleep}")
        a.budget(top); a(f"{done}:")
    def ld4(a, d, vaddr, sbase, step):
        return "\n".join(f"global_load_dwordx4 {R(d+4*v)}, v{vaddr}, {S2(sbase)} offset:{step*v} sc1" for v in range(4))
    def sum4(a, d):
        a(f"""
        v_pk_add_f32 {R(d,2)}, {R(d,2)}, {R(d+4,2)}
        v_pk_add_f32 {R(d+8,2)}, {R(d+8,2)}, {R(d+12,2)}
        v_pk_add_f32 {R(d+2,2)}, {R(d+2,2)}, {R(d+6,2)}
        v_pk_add_f32 {R(d+10,2)}, {R(d+10,2)}, {R(d+14,2)}
        v_pk_add_f32 {R(d,2)}, {R(d,2)}, {R(d+8,2)}
        v_pk_add_f32 {R(d+2,2)}, {R(d+2,2)}, {R(d+10,2)}
        """)
    def redscat(a, jobs):
        for d, r0, r1, s in jobs:
            a(f"v_add_f32_dpp v{r0}, v{d}, v{d} {DPP('row_ror:8', 0x3)}\nv_add_f32_dpp v{r0}, v{d+2}, v{d+2} {DPP('row_ror:8', 0xc)}")
        for d, r0, r1, s in jobs:
            a(f"v_add_f32_dpp v{r1}, v{d+1}, v{d+1} {DPP('row_ror:8', 0x3)}\nv_add_f32_dpp v{r1}, v{d+3}, v{d+3} {DPP('row_ror:8', 0xc)}")
        for d, r0, r1, s in jobs: a(f"v_add_f32_dpp v{s}, v{r0}, v{r0} {DPP('row_shl:4', 0x5)}")
        for d, r0, r1, s in jobs: a(f"v_add_f32_dpp v{s}, v{r1}, v{r1} {DPP('row_shr:4', 0xa)}")
        for d, r0, r1, s in jobs: a(f"v_add_f32_dpp v{s}, v{s}, v{s} {DPP('quad_perm:[2,3,0,1]')}")
    def extract(a, dst, d):
        a(f"v_perm_b32 v{dst}, v{d+3}, v{d+2}, s{sX1}\nv_perm_b32 v{dst}, v{dst}, v{d+1}, s{sX2}")
    def embed(a, d, val):
        a(f"v_perm_b32 v{d}, v{d}, v{vT}, s{sTAG}\nv_perm_b32 v{d+1}, v{d+1}, v{val}, s{sE1}\nv_perm_b32 v{d+2}, v{d+2}, v{val}, s{sE2}\nv_perm_b32 v{d+3}, v{d+3}, v{val}, s{sE3}")
    def rows_all(a, v, t, op):
        a(f"v_mov_b32 v{t}, v{v}\nv_permlane16_swap_b32 v{v}, v{t}\n{op} v{v}, v{v}, v{t}\nv_mov_b32 v{t}, v{v}\nv_permlane32_swap_b32 v{v}, v{t}\n{op} v{v}, v{v}, v{t}")
    def gatheraddr(a, dst, pstride):
        a(f"""
        v_lshrrev_b32 v1, 1, v{vN}
        v_mul_u32_u24 v{dst}, {pstride}, v1
        v_and_b32 v1, 1, v{vN}
        v_lshl_add_u32 v{dst}, v1, 4, v{dst}
        v_lshl_add_u32 v{dst}, v{vKB}, 5, v{dst}
        """)
    def slotaddr(a, dst):
        a(f"v_lshrrev_b32 v1, 3, v{vL}\nv_lshlrev_b32 v{dst}, 12, v1\nv_and_b32 v1, 7, v{vL}\nv_lshl_add_u32 v{dst}, v1, 4, v{dst}")
    def e2a(a, sL, d, w):
        val, wt, mx, tt, acc, al = w, w + 4, w + 8, w + 9, w + 12, w + 10
        a(f"""
        s_lshl_b32 s{t1}, s{sJ}, 17
        s_lshl_b32 s{t2}, s{sL}, 12
        s_add_u32 s{t1}, s{t1}, s{t2}
        s_add_u32 s{t1}, s{t1}, {O2}
        """)
        a.sadd(sC, 26, f"s{t1}")
        a(f"""
        s_lshl_b32 s{t1}, s{sJ}, 5
        s_add_u32 s{t1}, s{t1}, s{sL}
        s_lshl_b32 s{t1}, s{t1}, 7
        s_add_u32 s{t1}, s{t1}, {O3}
        """)
        a.sadd(sD, 26, f"s{t1}")
        a.gate(vZ, AP, 4)
        a("s_setprio 3")
        a.poll(a.ld4(d, vPR, sC, 1024), d, 4)
        for v in range(4): a.extract(val + v, d + 4 * v)
        a(f"v_max3_f32 v{mx}, v{val}, v{val+1}, v{val+2}\nv_max_f32 v{mx}, v{mx}, v{val+3}")
        a(f"v_max_f32_dpp v{mx}, v{mx}, v{mx} {DPP('row_ror:8')}")
        a.rows_all(mx, tt, "v_max_f32")
        a(f"v_mov_b32_dpp v{mx}, v{mx} {DPP('quad_perm:[0,0,2,2]')}")
        for v in range(4): a(f"v_sub_f32_dpp v{wt+v}, v{val+v}, v{mx} {DPP('quad_perm:[0,0,2,2]')}")
        a(f"v_pk_mul_f32 {R(wt,2)}, {R(wt,2)}, {S2(sL2E)}\nv_pk_mul_f32 {R(wt+2,2)}, {R(wt+2,2)}, {S2(sL2E)}")
        for v in range(4): a(f"v_exp_f32 v{wt+v}, v{wt+v}")
        for v in range(4):
            sel = v & 1; wp = R(wt + (v & 2), 2)
            for h in (0, 2):
                if v == 0: a(f"v_pk_mul_f32 {R(acc+h,2)}, {R(d+h,2)}, {wp} op_sel:[0,0] op_sel_hi:[1,0]")
                else: a(f"v_pk_fma_f32 {R(acc+h,2)}, {R(d+4*v+h,2)}, {wp}, {R(acc+h,2)} op_sel:[0,{sel},0] op_sel_hi:[1,{sel},1]")
            a(f"v_mul_f32 v{al}, v{val}, v{wt}" if v == 0 else f"v_fmac_f32 v{al}, v{val+v}, v{wt+v}")
        a(f"""
        v_permlane32_swap_b32 v{acc}, v{acc+2}
        v_permlane32_swap_b32 v{acc+1}, v{acc+3}
        v_add_f32_dpp v{al}, v{al}, v{al} {DPP('row_ror:8')}
        v_add_f32 v{acc}, v{acc}, v{acc+2}
        v_add_f32 v{acc+1}, v{acc+1}, v{acc+3}
        v_mov_b32 v{tt}, v{al}
        v_permlane16_swap_b32 v{acc}, v{acc+1}
        v_permlane16_swap_b32 v{al}, v{tt}
        v_add_f32 v{acc}, v{acc}, v{acc+1}
        v_add_f32 v{al}, v{al}, v{tt}
        v_mov_b32 v{tt}, v{al}
        v_add_f32_dpp v{acc}, v{acc}, v{acc} {DPP('row_ror:8')}
        v_permlane32_swap_b32 v{al}, v{tt}
        v_mov_b32 v{acc+2}, v{acc}
        v_add_f32 v{al}, v{al}, v{tt}
        v_permlane32_swap_b32 v{acc}, v{acc+2}
        v_cndmask_b32 v{al}, v{mx}, v{al}, {S2(sODD)}
        v_permlane16_swap_b32 v{acc}, v{acc+1}
        v_permlane16_swap_b32 v{acc+2}, v{acc+3}
        """)
        a.embed(acc, al)
        a(f"s_mov_b64 exec, 0xff\nglobal_store_dwordx4 v{vPR}, {R(acc)}, {S2(sD)} sc1\ns_mov_b64 exec, -1\ns_setprio 0")
    def hgather(a, sKk, vaddr, vx, d, w, first=None):
        a(f"s_lshl_b32 s{t1}, s{sJ}, 14\ns_lshl_b32 s{t2}, s{sKk}, 12\ns_add_u32 s{t1}, s{t1}, s{t2}\ns_add_u32 s{t1}, s{t1}, {H1}")
        a.sadd(sC, 26, f"s{t1}")
        a.poll(a.ld4(d, vaddr, sC, 1024), d, 4, first=first)
        a("s_setprio 3")
        a.sum4(d)
        a.redscat([(d, w + 1, w + 2, w)])
        a(f"""
        v_cvt_pk_bf16_f32 v{w}, v{w}, v{w}
        v_lshlrev_b32 v{w}, 16, v{w}
        v_add_f32 v{w}, v{w}, v{vx}
        v_cvt_pk_bf16_f32 v{vH2}, v{w}, v{w}
        v_lshlrev_b32 v{w}, 16, v{vH2}
        """)
    def xload(a, dst, sKk):
        a(f"""
        v_and_b32 v1, 1, v{vN}
        v_lshlrev_b32 v1, 3, v1
        v_lshl_add_u32 v1, v{vKB}, 4, v1
        v_lshrrev_b32 v{dst}, 2, v{vN}
        v_lshl_add_u32 v1, v{dst}, 1, v1
        s_lshl_b32 s{t1}, s{sJ}, 8
        s_lshl_b32 s{t2}, s{sKk}, 6
        s_add_u32 s{t1}, s{t1}, s{t2}
        v_add_u32 v1, s{t1}, v1
        global_load_ushort v{dst}, v1, s[4:5]
        """)

def role_x(a):
    P = a.P
    W, AQ, XF, XU, ACC, KF, VF = 16, 48, 80, 88, 104, 108, 124
    vW, vXO, vA0, vA1, vA2, vA3 = 140, 141, 142, 143, 144, 145
    u0, u1, u2, u3, u4, u5 = 146, 147, 148, 149, 150, 151
    ONES = 152
    a(f"""
    L_X:
    v_lshlrev_b32 v{vW}, 16, v{vKB}
    v_lshl_add_u32 v{vW}, v{vN}, 4, v{vW}
    v_lshlrev_b32 v{u0}, 5, v{vL}
    v_and_b32 v1, 7, v{vN}
    v_lshlrev_b32 v1, 1, v1
    v_lshl_add_u32 v{u1}, v{vKB}, 4, v1
    s_and_b32 s{t0}, s{sI}, 7
    s_lshl_b32 s{t0}, s{t0}, 2
    s_add_u32 s{t0}, s{t0}, s{sK}
    s_lshl_b32 s{t1}, s{t0}, 6
    v_add_u32 v{u1}, s{t1}, v{u1}
    s_lshl_b32 s{t0}, s{t0}, 18
    s_lshl_b32 s{t1}, s{sJ}, 10
    s_add_u32 s{t0}, s{t0}, s{t1}
    s_lshr_b32 s{t1}, s{sI}, 3
    s_lshl_b32 s{t1}, s{t1}, 8
    s_add_u32 s{t0}, s{t0}, s{t1}
    s_waitcnt lgkmcnt(0)
    s_load_dword s{sT}, s[26:27], 0
    global_load_dwordx4 {R(XF)}, v{u0}, s[4:5]
    global_load_dwordx4 {R(XF+4)}, v{u0}, s[4:5] offset:16
    global_load_ushort v{vXO}, v{u1}, s[4:5]
    """)
    a.sadd(sA, 10, f"s{t0}")
    for t in range(8):
        a(f"global_load_dwordx4 {R(W+4*t)}, v{vW}, {S2(sA)} nt")
        if t < 7: a(f"v_add_u32 v{vW}, 0x2000, v{vW}")
    a.consts(); a.masks(); a.pwaddr(1024)
    a(f"""
    s_lshl_b32 s{t0}, s{sJ}, 2
    s_lshr_b32 s{t1}, s{sI}, 3
    s_add_u32 s{t0}, s{t0}, s{t1}
    s_lshl_b32 s{t0}, s{t0}, 12
    s_and_b32 s{t1}, s{sI}, 7
    s_lshl_b32 s{t1}, s{t1}, 9
    s_add_u32 s{t0}, s{t0}, s{t1}
    s_add_u32 s{t0}, s{t0}, {Q1}
    """)
    a.sadd(sB, 26, f"s{t0}")
    a.epoch_barrier()
    a.stamp(1)
    a("s_waitcnt vmcnt(8)")
    a.stamp(2)
    for e in range(8): a(f"v_lshlrev_b32 v{XU+2*e}, 16, v{XF+e}\nv_and_b32 v{XU+2*e+1}, 0xffff0000, v{XF+e}")
    def allsum(v, t):
        a(f"v_add_f32 v{v}, v{v}, v{v+1}")
        for c in ("quad_perm:[1,0,3,2]", "quad_perm:[2,3,0,1]", "row_ror:4", "row_ror:8"):
            a(f"v_add_f32_dpp v{v}, v{v}, v{v} {DPP(c)}")
        a.rows_all(v, t, "v_add_f32")
        a(f"v_mul_f32 v{v}, 0x3a800000, v{v}")
    a(f"v_pk_add_f32 {R(u0,2)}, {R(XU,2)}, {R(XU+2,2)}")
    for e in range(2, 8): a(f"v_pk_add_f32 {R(u0,2)}, {R(u0,2)}, {R(XU+2*e,2)}")
    allsum(u0, u4)
    for e in range(8): a(f"v_pk_add_f32 {R(XU+2*e,2)}, {R(XU+2*e,2)}, {R(u0,2)} op_sel_hi:[1,0] neg_lo:[0,1] neg_hi:[0,1]")
    a(f"v_pk_mul_f32 {R(u2,2)}, {R(XU,2)}, {R(XU,2)}")
    for e in range(1, 8): a(f"v_pk_fma_f32 {R(u2,2)}, {R(XU+2*e,2)}, {R(XU+2*e,2)}, {R(u2,2)}")
    allsum(u2, u4)
    a.bf(u0); a.bf(u2)
    a(f"v_add_f32 v{u2}, 0x3727c5ac, v{u2}"); a.bf(u2)
    a(f"v_sqrt_f32 v{u2}, v{u2}"); a.bf(u2)
    a(f"v_rcp_f32 v{u3}, v{u2}\nv_lshlrev_b32 v{vXO}, 16, v{vXO}\nv_sub_f32 v{vXO}, v{vXO}, v{u0}"); a.bf(vXO)
    a(f"v_mul_f32 v{u4}, v{vXO}, v{u3}\nv_fma_f32 v{u5}, -v{u4}, v{u2}, v{vXO}\nv_fma_f32 v{u4}, v{u5}, v{u3}, v{u4}\nv_cvt_pk_bf16_f32 v{vH2}, v{u4}, v{u4}")
    for t in range(8): a.abuild(AQ + 4 * t, t, list(range(8)))
    a.stamp(3)
    for t in range(8):
        a(f"s_waitcnt vmcnt({7-t})")
        a(f"v_mfma_f32_16x16x32_bf16 {R(ACC)}, {R(AQ+4*t)}, {R(W+4*t)}, {R(ACC) if t else 0}")
        if t in P["xsig"]: a.sig_add(vF, PX)
    a.stamp(4)
    a.publish(ACC, PQ, CQ, AQ, vPR, sB)
    a.stamp(5)
    a(f"""
    s_lshl_b32 s{t0}, s{sG}, 12
    s_lshl_b32 s{t1}, s{sK}, 10
    s_add_u32 s{t0}, s{t0}, s{t1}
    s_add_u32 s{t0}, s{t0}, {Q2}
    """)
    a.sadd(sA, 26, f"s{t0}")
    a(f"s_lshl_b32 s{t0}, s{sJ}, 17\ns_add_u32 s{t0}, s{t0}, {O2}")
    a.sadd(sB, 26, f"s{t0}")
    vQW, vQR, vSW, vVA, vOW, vOR, vO2 = XU, XU + 1, XU + 2, XU + 3, XU + 4, XU + 5, XU + 6
    a(f"""
    v_xor_b32 v1, v{vKB}, v{vN}
    v_lshlrev_b32 v1, 4, v1
    v_lshl_add_u32 v{vA0}, v{vN}, 8, v1
    s_lshl_b32 s{t0}, s{sK}, 12
    v_add_u32 v{vA0}, s{t0}, v{vA0}
    v_xor_b32 v{vA1}, 64, v{vA0}
    v_xor_b32 v{vA2}, 0x80, v{vA0}
    v_xor_b32 v{vA3}, 0xc0, v{vA0}
    v_lshrrev_b32 v1, 5, v{vL}
    v_mul_u32_u24 v{vQW}, 288, v1
    v_and_b32 v1, 31, v{vL}
    v_lshl_add_u32 v{vQW}, v1, 3, v{vQW}
    s_mul_i32 s{t0}, s{sK}, 576
    v_add_u32 v{vQW}, s{t0}, v{vQW}
    v_and_b32 v{u0}, 7, v{vN}
    v_mul_u32_u24 v{vQR}, 288, v{u0}
    v_lshl_add_u32 v{vQR}, v{vKB}, 4, v{vQR}
    v_lshrrev_b32 v1, 1, v{vKB}
    v_lshlrev_b32 v{vSW}, 8, v1
    v_lshl_add_u32 v{vSW}, v{u0}, 4, v{vSW}
    v_and_b32 v1, 1, v{vKB}
    v_lshl_add_u32 v{vSW}, v1, 3, v{vSW}
    s_and_b32 s{t0}, s{sK}, 1
    s_lshl_b32 s{t0}, s{t0}, 9
    s_lshr_b32 s{t1}, s{sK}, 1
    s_lshl_b32 s{t1}, s{t1}, 7
    s_add_u32 s{t0}, s{t0}, s{t1}
    v_add_u32 v{vSW}, s{t0}, v{vSW}
    v_lshrrev_b32 v{u1}, 2, v{vN}
    v_lshl_add_u32 v{u2}, v1, 2, v{u1}
    v_lshlrev_b32 v{u2}, 1, v{u2}
    v_and_b32 v{u3}, 3, v{vN}
    v_lshrrev_b32 v{u4}, 1, v{u3}
    s_lshl_b32 s{t0}, s{sK}, 2
    v_add_u32 v{u4}, s{t0}, v{u4}
    v_xor_b32 v{u4}, v{u4}, v{u2}
    v_lshlrev_b32 v{u4}, 4, v{u4}
    v_and_b32 v{u3}, 1, v{u3}
    v_lshl_add_u32 v{u4}, v{u3}, 3, v{u4}
    v_lshl_add_u32 v{u1}, v{vKB}, 3, v{u1}
    v_lshl_add_u32 v{vVA}, v{u1}, 8, v{u4}
    v_xor_b32 v{vVA+4}, 32, v{vVA}
    v_mul_u32_u24 v{vOW}, 144, v{u0}
    v_lshrrev_b32 v1, 3, v{vN}
    v_lshl_add_u32 v1, v1, 2, v{vKB}
    v_lshl_add_u32 v{vOW}, v1, 4, v{vOW}
    s_mul_i32 s{t0}, s{sK}, 1152
    v_add_u32 v{vOW}, s{t0}, v{vOW}
    v_lshrrev_b32 v{u1}, 3, v{vL}
    v_and_b32 v{u2}, 7, v{vL}
    v_mul_u32_u24 v{vOR}, 144, v{u1}
    v_lshl_add_u32 v{vOR}, v{u2}, 4, v{vOR}
    v_add_u32 v{vOR}, s{t0}, v{vOR}
    v_lshlrev_b32 v{u1}, 2, v{u1}
    v_add_u32 v{u1}, s{sK}, v{u1}
    v_add_u32 v1, s{sI}, v{u1}
    v_and_b32 v1, 31, v1
    v_lshlrev_b32 v1, 7, v1
    v_lshl_add_u32 v{vO2}, v{u1}, 12, v1
    v_lshl_add_u32 v{vO2}, v{u2}, 4, v{vO2}
    s_mov_b32 s{sN8}, 0x00ff00ff
    s_mov_b32 s{sN8+1}, 0x00ff00ff
    s_mov_b32 s{sSC}, 0x3db504f3
    s_mov_b32 s{sSC+1}, 0x3db504f3
    s_mov_b32 s{sB1}, 0xffff0000
    s_mov_b32 s{sB1+1}, 0xffff0000
    """)
    for d in range(4): a(f"v_mov_b32 v{ONES+d}, 0x3f803f80")
    a.gate(vF, KR, 1)
    for s, va in enumerate((vA0, vA1, vA2, vA3)): a(f"ds_read_b128 {R(KF+4*s)}, v{va} offset:{KL}")
    a.stamp(6)
    QD, QF = AQ, AQ + 4
    top, done = a.lab("q2"), a.lab("q2d")
    a(f"""
    {top}:
    global_load_dwordx4 {R(QD)}, v{vPR}, {S2(sA)} sc1
    s_waitcnt vmcnt(0)
    v_cmp_ne_u32 vcc, v{QD+2}, v{vT}
    s_cbranch_vccz {done}
    """)
    a.budget(top)
    a(f"{done}:\ns_setprio 3\nds_write_b64 v{vQW}, {R(QD,2)} offset:{QL}")
    a.sig_add(vZ, QC)
    a.stamp(7)
    top, done = a.lab("qs"), a.lab("qsd")
    a(f"{top}:\nds_read_b32 v1, v{vZ} offset:{QC}")
    for s in range(4): a(f"ds_read_b128 {R(QF+4*s)}, v{vQR} offset:{QL+64*s}")
    a(f"s_waitcnt lgkmcnt(0)\nv_readfirstlane_b32 s{t0}, v1\ns_cmp_eq_u32 s{t0}, 4\ns_cbranch_scc1 {done}")
    a.budget(top); a(f"{done}:")
    for s in range(4): a(f"v_mfma_f32_16x16x32_bf16 {R(ACC)}, {R(KF+4*s)}, {R(QF+4*s)}, {R(ACC) if s else 0}")
    a(f"""
    v_cvt_pk_bf16_f32 v{u0}, v{ACC}, v{ACC+1}
    v_cvt_pk_bf16_f32 v{u1}, v{ACC+2}, v{ACC+3}
    v_lshlrev_b32 v{ACC}, 16, v{u0}
    v_and_b32 v{ACC+1}, 0xffff0000, v{u0}
    v_lshlrev_b32 v{ACC+2}, 16, v{u1}
    v_and_b32 v{ACC+3}, 0xffff0000, v{u1}
    v_pk_mul_f32 {R(ACC,2)}, {R(ACC,2)}, {S2(sSC)}
    v_pk_mul_f32 {R(ACC+2,2)}, {R(ACC+2,2)}, {S2(sSC)}
    v_cvt_pk_bf16_f32 v{u0}, v{ACC}, v{ACC+1}
    v_cvt_pk_bf16_f32 v{u1}, v{ACC+2}, v{ACC+3}
    s_mov_b64 exec, {S2(sN8)}
    ds_write_b64 v{vSW}, {R(u0,2)} offset:{SL}
    """)
    a.sig_add(vZ, SC)
    SR, F, D = AQ, AQ + 4, AQ + 12
    top, done = a.lab("ss"), a.lab("ssd")
    a(f"{top}:\nds_read_b32 v1, v{vZ} offset:{SC}\nds_read_b128 {R(SR)}, v{vPR} offset:{SL}")
    a(f"s_waitcnt lgkmcnt(0)\nv_readfirstlane_b32 s{t0}, v1\ns_cmp_eq_u32 s{t0}, 8\ns_cbranch_scc1 {done}")
    a.budget(top); a(f"{done}:")
    for b in range(2):
        for H in range(2):
            for z in range(2):
                a(f"ds_read_b64_tr_b16 {R(VF+8*b+4*H+2*z,2)}, v{vVA+4*b} offset:{VL+8192*H+1024*z}")
    a.stamp(8)
    for e in range(4): a(f"v_lshlrev_b32 v{F+2*e}, 16, v{SR+e}\nv_and_b32 v{F+2*e+1}, 0xffff0000, v{SR+e}")
    a(f"""
    v_max3_f32 v{u0}, v{F}, v{F+1}, v{F+2}
    v_max3_f32 v{u1}, v{F+3}, v{F+4}, v{F+5}
    v_max3_f32 v{u0}, v{u0}, v{F+6}, v{F+7}
    v_max_f32 v{u0}, v{u0}, v{u1}
    v_max_f32_dpp v{u0}, v{u0}, v{u0} {DPP('row_ror:8')}
    """)
    a.rows_all(u0, u1, "v_max_f32")
    for e in range(4): a(f"v_pk_add_f32 {R(F+2*e,2)}, {R(F+2*e,2)}, {R(u0,2)} op_sel_hi:[1,0] neg_lo:[0,1] neg_hi:[0,1]")
    for e in range(4): a(f"v_pk_mul_f32 {R(F+2*e,2)}, {R(F+2*e,2)}, {S2(sL2E)}")
    for e in range(8): a(f"v_exp_f32 v{F+e}, v{F+e}")
    for e in range(4): a(f"v_cvt_pk_bf16_f32 v{SR+e}, v{F+2*e}, v{F+2*e+1}")
    a(f"ds_read_b32 v{u3}, v{vZ} offset:{VERD}\ns_waitcnt lgkmcnt(0)")
    a(f"v_mfma_f32_16x16x32_bf16 {R(ACC)}, {R(ONES)}, {R(SR)}, 0")
    for b in range(2):
        for H in range(2): a(f"v_mfma_f32_16x16x32_bf16 {R(D+8*b+4*H)}, {R(VF+8*b+4*H)}, {R(SR)}, 0")
    a.getverd(u3)
    a(f"v_add_f32_dpp v{u2}, v{ACC}, v{ACC} {DPP('row_ror:8')}\nv_cndmask_b32 v{u2}, v{u0}, v{u2}, {S2(sB1)}")
    for r in range(4): a(f"v_add_f32_dpp v{F+r}, v{D+4+r}, v{D+r} {DPP('row_ror:8', 0x3)}")
    for r in range(4): a(f"v_add_f32_dpp v{F+r}, v{D+8+r}, v{D+12+r} {DPP('row_ror:8', 0xc)}")
    a.embed(F, u2)
    a(f"ds_write_b128 v{vOW}, {R(F)} offset:{OT}\nds_read_b128 {R(F+4)}, v{vOR} offset:{OT}\ns_waitcnt lgkmcnt(0)")
    a.lstore(f"global_store_dwordx4 v{vO2}, {R(F+4)}, {S2(sB)}")
    a.sig_add(vZ, AP)
    a("s_setprio 0")
    a.stamp(9)
    a(f"s_cmp_ge_u32 s{sI}, 28\ns_cbranch_scc1 L_out")
    GD, vGA, vFA, vINV = AQ, vA0, vA1, vA2
    a(f"""
    s_lshl_b32 s{t0}, s{sI}, 2
    s_add_u32 s{t0}, s{t0}, s{sK}
    s_lshl_b32 s{t0}, s{t0}, 16
    s_lshl_b32 s{t1}, s{sJ}, 8
    s_add_u32 s{t0}, s{t0}, s{t1}
    """)
    a.sadd(sA, 20, f"s{t0}")
    a(f"s_mul_i32 s{t0}, s{sI}, {8*GUS}\ns_lshl_b32 s{t1}, s{sK}, 9\ns_add_u32 s{t0}, s{t0}, s{t1}\ns_add_u32 s{t0}, s{t0}, {GU}")
    a.sadd(sC, 26, f"s{t0}")
    a(f"s_lshl_b32 s{t0}, s{sJ}, 14\ns_lshl_b32 s{t1}, s{sI}, 7\ns_add_u32 s{t0}, s{t0}, s{t1}\ns_add_u32 s{t0}, s{t0}, {F1}")
    a.sadd(sB, 26, f"s{t0}")
    a(f"v_lshlrev_b32 v{vW}, 14, v{vKB}\nv_lshl_add_u32 v{vW}, v{vN}, 4, v{vW}\nv_mov_b32 v{vINV}, 0x3a800000\ns_mov_b32 s{sGC}, 0x3d372713")
    a.gatheraddr(vGA, GUS); a.slotaddr(vFA)
    for t in range(8):
        if t in P["dgate"]: a.gate(vF, PG, P["dgate"][t])
        if t == 0: a.stamp(10)
        a(f"global_load_dwordx4 {R(W+4*t)}, v{vW}, {S2(sA)} offset:{2048*(t&1)} nt")
        if t & 1 and t < 7: a(f"v_add_u32 v{vW}, 0x1000, v{vW}")
    a.stamp(11)
    a.poll(a.ld4(GD, vGA, sC, 128), GD, 4)
    a("s_setprio 3")
    a.stamp(12)
    w = XU
    a.extract(u0, GD)
    a(f"v_add_f32_dpp v{u0}, v{u0}, v{u0} {DPP('row_ror:8')}")
    a.redscat([(GD + 4 * c, w + 4 + 2 * c, w + 5 + 2 * c, w + c) for c in range(4)][:2])
    a(f"v_add_f32_dpp v{u0}, v{u0}, v{u0} {DPP('row_ror:4')}")
    a.redscat([(GD + 4 * c, w + 4 + 2 * c, w + 5 + 2 * c, w + c) for c in range(4)][2:])
    a(f"""
    v_add_f32_dpp v{u0}, v{u0}, v{u0} {DPP('quad_perm:[2,3,0,1]')}
    v_mul_f32_dpp v{u1}, v{u0}, v{vINV} {DPP('quad_perm:[0,0,2,2]')}
    v_mul_f32_dpp v{u2}, v{u0}, v{vINV} {DPP('quad_perm:[1,1,3,3]')}
    v_fma_f32 v{u2}, -v{u1}, v{u1}, v{u2}
    v_max_f32 v{u2}, 0, v{u2}
    v_add_f32 v{u2}, 0x3727c5ac, v{u2}
    v_rsq_f32 v{u2}, v{u2}
    v_fma_f32 v{w}, -v{u1}, v{w+1}, v{w}
    v_fma_f32 v{w+2}, -v{u1}, v{w+3}, v{w+2}
    v_mul_f32 v{w}, v{w}, v{u2}
    v_mul_f32 v{w+2}, v{w+2}, v{u2}
    v_cvt_pk_bf16_f32 v{u3}, v{w}, v{w+2}
    v_lshlrev_b32 v{w}, 16, v{u3}
    v_mul_f32 v{u0}, v{w}, v{w}
    v_mul_f32 v{u1}, 0xc0135761, v{w}
    v_fma_f32 v{u0}, v{u0}, s{sGC}, 1.0
    v_mul_f32 v{u0}, v{u0}, v{u1}
    v_exp_f32 v{u0}, v{u0}
    v_and_b32 v{u3}, 0xffff0000, v{u3}
    v_add_f32 v{u0}, 1.0, v{u0}
    v_rcp_f32 v{u0}, v{u0}
    v_mul_f32 v{u0}, v{u0}, v{w}
    v_cvt_pk_bf16_f32 v{u0}, v{u0}, v{u0}
    v_lshlrev_b32 v{u0}, 16, v{u0}
    v_mul_f32 v{u0}, v{u0}, v{u3}
    v_cvt_pk_bf16_f32 v{vH2}, v{u0}, v{u0}
    """)
    a.gemv([W], ACC, KF)
    a.stamp(13)
    a.publish(ACC, PD, CD, AQ, vFA, sB)
    a.stamp(14)
    a("s_branch L_out")

def role_o(a):
    P = a.P
    W, ACC, A0, D, WK = 16, 48, 52, 60, 80
    vK0, vV0, vW, vO3, vHA = 100, 104, 106, 107, 108
    u0, u1, u2, u3, u4, u5 = 110, 111, 112, 113, 114, 115
    a(f"""
    L_O:
    v_xor_b32 v1, v{vKB}, v{vN}
    v_lshlrev_b32 v1, 4, v1
    v_lshl_add_u32 v{vK0}, v{vKB}, 8, v1
    v_xor_b32 v{vK0+1}, 64, v{vK0}
    v_xor_b32 v{vK0+2}, 0x80, v{vK0}
    v_xor_b32 v{vK0+3}, 0xc0, v{vK0}
    v_lshlrev_b32 v1, 1, v{vKB}
    v_xor_b32 v1, v1, v{vN}
    v_lshlrev_b32 v1, 4, v1
    v_lshl_add_u32 v{vV0}, v{vKB}, 8, v1
    v_xor_b32 v{vV0+1}, 0x80, v{vV0}
    v_lshlrev_b32 v{vW}, 14, v{vKB}
    v_lshl_add_u32 v{vW}, v{vN}, 4, v{vW}
    s_waitcnt lgkmcnt(0)
    s_load_dword s{sT}, s[26:27], 0
    s_lshl_b32 s{t0}, s{sG}, 24
    s_and_b32 s{t1}, s{sJ}, 1
    s_lshl_b32 s{t1}, s{t1}, 5
    s_add_u32 s{t1}, s{t1}, s{sI}
    s_lshl_b32 s{t1}, s{t1}, 14
    s_add_u32 s{t0}, s{t0}, s{t1}
    s_lshl_b32 s{t1}, s{sK}, 12
    s_add_u32 s{t0}, s{t0}, s{t1}
    s_add_u32 s{t0}, s{t0}, {KOFF}
    """)
    a.sadd(sA, 6, f"s{t0}"); a.sadd(sB, 8, f"s{t0}")
    a(f"""
    s_lshl_b32 s{t0}, s{sI}, 2
    s_add_u32 s{t0}, s{t0}, s{sK}
    s_lshl_b32 s{t0}, s{t0}, 16
    s_lshl_b32 s{t1}, s{sJ}, 8
    s_add_u32 s{t0}, s{t0}, s{t1}
    """)
    a.sadd(sC, 12, f"s{t0}")
    a.consts(); a.masks(); a.pwaddr(1024); a.slotaddr(vHA)
    a(f"""
    v_lshrrev_b32 v1, 1, v{vN}
    v_and_b32 v1, 1, v1
    v_lshlrev_b32 v{vO3}, 12, v1
    v_and_b32 v1, 1, v{vN}
    v_lshl_add_u32 v{vO3}, v1, 4, v{vO3}
    v_lshl_add_u32 v{vO3}, v{vKB}, 5, v{vO3}
    s_mov_b32 s{sB2}, 0xf0f0f0f0
    s_mov_b32 s{sB2+1}, 0xf0f0f0f0
    s_mov_b32 s{sB3}, 0xff00ff00
    s_mov_b32 s{sB3+1}, 0xff00ff00
    s_lshl_b32 s{t3}, s{sK}, 12
    s_add_u32 m0, s{t3}, {KL}
    """)
    a.epoch_barrier()
    a.stamp(1)
    win = P["owin"]; landed = -1
    def land(n, issued):
        nonlocal landed
        if n > landed:
            a(f"s_waitcnt vmcnt({issued-1-n})")
            for x in range(landed + 1, n + 1):
                if x == 3: a.sig_add(vF, KR); a.stamp(3)
                if x == 7: a.sig_add(vZ, SC); a.stamp(4)
                if x in P["osig"]: a.sig_add(vF, PO)
            landed = n
    for m in range(16):
        if m in P["ogate"]: a.gate(vF, PX, P["ogate"][m])
        if P["e1gate"] is not None and m == P["e1gate"]:
            l = a.lab("e1g"); a(f"s_cmp_lt_u32 s{sI}, 28\ns_cbranch_scc1 {l}"); a.gate(vZ, E1A, 1); a(f"{l}:")
        if m - win >= 0: land(m - win, m)
        if m == 0: a.stamp(2)
        if m < 4: a(f"global_load_lds_dwordx4 v{vK0+m}, {S2(sA)} offset:{1024*m} nt")
        elif m < 8:
            if m == 4: a(f"s_add_u32 m0, s{t3}, {VL}")
            a(f"global_load_lds_dwordx4 v{vV0+((m-4)>>1)}, {S2(sB)} offset:{1024*(m-4)} nt")
        else:
            t = m - 8
            a(f"global_load_dwordx4 {R(W+4*t)}, v{vW}, {S2(sC)} offset:{2048*(t&1)} nt")
            if t & 1 and t < 7: a(f"v_add_u32 v{vW}, 0x1000, v{vW}")
    for x in sorted(set([3, 7] + list(P["osig"]) + [15])): land(x, 16)
    a.stamp(5)
    l = a.lab("oe")
    a(f"s_cmp_lt_u32 s{sI}, 28\ns_cbranch_scc1 {l}")
    a(f"s_sub_u32 s{t3}, s{sI}, 28\ns_lshl_b32 s{t3}, s{t3}, 2\ns_add_u32 s{t3}, s{t3}, s{sK}\ns_lshl_b32 s{t3}, s{t3}, 1\ns_add_u32 s{t3}, s{t3}, 1")
    a.e2a(t3, D, WK)
    a(f"{l}:")
    a.stamp(6)
    a(f"""
    s_lshr_b32 s{t0}, s{sI}, 3
    s_lshl_b32 s{t0}, s{t0}, 6
    s_and_b32 s{t1}, s{sI}, 7
    s_lshl_b32 s{t1}, s{t1}, 2
    s_add_u32 s{t0}, s{t0}, s{t1}
    s_add_u32 s{t0}, s{t0}, s{sK}
    s_lshl_b32 s{t0}, s{t0}, 7
    s_add_u32 s{t0}, s{t0}, {O3}
    """)
    a.sadd(sA, 26, f"s{t0}")
    a(f"s_lshl_b32 s{t0}, s{sJ}, 14\ns_lshl_b32 s{t1}, s{sI}, 7\ns_add_u32 s{t0}, s{t0}, s{t1}\ns_add_u32 s{t0}, s{t0}, {H1}")
    a.sadd(sB, 26, f"s{t0}")
    a.gate(vZ, AP, 4)
    a.poll(f"global_load_dwordx4 {R(D)}, v{vO3}, {S2(sA)} sc1", D, 1)
    a("s_setprio 3")
    a.stamp(7)
    a.extract(u0, D)
    a(f"""
    v_cndmask_b32 v{u4}, v{D}, v{D+1}, {S2(sB2)}
    v_cndmask_b32 v{u5}, v{D+2}, v{D+3}, {S2(sB2)}
    v_mov_b32_dpp v{u1}, v{u0} {DPP('quad_perm:[0,0,2,2]')}
    v_cndmask_b32 v{u4}, v{u4}, v{u5}, {S2(sB3)}
    v_max_f32_dpp v{u2}, v{u0}, v{u1} {DPP('quad_perm:[2,2,0,0]')}
    v_sub_f32 v{u1}, v{u1}, v{u2}
    v_mul_f32 v{u1}, s{sL2E}, v{u1}
    v_exp_f32 v{u1}, v{u1}
    v_mul_f32 v{u4}, v{u4}, v{u1}
    v_mul_f32_dpp v{u0}, v{u0}, v{u1} {DPP('quad_perm:[1,1,3,3]')}
    v_add_f32_dpp v{u4}, v{u4}, v{u4} {DPP('quad_perm:[2,3,0,1]')}
    v_add_f32_dpp v{u0}, v{u0}, v{u0} {DPP('quad_perm:[2,3,0,1]')}
    v_rcp_f32 v{u0}, v{u0}
    v_mul_f32 v{u4}, v{u4}, v{u0}
    v_cvt_pk_bf16_f32 v{vH2}, v{u4}, v{u4}
    """)
    a.gemv([W], ACC, A0)
    a.stamp(8)
    a.publish(ACC, POo, CO, D, vHA, sB)
    a.stamp(9)
    a("s_branch L_out")

def role_g(a):
    P = a.P
    WG, WU, ACC, A0, D, WK = 16, 48, 80, 88, 96, 128
    vW, vX, vGA, vSA, vST = 146, 147, 148, 149, 150
    u0, u1, u2, u3 = 152, 153, 154, 155
    a(f"""
    L_G:
    v_mov_b32 v1, 0
    v_lshlrev_b32 v{u0}, 2, v{vL}
    ds_write_b32 v{u0}, v1
    s_waitcnt lgkmcnt(0)
    s_load_dword s{sT}, s[26:27], 0
    """)
    a.consts(); a.gatheraddr(vGA, 128)
    a.epoch_barrier()
    a.stamp(1)
    if P["local"]:
        l = a.lab("nv"); top, done = a.lab("xt"), a.lab("xtd")
        a(f"""
        s_cmp_eq_u32 s{sK}, 3
        s_cbranch_scc0 {l}
        s_getreg_b32 s{t0}, hwreg(HW_REG_XCC_ID, 0, 4)
        s_add_u32 s{t0}, s{t0}, s{sT}
        s_lshl_b32 s{t1}, s{sJ}, 7
        s_add_u32 s{t1}, s{t1}, {XT}
        """)
        a.sadd(sA, 26, f"s{t1}")
        a(f"""
        s_lshl_b32 s{t1}, s{sI}, 2
        v_mov_b32 v{u0}, s{t1}
        v_mov_b32 v{u1}, s{t0}
        s_mov_b64 exec, 1
        global_store_dword v{u0}, v{u1}, {S2(sA)} sc1
        s_mov_b64 exec, -1
        v_and_b32 v{u0}, 31, v{vL}
        v_lshlrev_b32 v{u0}, 2, v{u0}
        {top}:
        global_load_dword v{u2}, v{u0}, {S2(sA)} sc1
        s_waitcnt vmcnt(0)
        v_sub_u32 v{u3}, v{u2}, v{vT}
        v_cmp_le_u32 vcc, 16, v{u3}
        s_cbranch_vccz {done}
        s_sleep 2
        """)
        a.budget(top)
        a(f"""
        {done}:
        v_cmp_ne_u32 vcc, v{u2}, v{u1}
        s_cmp_eq_u64 vcc, 0
        s_cselect_b32 s{t0}, 1, 2
        v_mov_b32 v{u2}, s{t0}
        ds_write_b32 v{vZ}, v{u2} offset:{VERD}
        """)
        a.stamp(2)
        a(f"{l}:")
    a(f"s_cmp_ge_u32 s{sI}, 28\ns_cbranch_scc1 L_R")
    a.xload(vX, sK)
    a(f"""
    s_lshl_b32 s{t0}, s{sJ}, 2
    s_add_u32 s{t0}, s{t0}, s{sK}
    s_mul_i32 s{t0}, s{t0}, {32*7168}
    s_lshl_b32 s{t1}, s{sI}, 8
    s_add_u32 s{t0}, s{t0}, s{t1}
    v_mul_u32_u24 v{vW}, {8*7168}, v{vKB}
    v_lshl_add_u32 v{vW}, v{vN}, 4, v{vW}
    """)
    a.sadd(sA, 16, f"s{t0}"); a.sadd(sB, 18, f"s{t0}")
    a(f"s_lshl_b32 s{t0}, s{sI}, 3\ns_add_u32 s{t0}, s{t0}, s{sJ}\ns_mul_i32 s{t0}, s{t0}, {GUS}\ns_add_u32 s{t0}, s{t0}, {GU}")
    a.sadd(sD, 26, f"s{t0}")
    a.masks(); a.pwaddr(2048)
    a(f"""
    v_and_b32 v1, 1, v{vN}
    v_lshlrev_b32 v1, 4, v1
    v_mov_b32 v{u0}, 0x3f80
    v_lshlrev_b32 v{u0}, v1, v{u0}
    v_lshrrev_b32 v1, 1, v{vN}
    """)
    for d in range(4): a(f"v_cmp_eq_u32 vcc, {4+d}, v1\nv_cndmask_b32 v{A0+d}, 0, v{u0}, vcc\nv_mov_b32 v{A0+4+d}, v{A0+d}")
    a(f"""
    v_and_b32 v1, 31, v{vL}
    v_lshrrev_b32 v1, 3, v1
    v_lshlrev_b32 v{vSA}, 9, v1
    v_lshrrev_b32 v1, 5, v{vL}
    v_lshl_add_u32 v{vSA}, v1, 7, v{vSA}
    v_and_b32 v1, 7, v{vL}
    v_lshl_add_u32 v{vSA}, v1, 4, v{vSA}
    v_and_b32 v1, 2, v{vN}
    v_lshl_add_u32 v{vST}, v1, 3, v{vF}
    v_and_b32 v1, 1, v{vN}
    v_lshlrev_b32 v{vST+1}, 4, v1
    s_mov_b32 s{sB1}, 0xcccccccc
    s_mov_b32 s{sB1+1}, 0xcccccccc
    s_waitcnt vmcnt(0)
    v_lshlrev_b32 v{vX}, 16, v{vX}
    """)
    win = P["gwin"]
    for m in range(16):
        if m in P["ggate"]: a.gate(vF, PO, P["ggate"][m])
        if m - win >= 0: a(f"s_waitcnt vmcnt({win-1})")
        if m == 0: a.stamp(3)
        t = m >> 1
        a(f"global_load_dwordx4 {R((WU if m & 1 else WG)+4*t)}, v{vW}, {S2(sB if m & 1 else sA)} nt")
        if m & 1 and t < 7: a(f"v_add_u32 v{vW}, 7168, v{vW}")
    a.stamp(4)
    sig = f"s_mov_b64 exec, 1\nds_add_u32 v{vF}, v{vONE} offset:{PG}\ns_mov_b64 exec, -1"
    a.hgather(sK, vGA, vX, D, WK, first=sig + "\ns_waitcnt vmcnt(4)\n" + sig)
    a.stamp(5)
    hv, z, zt = WK, WK + 1, WK + 2
    fill = [f"v_cndmask_b32 v{z}, 1.0, v{hv}, {S2(sB1)}", f"v_mul_f32 v{z}, v{z}, v{hv}"]
    fill += [f"v_add_f32_dpp v{z}, v{z}, v{z} {DPP(c)}" for c in ("quad_perm:[1,0,3,2]", "row_ror:4", "row_ror:8")]
    fill += [f"v_mov_b32 v{zt}, v{z}", f"v_permlane16_swap_b32 v{z}, v{zt}", f"v_add_f32 v{z}, v{z}, v{zt}",
             f"v_mov_b32 v{zt}, v{z}", f"v_permlane32_swap_b32 v{z}, v{zt}", f"v_add_f32 v{z}, v{z}, v{zt}",
             f"s_mov_b64 exec, 5\nds_write_b32 v{vST}, v{z} offset:{ST}\ns_mov_b64 exec, -1"]
    a.gemv([WG, WU], ACC, A0, bank=0x3, fill=fill)
    a.stamp(6)
    skip = a.lab("pub")
    a(f"""
    ds_write_b128 v{vPW}, {R(ACC)} offset:{PGU}
    ds_write_b128 v{vPW}, {R(ACC+4)} offset:{PGU+1024}
    s_mov_b64 exec, 1
    ds_add_rtn_u32 v1, v{vZ}, v{vONE} offset:{CG}
    s_mov_b64 exec, -1
    ds_read_b128 {R(WK+4)}, v{vST+1} offset:{ST}
    """)
    for m in range(2):
        for w in range(4): a(f"ds_read_b128 {R(D+16*m+4*w)}, v{vPR} offset:{PGU+2048*w+1024*m}")
    a(f"""
    s_waitcnt lgkmcnt(0)
    v_readfirstlane_b32 s{t0}, v1
    v_pk_add_f32 {R(WK+4,2)}, {R(WK+4,2)}, {R(WK+6,2)}
    s_cmp_eq_u32 s{t0}, 3
    s_cbranch_scc0 {skip}
    v_add_f32 v{WK+4}, v{WK+4}, v{WK+5}
    """)
    a.sum4(D)
    a.embed(D, WK + 4)
    a(f"global_store_dwordx4 v{vSA}, {R(D)}, {S2(sD)} sc1")
    a.sum4(D + 16)
    a(f"v_perm_b32 v{D+16}, v{D+16}, v{vT}, s{sTAG}\nglobal_store_dwordx4 v{vSA}, {R(D+16)}, {S2(sD)} offset:256 sc1\n{skip}:")
    a.stamp(7)
    a("s_branch L_out")
    sR = sSET
    a(f"L_R:\n; @reset\ns_sub_u32 s{sR}, s{sI}, 28")
    l1, l2, l3 = a.lab("r1"), a.lab("r2"), a.lab("r3")
    a(f"s_cmp_eq_u32 s{sK}, 0\ns_cbranch_scc0 {l1}")
    a(f"""
    s_lshl_b32 s{t0}, s{sJ}, 2
    s_add_u32 s{t0}, s{t0}, s{sR}
    s_lshl_b32 s{t1}, s{t0}, 12
    s_add_u32 s{t1}, s{t1}, {Q1}
    """)
    a.sadd(sA, 26, f"s{t1}")
    a(f"s_lshl_b32 s{t1}, s{t0}, 9\ns_add_u32 s{t1}, s{t1}, {Q2}")
    a.sadd(sB, 26, f"s{t1}")
    a("s_setprio 3")
    a.poll(a.ld4(D, vPR, sA, 1024), D, 4)
    a.stamp(3)
    a.sum4(D)
    a(f"""
    v_permlane32_swap_b32 v{D}, v{D+2}
    v_permlane32_swap_b32 v{D+1}, v{D+3}
    v_pk_add_f32 {R(D,2)}, {R(D,2)}, {R(D+2,2)}
    v_mov_b32 v{D+6}, v{vT}
    v_mov_b32 v{D+7}, v{vT}
    v_cvt_pk_bf16_f32 v{D+4}, v{D}, v{D+1}
    v_mov_b32 v{D+5}, v{D+4}
    v_permlane32_swap_b32 v{D+4}, v{D+5}
    s_mov_b32 exec_hi, 0
    global_store_dwordx4 v{vPR}, {R(D+4)}, {S2(sB)} sc1
    s_mov_b32 exec_hi, -1
    s_setprio 0
    """)
    a.sig_add(vZ, E1A)
    a.stamp(4)
    a(f"s_branch {l3}\n{l1}:\n; @reset")
    a.xload(vX, sR)
    if P["prewarm"]:
        a(f"s_cmp_eq_u32 s{sK}, 1\ns_cbranch_scc0 {l2}")
        a(f"s_lshl_b32 s{t1}, s{sJ}, 14\ns_lshl_b32 s{t2}, s{sR}, 12\ns_add_u32 s{t1}, s{t1}, s{t2}\ns_add_u32 s{t2}, s{t1}, {H1}")
        a.sadd(sA, 26, f"s{t2}")
        a(f"s_add_u32 s{t2}, s{t1}, {F1}")
        a.sadd(sB, 26, f"s{t2}")
        a(a.ld4(WG, vPR, sA, 1024)); a(a.ld4(WG + 16, vPR, sB, 1024))
        a(f"{l2}:")
        a(f"s_lshl_b32 s{t1}, s{sJ}, 17\ns_lshl_b32 s{t2}, s{sR}, 15\ns_add_u32 s{t1}, s{t1}, s{t2}\ns_add_u32 s{t1}, s{t1}, {O2}\ns_lshl_b32 s{t2}, s{sK}, 13\ns_add_u32 s{t2}, s{t2}, s{t1}")
        a.sadd(sA, 26, f"s{t2}")
        a(f"v_add_u32 v{u0}, 0x1000, v{vPR}")
        a(a.ld4(WU, vPR, sA, 1024)); a(a.ld4(WU + 16, u0, sA, 1024))
        l4 = a.lab("r4")
        a(f"s_cmp_eq_u32 s{sK}, 2\ns_cbranch_scc0 {l4}")
        a.sadd(sA, 26, f"s{t1}")
        a(a.ld4(WG, vPR, sA, 1024)); a(a.ld4(WG + 16, u0, sA, 1024))
        a(f"{l4}:")
    a(f"s_waitcnt vmcnt(0)\nv_lshlrev_b32 v{vX}, 16, v{vX}")
    a(f"{l3}:\ns_lshl_b32 s{t3}, s{sR}, 2\ns_add_u32 s{t3}, s{t3}, s{sK}\ns_lshl_b32 s{t3}, s{t3}, 1")
    a.e2a(t3, D, WK)
    a.stamp(5)
    a(f"s_cmp_eq_u32 s{sK}, 1\ns_cbranch_scc0 L_out")
    a.hgather(sR, vGA, vX, D, WK)
    a.stamp(6)
    a(f"s_lshl_b32 s{t1}, s{sJ}, 14\ns_lshl_b32 s{t2}, s{sR}, 12\ns_add_u32 s{t1}, s{t1}, s{t2}\ns_add_u32 s{t1}, s{t1}, {F1}")
    a.sadd(sC, 26, f"s{t1}")
    a(f"""
    v_mov_b32 v{D+13}, 0
    v_mov_b32 v{D+14}, 0
    v_mov_b32 v{D+15}, 0
    s_mov_b32 s{sN8}, 0x00ff00ff
    s_mov_b32 s{sN8+1}, 0x00ff00ff
    s_mov_b32 s{sB1}, 0x33333333
    s_mov_b32 s{sB1+1}, 0x33333333
    v_and_b32 v1, 1, v{vN}
    v_lshlrev_b32 v1, 3, v1
    v_lshl_add_u32 v1, v{vKB}, 4, v1
    v_lshrrev_b32 v{u0}, 2, v{vN}
    v_lshl_add_u32 v{u0}, v{u0}, 1, v1
    s_lshl_b32 s{t1}, s{sJ}, 8
    s_lshl_b32 s{t2}, s{sR}, 6
    s_add_u32 s{t1}, s{t1}, s{t2}
    v_add_u32 v{u0}, s{t1}, v{u0}
    """)
    ll = a.ld4(D, vGA, sC, 1024).split("\n")
    loads = "\n".join(ll[:3] + [f"s_mov_b64 exec, {S2(sN8)}", ll[3], "s_mov_b64 exec, -1"])
    a.poll(loads, D, 4, pre=f"v_mov_b32 v{D+12}, v{vT8}")
    a.stamp(7)
    a.sum4(D)
    a.redscat([(D, WK + 2, WK + 3, WK + 1)])
    a(f"""
    v_cvt_pk_bf16_f32 v{WK+1}, v{WK+1}, v{WK+1}
    v_lshlrev_b32 v{WK+1}, 16, v{WK+1}
    v_add_f32 v{WK+1}, v{WK+1}, v{WK}
    v_cvt_pk_bf16_f32 v{WK+1}, v{WK+1}, v{WK+1}
    s_mov_b64 exec, {S2(sB1)}
    global_store_short v{u0}, v{WK+1}, s[22:23]
    s_mov_b64 exec, 1
    s_cmp_eq_u32 s2, 224
    s_cbranch_scc0 L_fin
    global_store_dword v{vZ}, v{vT}, s[26:27] sc1
    L_fin:
    s_mov_b64 exec, -1
    """)
    a.stamp(8)

def gen(**kw):
    P = dict(DEF); P.update(kw)
    a = K(P)
    a.stamp(0)
    a(f"""
    s_cmp_ge_u32 s2, 256
    s_cbranch_scc1 L_end
    s_load_dwordx16 s[4:19], s[0:1], 0
    s_load_dwordx8 s[20:27], s[0:1], 64
    v_lshrrev_b32 v1, 6, v0
    v_and_b32 v0, 63, v0
    v_readfirstlane_b32 s3, v1
    v_and_b32 v{vN}, 15, v0
    v_lshrrev_b32 v{vKB}, 4, v0
    s_and_b32 s{sJ}, s2, 7
    s_lshr_b32 s{sI}, s2, 3
    s_lshr_b32 s{sG}, s{sJ}, 1
    s_mov_b32 s{sBUD}, {P['bud']}
    s_and_b32 s{sK}, s3, 3
    s_lshr_b32 s{sSET}, s3, 2
    """)
    if P["dev"]:
        for i in range(1, 15): a(f"s_mov_b32 s{STAMP0+2*i}, 0")
    a(f"""
    s_cmp_eq_u32 s{sSET}, 1
    s_cbranch_scc1 L_O
    s_cmp_eq_u32 s{sSET}, 2
    s_cbranch_scc1 L_G
    """)
    role_x(a); a("; @reset"); role_o(a); a("; @reset"); role_g(a)
    a("L_out:")
    if P["dev"]:
        a("s_waitcnt lgkmcnt(0)")
        for i in range(15): a(f"v_writelane_b32 v1, s{STAMP0+2*i}, {i}")
        a(f"""
        v_writelane_b32 v1, s{sBUD}, 15
        s_lshl_b32 s{t0}, s2, 4
        s_add_u32 s{t0}, s{t0}, s3
        s_lshl_b32 s{t0}, s{t0}, 6
        s_add_u32 s{t0}, s{t0}, {128<<20}
        v_lshlrev_b32 v2, 2, v0
        v_add_u32 v2, s{t0}, v2
        s_mov_b64 exec, 0xffff
        global_store_dword v2, v1, s[26:27]
        """)
    a("L_end:\ns_endpgm")
    body = a.finish()
    assert a.maxv <= 168, a.maxv
    return wrap([(KNAME, body, 256, 768, LDS, a.maxv)]), a

if __name__ == "__main__":
    kw = eval("dict(" + (sys.argv[2] if len(sys.argv) > 2 else "") + ")")
    s, a = gen(**kw)
    open(sys.argv[1], "w").write(s)
    print("vgpr", a.maxv, "sgpr", a.maxs, "lines", s.count("\n"), "nops", s.count("s_nop"))
```

```python
import sys
from asm import *
KOFF = (65536 - 4096) * 256
XT, Q1, Q2, O2, O3, H1, F1, GU = 0x1000, 0x10000, 0x30000, 0x40000, 0x140000, 0x150000, 0x170000, 0x200000
GUS = 2304
PX, PO, PG, KR, SC, QC, CQ, CO, CG, CD, VERD, E1A, AP = 0, 16, 32, 48, 64, 72, 76, 80, 84, 88, 92, 96, 100
QL, SL, ST, KL, VL, OT, PQ, POo, PD, PGU, LDS = 256, 2560, 3584, 4096, 20480, 36864, 41984, 46080, 50176, 54272, 62464
sJ, sI, sG, sK, sSET, sT, sBUD, sVERD = 28, 29, 30, 31, 32, 33, 40, 41
sTAG, sE1, sE2, sE3, sX1, sX2, sL2E, sGC = 34, 35, 36, 37, 38, 39, 42, 43
sODD, sB1, sB2, sB3, sN8, sSC = 44, 46, 48, 50, 52, 54
sA, sB, sC, sD = 56, 58, 60, 62
t0, t1, t2, t3 = 96, 97, 98, 99
STAMP0 = 64
vL, vN, vKB, vT, vT8, vZ, vONE, vM = 0, 2, 3, 4, 5, 6, 7, 8
vF, vPW, vPR, vH2 = 12, 13, 14, 15
DEF = dict(dev=1, bud=20000, local=1,
           xsig={3: 1, 5: 2, 7: 3}, ogate={0: 1, 2: 2, 4: 3}, owin=5, osig={11: 1, 13: 2, 15: 3},
           ggate={0: 1, 2: 2, 4: 3}, gwin=5, dgate={0: 1, 3: 2}, e1gate=None, prewarm=1, gsleep=1)

def R(b, n=4): return f"v[{b}:{b+n-1}]"
def S2(b): return f"s[{b}:{b+1}]"
def DPP(ctl, bank=0xf): return f"{ctl} row_mask:0xf bank_mask:{bank:#x}"
LAM = [4 * (e % 4) + e // 4 for e in range(8)]

class K(A):
    def __init__(a, P):
        super().__init__(); a.P = P; a.ns = 0
    def stamp(a, i):
        if a.P["dev"]: a(f"s_memrealtime s[{STAMP0+2*i}:{STAMP0+2*i+1}]")
    def budget(a, top):
        a(f"s_sub_u32 s{sBUD}, s{sBUD}, 1\ns_cbranch_scc0 {top}\ns_mov_b32 s{sBUD}, 0")
    def gate(a, addr, off, thr, sleep=None, tmp=1):
        top, done = a.lab("gt"), a.lab("gd")
        if sleep is None: sleep = a.P["gsleep"]
        a(f"{top}:\nds_read_b32 v{tmp}, v{addr} offset:{off}\ns_waitcnt lgkmcnt(0)\nv_readfirstlane_b32 s{t0}, v{tmp}\ns_cmp_ge_u32 s{t0}, {thr}\ns_cbranch_scc1 {done}")
        if sleep: a(f"s_sleep {sleep}")
        a.budget(top); a(f"{done}:")
    def sig_add(a, addr, off):
        a(f"s_mov_b64 exec, 1\nds_add_u32 v{addr}, v{vONE} offset:{off}\ns_mov_b64 exec, -1")
    def sadd(a, d, base, off):
        a(f"s_add_u32 s{d}, s{base}, {off}\ns_addc_u32 s{d+1}, s{base+1}, 0")
    def bf(a, v):
        a(f"v_cvt_pk_bf16_f32 v{v}, v{v}, v{v}\nv_lshlrev_b32 v{v}, 16, v{v}")
    def masks(a):
        a(f"""
        v_and_b32 v1, 1, v{vN}
        v_lshlrev_b32 v1, 4, v1
        v_mov_b32 v{vM+3}, 0xffff
        v_lshlrev_b32 v1, v1, v{vM+3}
        v_lshrrev_b32 v{vH2}, 1, v{vN}
        """)
        for d in range(4): a(f"v_cmp_eq_u32 vcc, {d}, v{vH2}\nv_cndmask_b32 v{vM+d}, 0, v1, vcc")
    def consts(a):
        a(f"""
        s_mov_b32 s{sTAG}, 0x07060500
        s_mov_b32 s{sE1}, 0x07060501
        s_mov_b32 s{sE2}, 0x07060502
        s_mov_b32 s{sE3}, 0x07060503
        s_mov_b32 s{sX1}, 0x04000c0c
        s_mov_b32 s{sX2}, 0x0706000c
        s_mov_b32 s{sL2E}, 0x3fb8aa3b
        s_mov_b32 s{sL2E+1}, 0x3fb8aa3b
        s_mov_b32 s{sODD}, 0xaaaaaaaa
        s_mov_b32 s{sODD+1}, 0xaaaaaaaa
        s_mov_b32 s{sVERD}, 0
        v_mov_b32 v{vZ}, 0
        v_mov_b32 v{vONE}, 1
        v_mov_b32 v{vF}, s{sK}
        v_lshlrev_b32 v{vF}, 2, v{vF}
        v_lshlrev_b32 v{vPR}, 4, v{vL}
        """)
    def pwaddr(a, stride):
        a(f"""
        v_and_b32 v1, 1, v{vKB}
        v_lshlrev_b32 v1, 4, v1
        v_lshl_or_b32 v{vPW}, v{vN}, 5, v1
        v_lshrrev_b32 v1, 1, v{vKB}
        v_lshl_or_b32 v{vPW}, v1, 9, v{vPW}
        s_mul_i32 s{t0}, s{sK}, {stride}
        v_add_u32 v{vPW}, s{t0}, v{vPW}
        """)
    def epoch_barrier(a):
        a(f"""
        s_waitcnt lgkmcnt(0)
        s_add_u32 s{sT}, s{sT}, 0x9e3779b9
        s_barrier
        v_mov_b32 v{vT}, s{sT}
        v_and_b32 v{vT8}, 0xff, v{vT}
        """)
    def abuild(a, dst, t, lam, bank=0xf):
        for d in range(4): a(f"v_and_b32_dpp v{dst+d}, v{vH2}, v{vM+d} {DPP(f'row_newbcast:{lam[t]}', bank)}")
    def gemv(a, W, acc, A0, bank=0xf, fill=None):
        fill = list(fill or [])
        a.abuild(A0, 0, LAM, bank)
        for t in range(8):
            if t < 7: a.abuild(A0 + 4 * ((t + 1) & 1), t + 1, LAM, bank)
            for m, w in enumerate(W):
                a(f"v_mfma_f32_16x16x32_bf16 {R(acc+4*m)}, {R(A0+4*(t&1))}, {R(w+4*t)}, {R(acc+4*m) if t else 0}")
                if fill: a(fill.pop(0))
        for f in fill: a(f)
    def lstore(a, ins):
        if not a.P["local"]:
            a(ins + " sc1"); return
        l1, l2 = a.lab("ls"), a.lab("le")
        a(f"s_cmp_eq_u32 s{sVERD}, 1\ns_cbranch_scc1 {l1}\n{ins} sc1\ns_branch {l2}\n{l1}:\n{ins}\n{l2}:")
    def getverd(a, tmp):
        a(f"v_readfirstlane_b32 s{sVERD}, v{tmp}")
    def publish(a, acc, base, cnt, r0, vaddr, sbase):
        skip = a.lab("pub")
        a(f"""
        ds_write_b128 v{vPW}, {R(acc)} offset:{base}
        s_mov_b64 exec, 1
        ds_add_rtn_u32 v1, v{vZ}, v{vONE} offset:{cnt}
        s_mov_b64 exec, -1
        """)
        for w in range(4): a(f"ds_read_b128 {R(r0+4*w)}, v{vPR} offset:{base+1024*w}")
        a(f"""
        ds_read_b32 v{r0+16}, v{vZ} offset:{VERD}
        s_waitcnt lgkmcnt(0)
        v_readfirstlane_b32 s{t0}, v1
        v_pk_add_f32 {R(r0,2)}, {R(r0,2)}, {R(r0+4,2)}
        v_pk_add_f32 {R(r0+8,2)}, {R(r0+8,2)}, {R(r0+12,2)}
        s_cmp_eq_u32 s{t0}, 3
        s_cbranch_scc0 {skip}
        v_readfirstlane_b32 s{sVERD}, v{r0+16}
        v_pk_add_f32 {R(r0+2,2)}, {R(r0+2,2)}, {R(r0+6,2)}
        v_pk_add_f32 {R(r0+10,2)}, {R(r0+10,2)}, {R(r0+14,2)}
        v_pk_add_f32 {R(r0,2)}, {R(r0,2)}, {R(r0+8,2)}
        v_pk_add_f32 {R(r0+2,2)}, {R(r0+2,2)}, {R(r0+10,2)}
        v_perm_b32 v{r0}, v{r0}, v{vT}, s{sTAG}
        s_mov_b32 exec_hi, 0
        """)
        a.lstore(f"global_store_dwordx4 v{vaddr}, {R(r0)}, {S2(sbase)}")
        a(f"s_mov_b32 exec_hi, -1\n{skip}:")
    def tagcheck(a, d, n, tmp):
        if n == 1:
            a(f"v_xor_b32 v{d}, v{d}, v{vT8}\nv_cmp_ne_u32_sdwa vcc, v{d}, v{vZ} src0_sel:BYTE_0 src1_sel:DWORD")
        else:
            for v in range(4): a(f"v_xor_b32 v{d+4*v}, v{d+4*v}, v{vT8}")
            a(f"v_or3_b32 v{tmp}, v{d}, v{d+4}, v{d+8}\nv_or_b32 v{tmp}, v{tmp}, v{d+12}\nv_cmp_ne_u32_sdwa vcc, v{tmp}, v{vZ} src0_sel:BYTE_0 src1_sel:DWORD")
    def poll(a, loads, d, n, tmp=1, first=None, pre=None, sleep=0):
        top, done = a.lab("pl"), a.lab("pd")
        ent = None
        if first:
            ent = a.lab("pe")
            a(loads); a(first); a(f"s_branch {ent}")
        a(f"{top}:")
        if pre: a(pre)
        a(loads)
        if ent: a(f"{ent}:")
        a("s_waitcnt vmcnt(0)")
        a.tagcheck(d, n, tmp)
        a(f"s_cbranch_vccz {done}")
        if sleep: a(f"s_sleep {sleep}")
        a.budget(top); a(f"{done}:")
    def ld4(a, d, vaddr, sbase, step):
        return "\n".join(f"global_load_dwordx4 {R(d+4*v)}, v{vaddr}, {S2(sbase)} offset:{step*v} sc1" for v in range(4))
    def sum4(a, d):
        a(f"""
        v_pk_add_f32 {R(d,2)}, {R(d,2)}, {R(d+4,2)}
        v_pk_add_f32 {R(d+8,2)}, {R(d+8,2)}, {R(d+12,2)}
        v_pk_add_f32 {R(d+2,2)}, {R(d+2,2)}, {R(d+6,2)}
        v_pk_add_f32 {R(d+10,2)}, {R(d+10,2)}, {R(d+14,2)}
        v_pk_add_f32 {R(d,2)}, {R(d,2)}, {R(d+8,2)}
        v_pk_add_f32 {R(d+2,2)}, {R(d+2,2)}, {R(d+10,2)}
        """)
    def redscat(a, jobs):
        for d, r0, r1, s in jobs:
            a(f"v_add_f32_dpp v{r0}, v{d}, v{d} {DPP('row_ror:8', 0x3)}\nv_add_f32_dpp v{r0}, v{d+2}, v{d+2} {DPP('row_ror:8', 0xc)}")
        for d, r0, r1, s in jobs:
            a(f"v_add_f32_dpp v{r1}, v{d+1}, v{d+1} {DPP('row_ror:8', 0x3)}\nv_add_f32_dpp v{r1}, v{d+3}, v{d+3} {DPP('row_ror:8', 0xc)}")
        for d, r0, r1, s in jobs: a(f"v_add_f32_dpp v{s}, v{r0}, v{r0} {DPP('row_shl:4', 0x5)}")
        for d, r0, r1, s in jobs: a(f"v_add_f32_dpp v{s}, v{r1}, v{r1} {DPP('row_shr:4', 0xa)}")
        for d, r0, r1, s in jobs: a(f"v_add_f32_dpp v{s}, v{s}, v{s} {DPP('quad_perm:[2,3,0,1]')}")
    def extract(a, dst, d):
        a(f"v_perm_b32 v{dst}, v{d+3}, v{d+2}, s{sX1}\nv_perm_b32 v{dst}, v{dst}, v{d+1}, s{sX2}")
    def embed(a, d, val):
        a(f"v_perm_b32 v{d}, v{d}, v{vT}, s{sTAG}\nv_perm_b32 v{d+1}, v{d+1}, v{val}, s{sE1}\nv_perm_b32 v{d+2}, v{d+2}, v{val}, s{sE2}\nv_perm_b32 v{d+3}, v{d+3}, v{val}, s{sE3}")
    def rows_all(a, v, t, op):
        a(f"v_mov_b32 v{t}, v{v}\nv_permlane16_swap_b32 v{v}, v{t}\n{op} v{v}, v{v}, v{t}\nv_mov_b32 v{t}, v{v}\nv_permlane32_swap_b32 v{v}, v{t}\n{op} v{v}, v{v}, v{t}")
    def gatheraddr(a, dst, pstride):
        a(f"""
        v_lshrrev_b32 v1, 1, v{vN}
        v_mul_u32_u24 v{dst}, {pstride}, v1
        v_and_b32 v1, 1, v{vN}
        v_lshl_add_u32 v{dst}, v1, 4, v{dst}
        v_lshl_add_u32 v{dst}, v{vKB}, 5, v{dst}
        """)
    def slotaddr(a, dst):
        a(f"v_lshrrev_b32 v1, 3, v{vL}\nv_lshlrev_b32 v{dst}, 12, v1\nv_and_b32 v1, 7, v{vL}\nv_lshl_add_u32 v{dst}, v1, 4, v{dst}")
    def e2a(a, sL, d, w):
        val, wt, mx, tt, acc, al = w, w + 4, w + 8, w + 9, w + 12, w + 10
        a(f"""
        s_lshl_b32 s{t1}, s{sJ}, 17
        s_lshl_b32 s{t2}, s{sL}, 12
        s_add_u32 s{t1}, s{t1}, s{t2}
        s_add_u32 s{t1}, s{t1}, {O2}
        """)
        a.sadd(sC, 26, f"s{t1}")
        a(f"""
        s_lshl_b32 s{t1}, s{sJ}, 5
        s_add_u32 s{t1}, s{t1}, s{sL}
        s_lshl_b32 s{t1}, s{t1}, 7
        s_add_u32 s{t1}, s{t1}, {O3}
        """)
        a.sadd(sD, 26, f"s{t1}")
        a.gate(vZ, AP, 4)
        a("s_setprio 3")
        a.poll(a.ld4(d, vPR, sC, 1024), d, 4)
        for v in range(4): a.extract(val + v, d + 4 * v)
        a(f"v_max3_f32 v{mx}, v{val}, v{val+1}, v{val+2}\nv_max_f32 v{mx}, v{mx}, v{val+3}")
        a(f"v_max_f32_dpp v{mx}, v{mx}, v{mx} {DPP('row_ror:8')}")
        a.rows_all(mx, tt, "v_max_f32")
        a(f"v_mov_b32_dpp v{mx}, v{mx} {DPP('quad_perm:[0,0,2,2]')}")
        for v in range(4): a(f"v_sub_f32_dpp v{wt+v}, v{val+v}, v{mx} {DPP('quad_perm:[0,0,2,2]')}")
        a(f"v_pk_mul_f32 {R(wt,2)}, {R(wt,2)}, {S2(sL2E)}\nv_pk_mul_f32 {R(wt+2,2)}, {R(wt+2,2)}, {S2(sL2E)}")
        for v in range(4): a(f"v_exp_f32 v{wt+v}, v{wt+v}")
        for v in range(4):
            sel = v & 1; wp = R(wt + (v & 2), 2)
            for h in (0, 2):
                if v == 0: a(f"v_pk_mul_f32 {R(acc+h,2)}, {R(d+h,2)}, {wp} op_sel:[0,0] op_sel_hi:[1,0]")
                else: a(f"v_pk_fma_f32 {R(acc+h,2)}, {R(d+4*v+h,2)}, {wp}, {R(acc+h,2)} op_sel:[0,{sel},0] op_sel_hi:[1,{sel},1]")
            a(f"v_mul_f32 v{al}, v{val}, v{wt}" if v == 0 else f"v_fmac_f32 v{al}, v{val+v}, v{wt+v}")
        a(f"""
        v_permlane32_swap_b32 v{acc}, v{acc+2}
        v_permlane32_swap_b32 v{acc+1}, v{acc+3}
        v_add_f32_dpp v{al}, v{al}, v{al} {DPP('row_ror:8')}
        v_add_f32 v{acc}, v{acc}, v{acc+2}
        v_add_f32 v{acc+1}, v{acc+1}, v{acc+3}
        v_mov_b32 v{tt}, v{al}
        v_permlane16_swap_b32 v{acc}, v{acc+1}
        v_permlane16_swap_b32 v{al}, v{tt}
        v_add_f32 v{acc}, v{acc}, v{acc+1}
        v_add_f32 v{al}, v{al}, v{tt}
        v_mov_b32 v{tt}, v{al}
        v_add_f32_dpp v{acc}, v{acc}, v{acc} {DPP('row_ror:8')}
        v_permlane32_swap_b32 v{al}, v{tt}
        v_mov_b32 v{acc+2}, v{acc}
        v_add_f32 v{al}, v{al}, v{tt}
        v_permlane32_swap_b32 v{acc}, v{acc+2}
        v_cndmask_b32 v{al}, v{mx}, v{al}, {S2(sODD)}
        v_permlane16_swap_b32 v{acc}, v{acc+1}
        v_permlane16_swap_b32 v{acc+2}, v{acc+3}
        """)
        a.embed(acc, al)
        a(f"s_mov_b64 exec, 0xff\nglobal_store_dwordx4 v{vPR}, {R(acc)}, {S2(sD)} sc1\ns_mov_b64 exec, -1\ns_setprio 0")
    def hgather(a, sKk, vaddr, vx, d, w, first=None):
        a(f"s_lshl_b32 s{t1}, s{sJ}, 14\ns_lshl_b32 s{t2}, s{sKk}, 12\ns_add_u32 s{t1}, s{t1}, s{t2}\ns_add_u32 s{t1}, s{t1}, {H1}")
        a.sadd(sC, 26, f"s{t1}")
        a.poll(a.ld4(d, vaddr, sC, 1024), d, 4, first=first)
        a("s_setprio 3")
        a.sum4(d)
        a.redscat([(d, w + 1, w + 2, w)])
        a(f"""
        v_cvt_pk_bf16_f32 v{w}, v{w}, v{w}
        v_lshlrev_b32 v{w}, 16, v{w}
        v_add_f32 v{w}, v{w}, v{vx}
        v_cvt_pk_bf16_f32 v{vH2}, v{w}, v{w}
        v_lshlrev_b32 v{w}, 16, v{vH2}
        """)
    def xload(a, dst, sKk):
        a(f"""
        v_and_b32 v1, 1, v{vN}
        v_lshlrev_b32 v1, 3, v1
        v_lshl_add_u32 v1, v{vKB}, 4, v1
        v_lshrrev_b32 v{dst}, 2, v{vN}
        v_lshl_add_u32 v1, v{dst}, 1, v1
        s_lshl_b32 s{t1}, s{sJ}, 8
        s_lshl_b32 s{t2}, s{sKk}, 6
        s_add_u32 s{t1}, s{t1}, s{t2}
        v_add_u32 v1, s{t1}, v1
        global_load_ushort v{dst}, v1, s[4:5]
        """)

def role_x(a):
    P = a.P
    W, AQ, XF, XU, ACC, KF, VF = 16, 48, 80, 88, 104, 108, 124
    vW, vXO, vA0, vA1, vA2, vA3 = 140, 141, 142, 143, 144, 145
    u0, u1, u2, u3, u4, u5 = 146, 147, 148, 149, 150, 151
    ONES = 152
    a(f"""
    L_X:
    v_lshlrev_b32 v{vW}, 16, v{vKB}
    v_lshl_add_u32 v{vW}, v{vN}, 4, v{vW}
    v_lshlrev_b32 v{u0}, 5, v{vL}
    v_and_b32 v1, 7, v{vN}
    v_lshlrev_b32 v1, 1, v1
    v_lshl_add_u32 v{u1}, v{vKB}, 4, v1
    s_and_b32 s{t0}, s{sI}, 7
    s_lshl_b32 s{t0}, s{t0}, 2
    s_add_u32 s{t0}, s{t0}, s{sK}
    s_lshl_b32 s{t1}, s{t0}, 6
    v_add_u32 v{u1}, s{t1}, v{u1}
    s_lshl_b32 s{t0}, s{t0}, 18
    s_lshl_b32 s{t1}, s{sJ}, 10
    s_add_u32 s{t0}, s{t0}, s{t1}
    s_lshr_b32 s{t1}, s{sI}, 3
    s_lshl_b32 s{t1}, s{t1}, 8
    s_add_u32 s{t0}, s{t0}, s{t1}
    s_waitcnt lgkmcnt(0)
    s_load_dword s{sT}, s[26:27], 0
    global_load_dwordx4 {R(XF)}, v{u0}, s[4:5]
    global_load_dwordx4 {R(XF+4)}, v{u0}, s[4:5] offset:16
    global_load_ushort v{vXO}, v{u1}, s[4:5]
    """)
    a.sadd(sA, 10, f"s{t0}")
    for t in range(8):
        a(f"global_load_dwordx4 {R(W+4*t)}, v{vW}, {S2(sA)} nt")
        if t < 7: a(f"v_add_u32 v{vW}, 0x2000, v{vW}")
    a.consts(); a.masks(); a.pwaddr(1024)
    a(f"""
    s_lshl_b32 s{t0}, s{sJ}, 2
    s_lshr_b32 s{t1}, s{sI}, 3
    s_add_u32 s{t0}, s{t0}, s{t1}
    s_lshl_b32 s{t0}, s{t0}, 12
    s_and_b32 s{t1}, s{sI}, 7
    s_lshl_b32 s{t1}, s{t1}, 9
    s_add_u32 s{t0}, s{t0}, s{t1}
    s_add_u32 s{t0}, s{t0}, {Q1}
    """)
    a.sadd(sB, 26, f"s{t0}")
    a.epoch_barrier()
    a.stamp(1)
    a("s_waitcnt vmcnt(8)")
    a.stamp(2)
    for e in range(8): a(f"v_lshlrev_b32 v{XU+2*e}, 16, v{XF+e}\nv_and_b32 v{XU+2*e+1}, 0xffff0000, v{XF+e}")
    def allsum(v, t):
        a(f"v_add_f32 v{v}, v{v}, v{v+1}")
        for c in ("quad_perm:[1,0,3,2]", "quad_perm:[2,3,0,1]", "row_ror:4", "row_ror:8"):
            a(f"v_add_f32_dpp v{v}, v{v}, v{v} {DPP(c)}")
        a.rows_all(v, t, "v_add_f32")
        a(f"v_mul_f32 v{v}, 0x3a800000, v{v}")
    a(f"v_pk_add_f32 {R(u0,2)}, {R(XU,2)}, {R(XU+2,2)}")
    for e in range(2, 8): a(f"v_pk_add_f32 {R(u0,2)}, {R(u0,2)}, {R(XU+2*e,2)}")
    allsum(u0, u4)
    for e in range(8): a(f"v_pk_add_f32 {R(XU+2*e,2)}, {R(XU+2*e,2)}, {R(u0,2)} op_sel_hi:[1,0] neg_lo:[0,1] neg_hi:[0,1]")
    a(f"v_pk_mul_f32 {R(u2,2)}, {R(XU,2)}, {R(XU,2)}")
    for e in range(1, 8): a(f"v_pk_fma_f32 {R(u2,2)}, {R(XU+2*e,2)}, {R(XU+2*e,2)}, {R(u2,2)}")
    allsum(u2, u4)
    a.bf(u0); a.bf(u2)
    a(f"v_add_f32 v{u2}, 0x3727c5ac, v{u2}"); a.bf(u2)
    a(f"v_sqrt_f32 v{u2}, v{u2}"); a.bf(u2)
    a(f"v_rcp_f32 v{u3}, v{u2}\nv_lshlrev_b32 v{vXO}, 16, v{vXO}\nv_sub_f32 v{vXO}, v{vXO}, v{u0}"); a.bf(vXO)
    a(f"v_mul_f32 v{u4}, v{vXO}, v{u3}\nv_fma_f32 v{u5}, -v{u4}, v{u2}, v{vXO}\nv_fma_f32 v{u4}, v{u5}, v{u3}, v{u4}\nv_cvt_pk_bf16_f32 v{vH2}, v{u4}, v{u4}")
    for t in range(8): a.abuild(AQ + 4 * t, t, list(range(8)))
    a.stamp(3)
    for t in range(8):
        a(f"s_waitcnt vmcnt({7-t})")
        a(f"v_mfma_f32_16x16x32_bf16 {R(ACC)}, {R(AQ+4*t)}, {R(W+4*t)}, {R(ACC) if t else 0}")
        if t in P["xsig"]: a.sig_add(vF, PX)
    a.stamp(4)
    a.publish(ACC, PQ, CQ, AQ, vPR, sB)
    a.stamp(5)
    a(f"""
    s_lshl_b32 s{t0}, s{sG}, 12
    s_lshl_b32 s{t1}, s{sK}, 10
    s_add_u32 s{t0}, s{t0}, s{t1}
    s_add_u32 s{t0}, s{t0}, {Q2}
    """)
    a.sadd(sA, 26, f"s{t0}")
    a(f"s_lshl_b32 s{t0}, s{sJ}, 17\ns_add_u32 s{t0}, s{t0}, {O2}")
    a.sadd(sB, 26, f"s{t0}")
    vQW, vQR, vSW, vVA, vOW, vOR, vO2 = XU, XU + 1, XU + 2, XU + 3, XU + 4, XU + 5, XU + 6
    a(f"""
    v_xor_b32 v1, v{vKB}, v{vN}
    v_lshlrev_b32 v1, 4, v1
    v_lshl_add_u32 v{vA0}, v{vN}, 8, v1
    s_lshl_b32 s{t0}, s{sK}, 12
    v_add_u32 v{vA0}, s{t0}, v{vA0}
    v_xor_b32 v{vA1}, 64, v{vA0}
    v_xor_b32 v{vA2}, 0x80, v{vA0}
    v_xor_b32 v{vA3}, 0xc0, v{vA0}
    v_lshrrev_b32 v1, 5, v{vL}
    v_mul_u32_u24 v{vQW}, 288, v1
    v_and_b32 v1, 31, v{vL}
    v_lshl_add_u32 v{vQW}, v1, 3, v{vQW}
    s_mul_i32 s{t0}, s{sK}, 576
    v_add_u32 v{vQW}, s{t0}, v{vQW}
    v_and_b32 v{u0}, 7, v{vN}
    v_mul_u32_u24 v{vQR}, 288, v{u0}
    v_lshl_add_u32 v{vQR}, v{vKB}, 4, v{vQR}
    v_lshrrev_b32 v1, 1, v{vKB}
    v_lshlrev_b32 v{vSW}, 8, v1
    v_lshl_add_u32 v{vSW}, v{u0}, 4, v{vSW}
    v_and_b32 v1, 1, v{vKB}
    v_lshl_add_u32 v{vSW}, v1, 3, v{vSW}
    s_and_b32 s{t0}, s{sK}, 1
    s_lshl_b32 s{t0}, s{t0}, 9
    s_lshr_b32 s{t1}, s{sK}, 1
    s_lshl_b32 s{t1}, s{t1}, 7
    s_add_u32 s{t0}, s{t0}, s{t1}
    v_add_u32 v{vSW}, s{t0}, v{vSW}
    v_lshrrev_b32 v{u1}, 2, v{vN}
    v_lshl_add_u32 v{u2}, v1, 2, v{u1}
    v_lshlrev_b32 v{u2}, 1, v{u2}
    v_and_b32 v{u3}, 3, v{vN}
    v_lshrrev_b32 v{u4}, 1, v{u3}
    s_lshl_b32 s{t0}, s{sK}, 2
    v_add_u32 v{u4}, s{t0}, v{u4}
    v_xor_b32 v{u4}, v{u4}, v{u2}
    v_lshlrev_b32 v{u4}, 4, v{u4}
    v_and_b32 v{u3}, 1, v{u3}
    v_lshl_add_u32 v{u4}, v{u3}, 3, v{u4}
    v_lshl_add_u32 v{u1}, v{vKB}, 3, v{u1}
    v_lshl_add_u32 v{vVA}, v{u1}, 8, v{u4}
    v_xor_b32 v{vVA+4}, 32, v{vVA}
    v_mul_u32_u24 v{vOW}, 144, v{u0}
    v_lshrrev_b32 v1, 3, v{vN}
    v_lshl_add_u32 v1, v1, 2, v{vKB}
    v_lshl_add_u32 v{vOW}, v1, 4, v{vOW}
    s_mul_i32 s{t0}, s{sK}, 1152
    v_add_u32 v{vOW}, s{t0}, v{vOW}
    v_lshrrev_b32 v{u1}, 3, v{vL}
    v_and_b32 v{u2}, 7, v{vL}
    v_mul_u32_u24 v{vOR}, 144, v{u1}
    v_lshl_add_u32 v{vOR}, v{u2}, 4, v{vOR}
    v_add_u32 v{vOR}, s{t0}, v{vOR}
    v_lshlrev_b32 v{u1}, 2, v{u1}
    v_add_u32 v{u1}, s{sK}, v{u1}
    v_add_u32 v1, s{sI}, v{u1}
    v_and_b32 v1, 31, v1
    v_lshlrev_b32 v1, 7, v1
    v_lshl_add_u32 v{vO2}, v{u1}, 12, v1
    v_lshl_add_u32 v{vO2}, v{u2}, 4, v{vO2}
    s_mov_b32 s{sN8}, 0x00ff00ff
    s_mov_b32 s{sN8+1}, 0x00ff00ff
    s_mov_b32 s{sSC}, 0x3db504f3
    s_mov_b32 s{sSC+1}, 0x3db504f3
    s_mov_b32 s{sB1}, 0xffff0000
    s_mov_b32 s{sB1+1}, 0xffff0000
    """)
    for d in range(4): a(f"v_mov_b32 v{ONES+d}, 0x3f803f80")
    a.gate(vF, KR, 1)
    for s, va in enumerate((vA0, vA1, vA2, vA3)): a(f"ds_read_b128 {R(KF+4*s)}, v{va} offset:{KL}")
    a.stamp(6)
    QD, QF = AQ, AQ + 4
    top, done = a.lab("q2"), a.lab("q2d")
    a(f"""
    {top}:
    global_load_dwordx4 {R(QD)}, v{vPR}, {S2(sA)} sc1
    s_waitcnt vmcnt(0)
    v_cmp_ne_u32 vcc, v{QD+2}, v{vT}
    s_cbranch_vccz {done}
    """)
    a.budget(top)
    a(f"{done}:\ns_setprio 3\nds_write_b64 v{vQW}, {R(QD,2)} offset:{QL}")
    a.sig_add(vZ, QC)
    a.stamp(7)
    top, done = a.lab("qs"), a.lab("qsd")
    a(f"{top}:\nds_read_b32 v1, v{vZ} offset:{QC}")
    for s in range(4): a(f"ds_read_b128 {R(QF+4*s)}, v{vQR} offset:{QL+64*s}")
    a(f"s_waitcnt lgkmcnt(0)\nv_readfirstlane_b32 s{t0}, v1\ns_cmp_eq_u32 s{t0}, 4\ns_cbranch_scc1 {done}")
    a.budget(top); a(f"{done}:")
    for s in range(4): a(f"v_mfma_f32_16x16x32_bf16 {R(ACC)}, {R(KF+4*s)}, {R(QF+4*s)}, {R(ACC) if s else 0}")
    a(f"""
    v_cvt_pk_bf16_f32 v{u0}, v{ACC}, v{ACC+1}
    v_cvt_pk_bf16_f32 v{u1}, v{ACC+2}, v{ACC+3}
    v_lshlrev_b32 v{ACC}, 16, v{u0}
    v_and_b32 v{ACC+1}, 0xffff0000, v{u0}
    v_lshlrev_b32 v{ACC+2}, 16, v{u1}
    v_and_b32 v{ACC+3}, 0xffff0000, v{u1}
    v_pk_mul_f32 {R(ACC,2)}, {R(ACC,2)}, {S2(sSC)}
    v_pk_mul_f32 {R(ACC+2,2)}, {R(ACC+2,2)}, {S2(sSC)}
    v_cvt_pk_bf16_f32 v{u0}, v{ACC}, v{ACC+1}
    v_cvt_pk_bf16_f32 v{u1}, v{ACC+2}, v{ACC+3}
    s_mov_b64 exec, {S2(sN8)}
    ds_write_b64 v{vSW}, {R(u0,2)} offset:{SL}
    """)
    a.sig_add(vZ, SC)
    SR, F, D = AQ, AQ + 4, AQ + 12
    top, done = a.lab("ss"), a.lab("ssd")
    a(f"{top}:\nds_read_b32 v1, v{vZ} offset:{SC}\nds_read_b128 {R(SR)}, v{vPR} offset:{SL}")
    a(f"s_waitcnt lgkmcnt(0)\nv_readfirstlane_b32 s{t0}, v1\ns_cmp_eq_u32 s{t0}, 8\ns_cbranch_scc1 {done}")
    a.budget(top); a(f"{done}:")
    for b in range(2):
        for H in range(2):
            for z in range(2):
                a(f"ds_read_b64_tr_b16 {R(VF+8*b+4*H+2*z,2)}, v{vVA+4*b} offset:{VL+8192*H+1024*z}")
    a.stamp(8)
    for e in range(4): a(f"v_lshlrev_b32 v{F+2*e}, 16, v{SR+e}\nv_and_b32 v{F+2*e+1}, 0xffff0000, v{SR+e}")
    a(f"""
    v_max3_f32 v{u0}, v{F}, v{F+1}, v{F+2}
    v_max3_f32 v{u1}, v{F+3}, v{F+4}, v{F+5}
    v_max3_f32 v{u0}, v{u0}, v{F+6}, v{F+7}
    v_max_f32 v{u0}, v{u0}, v{u1}
    v_max_f32_dpp v{u0}, v{u0}, v{u0} {DPP('row_ror:8')}
    """)
    a.rows_all(u0, u1, "v_max_f32")
    for e in range(4): a(f"v_pk_add_f32 {R(F+2*e,2)}, {R(F+2*e,2)}, {R(u0,2)} op_sel_hi:[1,0] neg_lo:[0,1] neg_hi:[0,1]")
    for e in range(4): a(f"v_pk_mul_f32 {R(F+2*e,2)}, {R(F+2*e,2)}, {S2(sL2E)}")
    for e in range(8): a(f"v_exp_f32 v{F+e}, v{F+e}")
    for e in range(4): a(f"v_cvt_pk_bf16_f32 v{SR+e}, v{F+2*e}, v{F+2*e+1}")
    a(f"ds_read_b32 v{u3}, v{vZ} offset:{VERD}\ns_waitcnt lgkmcnt(0)")
    a(f"v_mfma_f32_16x16x32_bf16 {R(ACC)}, {R(ONES)}, {R(SR)}, 0")
    for b in range(2):
        for H in range(2): a(f"v_mfma_f32_16x16x32_bf16 {R(D+8*b+4*H)}, {R(VF+8*b+4*H)}, {R(SR)}, 0")
    a.getverd(u3)
    a(f"v_add_f32_dpp v{u2}, v{ACC}, v{ACC} {DPP('row_ror:8')}\nv_cndmask_b32 v{u2}, v{u0}, v{u2}, {S2(sB1)}")
    for r in range(4): a(f"v_add_f32_dpp v{F+r}, v{D+4+r}, v{D+r} {DPP('row_ror:8', 0x3)}")
    for r in range(4): a(f"v_add_f32_dpp v{F+r}, v{D+8+r}, v{D+12+r} {DPP('row_ror:8', 0xc)}")
    a.embed(F, u2)
    a(f"ds_write_b128 v{vOW}, {R(F)} offset:{OT}\nds_read_b128 {R(F+4)}, v{vOR} offset:{OT}\ns_waitcnt lgkmcnt(0)")
    a.lstore(f"global_store_dwordx4 v{vO2}, {R(F+4)}, {S2(sB)}")
    a.sig_add(vZ, AP)
    a("s_setprio 0")
    a.stamp(9)
    a(f"s_cmp_ge_u32 s{sI}, 28\ns_cbranch_scc1 L_out")
    GD, vGA, vFA, vINV = AQ, vA0, vA1, vA2
    a(f"""
    s_lshl_b32 s{t0}, s{sI}, 2
    s_add_u32 s{t0}, s{t0}, s{sK}
    s_lshl_b32 s{t0}, s{t0}, 16
    s_lshl_b32 s{t1}, s{sJ}, 8
    s_add_u32 s{t0}, s{t0}, s{t1}
    """)
    a.sadd(sA, 20, f"s{t0}")
    a(f"s_mul_i32 s{t0}, s{sI}, {8*GUS}\ns_lshl_b32 s{t1}, s{sK}, 9\ns_add_u32 s{t0}, s{t0}, s{t1}\ns_add_u32 s{t0}, s{t0}, {GU}")
    a.sadd(sC, 26, f"s{t0}")
    a(f"s_lshl_b32 s{t0}, s{sJ}, 14\ns_lshl_b32 s{t1}, s{sI}, 7\ns_add_u32 s{t0}, s{t0}, s{t1}\ns_add_u32 s{t0}, s{t0}, {F1}")
    a.sadd(sB, 26, f"s{t0}")
    a(f"v_lshlrev_b32 v{vW}, 14, v{vKB}\nv_lshl_add_u32 v{vW}, v{vN}, 4, v{vW}\nv_mov_b32 v{vINV}, 0x3a800000\ns_mov_b32 s{sGC}, 0x3d372713")
    a.gatheraddr(vGA, GUS); a.slotaddr(vFA)
    for t in range(8):
        if t in P["dgate"]: a.gate(vF, PG, P["dgate"][t])
        if t == 0: a.stamp(10)
        a(f"global_load_dwordx4 {R(W+4*t)}, v{vW}, {S2(sA)} offset:{2048*(t&1)} nt")
        if t & 1 and t < 7: a(f"v_add_u32 v{vW}, 0x1000, v{vW}")
    a.stamp(11)
    a.poll(a.ld4(GD, vGA, sC, 128), GD, 4)
    a("s_setprio 3")
    a.stamp(12)
    w = XU
    a.extract(u0, GD)
    a(f"v_add_f32_dpp v{u0}, v{u0}, v{u0} {DPP('row_ror:8')}")
    a.redscat([(GD + 4 * c, w + 4 + 2 * c, w + 5 + 2 * c, w + c) for c in range(4)][:2])
    a(f"v_add_f32_dpp v{u0}, v{u0}, v{u0} {DPP('row_ror:4')}")
    a.redscat([(GD + 4 * c, w + 4 + 2 * c, w + 5 + 2 * c, w + c) for c in range(4)][2:])
    a(f"""
    v_add_f32_dpp v{u0}, v{u0}, v{u0} {DPP('quad_perm:[2,3,0,1]')}
    v_mul_f32_dpp v{u1}, v{u0}, v{vINV} {DPP('quad_perm:[0,0,2,2]')}
    v_mul_f32_dpp v{u2}, v{u0}, v{vINV} {DPP('quad_perm:[1,1,3,3]')}
    v_fma_f32 v{u2}, -v{u1}, v{u1}, v{u2}
    v_max_f32 v{u2}, 0, v{u2}
    v_add_f32 v{u2}, 0x3727c5ac, v{u2}
    v_rsq_f32 v{u2}, v{u2}
    v_fma_f32 v{w}, -v{u1}, v{w+1}, v{w}
    v_fma_f32 v{w+2}, -v{u1}, v{w+3}, v{w+2}
    v_mul_f32 v{w}, v{w}, v{u2}
    v_mul_f32 v{w+2}, v{w+2}, v{u2}
    v_cvt_pk_bf16_f32 v{u3}, v{w}, v{w+2}
    v_lshlrev_b32 v{w}, 16, v{u3}
    v_mul_f32 v{u0}, v{w}, v{w}
    v_mul_f32 v{u1}, 0xc0135761, v{w}
    v_fma_f32 v{u0}, v{u0}, s{sGC}, 1.0
    v_mul_f32 v{u0}, v{u0}, v{u1}
    v_exp_f32 v{u0}, v{u0}
    v_and_b32 v{u3}, 0xffff0000, v{u3}
    v_add_f32 v{u0}, 1.0, v{u0}
    v_rcp_f32 v{u0}, v{u0}
    v_mul_f32 v{u0}, v{u0}, v{w}
    v_cvt_pk_bf16_f32 v{u0}, v{u0}, v{u0}
    v_lshlrev_b32 v{u0}, 16, v{u0}
    v_mul_f32 v{u0}, v{u0}, v{u3}
    v_cvt_pk_bf16_f32 v{vH2}, v{u0}, v{u0}
    """)
    a.gemv([W], ACC, KF)
    a.stamp(13)
    a.publish(ACC, PD, CD, AQ, vFA, sB)
    a.stamp(14)
    a("s_branch L_out")

def role_o(a):
    P = a.P
    W, ACC, A0, D, WK = 16, 48, 52, 60, 80
    vK0, vV0, vW, vO3, vHA = 100, 104, 106, 107, 108
    u0, u1, u2, u3, u4, u5 = 110, 111, 112, 113, 114, 115
    a(f"""
    L_O:
    v_xor_b32 v1, v{vKB}, v{vN}
    v_lshlrev_b32 v1, 4, v1
    v_lshl_add_u32 v{vK0}, v{vKB}, 8, v1
    v_xor_b32 v{vK0+1}, 64, v{vK0}
    v_xor_b32 v{vK0+2}, 0x80, v{vK0}
    v_xor_b32 v{vK0+3}, 0xc0, v{vK0}
    v_lshlrev_b32 v1, 1, v{vKB}
    v_xor_b32 v1, v1, v{vN}
    v_lshlrev_b32 v1, 4, v1
    v_lshl_add_u32 v{vV0}, v{vKB}, 8, v1
    v_xor_b32 v{vV0+1}, 0x80, v{vV0}
    v_lshlrev_b32 v{vW}, 14, v{vKB}
    v_lshl_add_u32 v{vW}, v{vN}, 4, v{vW}
    s_waitcnt lgkmcnt(0)
    s_load_dword s{sT}, s[26:27], 0
    s_lshl_b32 s{t0}, s{sG}, 24
    s_and_b32 s{t1}, s{sJ}, 1
    s_lshl_b32 s{t1}, s{t1}, 5
    s_add_u32 s{t1}, s{t1}, s{sI}
    s_lshl_b32 s{t1}, s{t1}, 14
    s_add_u32 s{t0}, s{t0}, s{t1}
    s_lshl_b32 s{t1}, s{sK}, 12
    s_add_u32 s{t0}, s{t0}, s{t1}
    s_add_u32 s{t0}, s{t0}, {KOFF}
    """)
    a.sadd(sA, 6, f"s{t0}"); a.sadd(sB, 8, f"s{t0}")
    a(f"""
    s_lshl_b32 s{t0}, s{sI}, 2
    s_add_u32 s{t0}, s{t0}, s{sK}
    s_lshl_b32 s{t0}, s{t0}, 16
    s_lshl_b32 s{t1}, s{sJ}, 8
    s_add_u32 s{t0}, s{t0}, s{t1}
    """)
    a.sadd(sC, 12, f"s{t0}")
    a.consts(); a.masks(); a.pwaddr(1024); a.slotaddr(vHA)
    a(f"""
    v_lshrrev_b32 v1, 1, v{vN}
    v_and_b32 v1, 1, v1
    v_lshlrev_b32 v{vO3}, 12, v1
    v_and_b32 v1, 1, v{vN}
    v_lshl_add_u32 v{vO3}, v1, 4, v{vO3}
    v_lshl_add_u32 v{vO3}, v{vKB}, 5, v{vO3}
    s_mov_b32 s{sB2}, 0xf0f0f0f0
    s_mov_b32 s{sB2+1}, 0xf0f0f0f0
    s_mov_b32 s{sB3}, 0xff00ff00
    s_mov_b32 s{sB3+1}, 0xff00ff00
    s_lshl_b32 s{t3}, s{sK}, 12
    s_add_u32 m0, s{t3}, {KL}
    """)
    a.epoch_barrier()
    a.stamp(1)
    win = P["owin"]; landed = -1
    def land(n, issued):
        nonlocal landed
        if n > landed:
            a(f"s_waitcnt vmcnt({issued-1-n})")
            for x in range(landed + 1, n + 1):
                if x == 3: a.sig_add(vF, KR); a.stamp(3)
                if x == 7: a.sig_add(vZ, SC); a.stamp(4)
                if x in P["osig"]: a.sig_add(vF, PO)
            landed = n
    for m in range(16):
        if m in P["ogate"]: a.gate(vF, PX, P["ogate"][m])
        if P["e1gate"] is not None and m == P["e1gate"]:
            l = a.lab("e1g"); a(f"s_cmp_lt_u32 s{sI}, 28\ns_cbranch_scc1 {l}"); a.gate(vZ, E1A, 1); a(f"{l}:")
        if m - win >= 0: land(m - win, m)
        if m == 0: a.stamp(2)
        if m < 4: a(f"global_load_lds_dwordx4 v{vK0+m}, {S2(sA)} offset:{1024*m} nt")
        elif m < 8:
            if m == 4: a(f"s_add_u32 m0, s{t3}, {VL}")
            a(f"global_load_lds_dwordx4 v{vV0+((m-4)>>1)}, {S2(sB)} offset:{1024*(m-4)} nt")
        else:
            t = m - 8
            a(f"global_load_dwordx4 {R(W+4*t)}, v{vW}, {S2(sC)} offset:{2048*(t&1)} nt")
            if t & 1 and t < 7: a(f"v_add_u32 v{vW}, 0x1000, v{vW}")
    for x in sorted(set([3, 7] + list(P["osig"]) + [15])): land(x, 16)
    a.stamp(5)
    l = a.lab("oe")
    a(f"s_cmp_lt_u32 s{sI}, 28\ns_cbranch_scc1 {l}")
    a(f"s_sub_u32 s{t3}, s{sI}, 28\ns_lshl_b32 s{t3}, s{t3}, 2\ns_add_u32 s{t3}, s{t3}, s{sK}\ns_lshl_b32 s{t3}, s{t3}, 1\ns_add_u32 s{t3}, s{t3}, 1")
    a.e2a(t3, D, WK)
    a(f"{l}:")
    a.stamp(6)
    a(f"""
    s_lshr_b32 s{t0}, s{sI}, 3
    s_lshl_b32 s{t0}, s{t0}, 6
    s_and_b32 s{t1}, s{sI}, 7
    s_lshl_b32 s{t1}, s{t1}, 2
    s_add_u32 s{t0}, s{t0}, s{t1}
    s_add_u32 s{t0}, s{t0}, s{sK}
    s_lshl_b32 s{t0}, s{t0}, 7
    s_add_u32 s{t0}, s{t0}, {O3}
    """)
    a.sadd(sA, 26, f"s{t0}")
    a(f"s_lshl_b32 s{t0}, s{sJ}, 14\ns_lshl_b32 s{t1}, s{sI}, 7\ns_add_u32 s{t0}, s{t0}, s{t1}\ns_add_u32 s{t0}, s{t0}, {H1}")
    a.sadd(sB, 26, f"s{t0}")
    a.gate(vZ, AP, 4)
    a.poll(f"global_load_dwordx4 {R(D)}, v{vO3}, {S2(sA)} sc1", D, 1)
    a("s_setprio 3")
    a.stamp(7)
    a.extract(u0, D)
    a(f"""
    v_cndmask_b32 v{u4}, v{D}, v{D+1}, {S2(sB2)}
    v_cndmask_b32 v{u5}, v{D+2}, v{D+3}, {S2(sB2)}
    v_mov_b32_dpp v{u1}, v{u0} {DPP('quad_perm:[0,0,2,2]')}
    v_cndmask_b32 v{u4}, v{u4}, v{u5}, {S2(sB3)}
    v_max_f32_dpp v{u2}, v{u0}, v{u1} {DPP('quad_perm:[2,2,0,0]')}
    v_sub_f32 v{u1}, v{u1}, v{u2}
    v_mul_f32 v{u1}, s{sL2E}, v{u1}
    v_exp_f32 v{u1}, v{u1}
    v_mul_f32 v{u4}, v{u4}, v{u1}
    v_mul_f32_dpp v{u0}, v{u0}, v{u1} {DPP('quad_perm:[1,1,3,3]')}
    v_add_f32_dpp v{u4}, v{u4}, v{u4} {DPP('quad_perm:[2,3,0,1]')}
    v_add_f32_dpp v{u0}, v{u0}, v{u0} {DPP('quad_perm:[2,3,0,1]')}
    v_rcp_f32 v{u0}, v{u0}
    v_mul_f32 v{u4}, v{u4}, v{u0}
    v_cvt_pk_bf16_f32 v{vH2}, v{u4}, v{u4}
    """)
    a.gemv([W], ACC, A0)
    a.stamp(8)
    a.publish(ACC, POo, CO, D, vHA, sB)
    a.stamp(9)
    a("s_branch L_out")

def role_g(a):
    P = a.P
    WG, WU, ACC, A0, D, WK = 16, 48, 80, 88, 96, 128
    vW, vX, vGA, vSA, vST = 146, 147, 148, 149, 150
    u0, u1, u2, u3 = 152, 153, 154, 155
    a(f"""
    L_G:
    v_mov_b32 v1, 0
    v_lshlrev_b32 v{u0}, 2, v{vL}
    ds_write_b32 v{u0}, v1
    s_waitcnt lgkmcnt(0)
    s_load_dword s{sT}, s[26:27], 0
    """)
    a.consts(); a.gatheraddr(vGA, 128)
    a.epoch_barrier()
    a.stamp(1)
    if P["local"]:
        l = a.lab("nv"); top, done = a.lab("xt"), a.lab("xtd")
        a(f"""
        s_cmp_eq_u32 s{sK}, 3
        s_cbranch_scc0 {l}
        s_getreg_b32 s{t0}, hwreg(HW_REG_XCC_ID, 0, 4)
        s_add_u32 s{t0}, s{t0}, s{sT}
        s_lshl_b32 s{t1}, s{sJ}, 7
        s_add_u32 s{t1}, s{t1}, {XT}
        """)
        a.sadd(sA, 26, f"s{t1}")
        a(f"""
        s_lshl_b32 s{t1}, s{sI}, 2
        v_mov_b32 v{u0}, s{t1}
        v_mov_b32 v{u1}, s{t0}
        s_mov_b64 exec, 1
        global_store_dword v{u0}, v{u1}, {S2(sA)} sc1
        s_mov_b64 exec, -1
        v_and_b32 v{u0}, 31, v{vL}
        v_lshlrev_b32 v{u0}, 2, v{u0}
        {top}:
        global_load_dword v{u2}, v{u0}, {S2(sA)} sc1
        s_waitcnt vmcnt(0)
        v_sub_u32 v{u3}, v{u2}, v{vT}
        v_cmp_le_u32 vcc, 16, v{u3}
        s_cbranch_vccz {done}
        s_sleep 2
        """)
        a.budget(top)
        a(f"""
        {done}:
        v_cmp_ne_u32 vcc, v{u2}, v{u1}
        s_cmp_eq_u64 vcc, 0
        s_cselect_b32 s{t0}, 1, 2
        v_mov_b32 v{u2}, s{t0}
        ds_write_b32 v{vZ}, v{u2} offset:{VERD}
        """)
        a.stamp(2)
        a(f"{l}:")
    a(f"s_cmp_ge_u32 s{sI}, 28\ns_cbranch_scc1 L_R")
    a.xload(vX, sK)
    a(f"""
    s_lshl_b32 s{t0}, s{sJ}, 2
    s_add_u32 s{t0}, s{t0}, s{sK}
    s_mul_i32 s{t0}, s{t0}, {32*7168}
    s_lshl_b32 s{t1}, s{sI}, 8
    s_add_u32 s{t0}, s{t0}, s{t1}
    v_mul_u32_u24 v{vW}, {8*7168}, v{vKB}
    v_lshl_add_u32 v{vW}, v{vN}, 4, v{vW}
    """)
    a.sadd(sA, 16, f"s{t0}"); a.sadd(sB, 18, f"s{t0}")
    a(f"s_lshl_b32 s{t0}, s{sI}, 3\ns_add_u32 s{t0}, s{t0}, s{sJ}\ns_mul_i32 s{t0}, s{t0}, {GUS}\ns_add_u32 s{t0}, s{t0}, {GU}")
    a.sadd(sD, 26, f"s{t0}")
    a.masks(); a.pwaddr(2048)
    a(f"""
    v_and_b32 v1, 1, v{vN}
    v_lshlrev_b32 v1, 4, v1
    v_mov_b32 v{u0}, 0x3f80
    v_lshlrev_b32 v{u0}, v1, v{u0}
    v_lshrrev_b32 v1, 1, v{vN}
    """)
    for d in range(4): a(f"v_cmp_eq_u32 vcc, {4+d}, v1\nv_cndmask_b32 v{A0+d}, 0, v{u0}, vcc\nv_mov_b32 v{A0+4+d}, v{A0+d}")
    a(f"""
    v_and_b32 v1, 31, v{vL}
    v_lshrrev_b32 v1, 3, v1
    v_lshlrev_b32 v{vSA}, 9, v1
    v_lshrrev_b32 v1, 5, v{vL}
    v_lshl_add_u32 v{vSA}, v1, 7, v{vSA}
    v_and_b32 v1, 7, v{vL}
    v_lshl_add_u32 v{vSA}, v1, 4, v{vSA}
    v_and_b32 v1, 2, v{vN}
    v_lshl_add_u32 v{vST}, v1, 3, v{vF}
    v_and_b32 v1, 1, v{vN}
    v_lshlrev_b32 v{vST+1}, 4, v1
    s_mov_b32 s{sB1}, 0xcccccccc
    s_mov_b32 s{sB1+1}, 0xcccccccc
    s_waitcnt vmcnt(0)
    v_lshlrev_b32 v{vX}, 16, v{vX}
    """)
    win = P["gwin"]
    for m in range(16):
        if m in P["ggate"]: a.gate(vF, PO, P["ggate"][m])
        if m - win >= 0: a(f"s_waitcnt vmcnt({win-1})")
        if m == 0: a.stamp(3)
        t = m >> 1
        a(f"global_load_dwordx4 {R((WU if m & 1 else WG)+4*t)}, v{vW}, {S2(sB if m & 1 else sA)} nt")
        if m & 1 and t < 7: a(f"v_add_u32 v{vW}, 7168, v{vW}")
    a.stamp(4)
    sig = f"s_mov_b64 exec, 1\nds_add_u32 v{vF}, v{vONE} offset:{PG}\ns_mov_b64 exec, -1"
    a.hgather(sK, vGA, vX, D, WK, first=sig + "\ns_waitcnt vmcnt(4)\n" + sig)
    a.stamp(5)
    hv, z, zt = WK, WK + 1, WK + 2
    fill = [f"v_cndmask_b32 v{z}, 1.0, v{hv}, {S2(sB1)}", f"v_mul_f32 v{z}, v{z}, v{hv}"]
    fill += [f"v_add_f32_dpp v{z}, v{z}, v{z} {DPP(c)}" for c in ("quad_perm:[1,0,3,2]", "row_ror:4", "row_ror:8")]
    fill += [f"v_mov_b32 v{zt}, v{z}", f"v_permlane16_swap_b32 v{z}, v{zt}", f"v_add_f32 v{z}, v{z}, v{zt}",
             f"v_mov_b32 v{zt}, v{z}", f"v_permlane32_swap_b32 v{z}, v{zt}", f"v_add_f32 v{z}, v{z}, v{zt}",
             f"s_mov_b64 exec, 5\nds_write_b32 v{vST}, v{z} offset:{ST}\ns_mov_b64 exec, -1"]
    a.gemv([WG, WU], ACC, A0, bank=0x3, fill=fill)
    a.stamp(6)
    skip = a.lab("pub")
    a(f"""
    ds_write_b128 v{vPW}, {R(ACC)} offset:{PGU}
    ds_write_b128 v{vPW}, {R(ACC+4)} offset:{PGU+1024}
    s_mov_b64 exec, 1
    ds_add_rtn_u32 v1, v{vZ}, v{vONE} offset:{CG}
    s_mov_b64 exec, -1
    ds_read_b128 {R(WK+4)}, v{vST+1} offset:{ST}
    """)
    for m in range(2):
        for w in range(4): a(f"ds_read_b128 {R(D+16*m+4*w)}, v{vPR} offset:{PGU+2048*w+1024*m}")
    a(f"""
    s_waitcnt lgkmcnt(0)
    v_readfirstlane_b32 s{t0}, v1
    v_pk_add_f32 {R(WK+4,2)}, {R(WK+4,2)}, {R(WK+6,2)}
    s_cmp_eq_u32 s{t0}, 3
    s_cbranch_scc0 {skip}
    v_add_f32 v{WK+4}, v{WK+4}, v{WK+5}
    """)
    a.sum4(D)
    a.embed(D, WK + 4)
    a(f"global_store_dwordx4 v{vSA}, {R(D)}, {S2(sD)} sc1")
    a.sum4(D + 16)
    a(f"v_perm_b32 v{D+16}, v{D+16}, v{vT}, s{sTAG}\nglobal_store_dwordx4 v{vSA}, {R(D+16)}, {S2(sD)} offset:256 sc1\n{skip}:")
    a.stamp(7)
    a("s_branch L_out")
    sR = sSET
    a(f"L_R:\n; @reset\ns_sub_u32 s{sR}, s{sI}, 28")
    l1, l2, l3 = a.lab("r1"), a.lab("r2"), a.lab("r3")
    a(f"s_cmp_eq_u32 s{sK}, 0\ns_cbranch_scc0 {l1}")
    a(f"""
    s_lshl_b32 s{t0}, s{sJ}, 2
    s_add_u32 s{t0}, s{t0}, s{sR}
    s_lshl_b32 s{t1}, s{t0}, 12
    s_add_u32 s{t1}, s{t1}, {Q1}
    """)
    a.sadd(sA, 26, f"s{t1}")
    a(f"s_lshl_b32 s{t1}, s{t0}, 9\ns_add_u32 s{t1}, s{t1}, {Q2}")
    a.sadd(sB, 26, f"s{t1}")
    a("s_setprio 3")
    a.poll(a.ld4(D, vPR, sA, 1024), D, 4)
    a.stamp(3)
    a.sum4(D)
    a(f"""
    v_permlane32_swap_b32 v{D}, v{D+2}
    v_permlane32_swap_b32 v{D+1}, v{D+3}
    v_pk_add_f32 {R(D,2)}, {R(D,2)}, {R(D+2,2)}
    v_mov_b32 v{D+6}, v{vT}
    v_mov_b32 v{D+7}, v{vT}
    v_cvt_pk_bf16_f32 v{D+4}, v{D}, v{D+1}
    v_mov_b32 v{D+5}, v{D+4}
    v_permlane32_swap_b32 v{D+4}, v{D+5}
    s_mov_b32 exec_hi, 0
    global_store_dwordx4 v{vPR}, {R(D+4)}, {S2(sB)} sc1
    s_mov_b32 exec_hi, -1
    s_setprio 0
    """)
    a.sig_add(vZ, E1A)
    a.stamp(4)
    a(f"s_branch {l3}\n{l1}:\n; @reset")
    a.xload(vX, sR)
    if P["prewarm"]:
        a(f"s_cmp_eq_u32 s{sK}, 1\ns_cbranch_scc0 {l2}")
        a(f"s_lshl_b32 s{t1}, s{sJ}, 14\ns_lshl_b32 s{t2}, s{sR}, 12\ns_add_u32 s{t1}, s{t1}, s{t2}\ns_add_u32 s{t2}, s{t1}, {H1}")
        a.sadd(sA, 26, f"s{t2}")
        a(f"s_add_u32 s{t2}, s{t1}, {F1}")
        a.sadd(sB, 26, f"s{t2}")
        a(a.ld4(WG, vPR, sA, 1024)); a(a.ld4(WG + 16, vPR, sB, 1024))
        a(f"{l2}:")
        a(f"s_lshl_b32 s{t1}, s{sJ}, 17\ns_lshl_b32 s{t2}, s{sR}, 15\ns_add_u32 s{t1}, s{t1}, s{t2}\ns_add_u32 s{t1}, s{t1}, {O2}\ns_lshl_b32 s{t2}, s{sK}, 13\ns_add_u32 s{t2}, s{t2}, s{t1}")
        a.sadd(sA, 26, f"s{t2}")
        a(f"v_add_u32 v{u0}, 0x1000, v{vPR}")
        a(a.ld4(WU, vPR, sA, 1024)); a(a.ld4(WU + 16, u0, sA, 1024))
        l4 = a.lab("r4")
        a(f"s_cmp_eq_u32 s{sK}, 2\ns_cbranch_scc0 {l4}")
        a.sadd(sA, 26, f"s{t1}")
        a(a.ld4(WG, vPR, sA, 1024)); a(a.ld4(WG + 16, u0, sA, 1024))
        a(f"{l4}:")
    a(f"s_waitcnt vmcnt(0)\nv_lshlrev_b32 v{vX}, 16, v{vX}")
    a(f"{l3}:\ns_lshl_b32 s{t3}, s{sR}, 2\ns_add_u32 s{t3}, s{t3}, s{sK}\ns_lshl_b32 s{t3}, s{t3}, 1")
    a.e2a(t3, D, WK)
    a.stamp(5)
    a(f"s_cmp_eq_u32 s{sK}, 1\ns_cbranch_scc0 L_out")
    a.hgather(sR, vGA, vX, D, WK)
    a.stamp(6)
    a(f"s_lshl_b32 s{t1}, s{sJ}, 14\ns_lshl_b32 s{t2}, s{sR}, 12\ns_add_u32 s{t1}, s{t1}, s{t2}\ns_add_u32 s{t1}, s{t1}, {F1}")
    a.sadd(sC, 26, f"s{t1}")
    a(f"""
    v_mov_b32 v{D+13}, 0
    v_mov_b32 v{D+14}, 0
    v_mov_b32 v{D+15}, 0
    s_mov_b32 s{sN8}, 0x00ff00ff
    s_mov_b32 s{sN8+1}, 0x00ff00ff
    s_mov_b32 s{sB1}, 0x33333333
    s_mov_b32 s{sB1+1}, 0x33333333
    v_and_b32 v1, 1, v{vN}
    v_lshlrev_b32 v1, 3, v1
    v_lshl_add_u32 v1, v{vKB}, 4, v1
    v_lshrrev_b32 v{u0}, 2, v{vN}
    v_lshl_add_u32 v{u0}, v{u0}, 1, v1
    s_lshl_b32 s{t1}, s{sJ}, 8
    s_lshl_b32 s{t2}, s{sR}, 6
    s_add_u32 s{t1}, s{t1}, s{t2}
    v_add_u32 v{u0}, s{t1}, v{u0}
    """)
    ll = a.ld4(D, vGA, sC, 1024).split("\n")
    loads = "\n".join(ll[:3] + [f"s_mov_b64 exec, {S2(sN8)}", ll[3], "s_mov_b64 exec, -1"])
    a.poll(loads, D, 4, pre=f"v_mov_b32 v{D+12}, v{vT8}")
    a.stamp(7)
    a.sum4(D)
    a.redscat([(D, WK + 2, WK + 3, WK + 1)])
    a(f"""
    v_cvt_pk_bf16_f32 v{WK+1}, v{WK+1}, v{WK+1}
    v_lshlrev_b32 v{WK+1}, 16, v{WK+1}
    v_add_f32 v{WK+1}, v{WK+1}, v{WK}
    v_cvt_pk_bf16_f32 v{WK+1}, v{WK+1}, v{WK+1}
    s_mov_b64 exec, {S2(sB1)}
    global_store_short v{u0}, v{WK+1}, s[22:23]
    s_mov_b64 exec, 1
    s_cmp_eq_u32 s2, 224
    s_cbranch_scc0 L_fin
    global_store_dword v{vZ}, v{vT}, s[26:27] sc1
    L_fin:
    s_mov_b64 exec, -1
    """)
    a.stamp(8)

def gen(**kw):
    P = dict(DEF); P.update(kw)
    a = K(P)
    a.stamp(0)
    a(f"""
    s_cmp_ge_u32 s2, 256
    s_cbranch_scc1 L_end
    s_load_dwordx16 s[4:19], s[0:1], 0
    s_load_dwordx8 s[20:27], s[0:1], 64
    v_lshrrev_b32 v1, 6, v0
    v_and_b32 v0, 63, v0
    v_readfirstlane_b32 s3, v1
    v_and_b32 v{vN}, 15, v0
    v_lshrrev_b32 v{vKB}, 4, v0
    s_and_b32 s{sJ}, s2, 7
    s_lshr_b32 s{sI}, s2, 3
    s_lshr_b32 s{sG}, s{sJ}, 1
    s_mov_b32 s{sBUD}, {P['bud']}
    s_and_b32 s{sK}, s3, 3
    s_lshr_b32 s{sSET}, s3, 2
    """)
    if P["dev"]:
        for i in range(1, 15): a(f"s_mov_b32 s{STAMP0+2*i}, 0")
    a(f"""
    s_cmp_eq_u32 s{sSET}, 1
    s_cbranch_scc1 L_O
    s_cmp_eq_u32 s{sSET}, 2
    s_cbranch_scc1 L_G
    """)
    role_x(a); a("; @reset"); role_o(a); a("; @reset"); role_g(a)
    a("L_out:")
    if P["dev"] == 2:
        a("s_waitcnt lgkmcnt(0)")
        a(f"v_mov_b32 v1, 0\ns_not_b32 s{t0}, s{STAMP0}\nv_writelane_b32 v1, s{t0}, 0\nv_writelane_b32 v1, s{STAMP0}, 1")
        lx, lo, lr, le = a.lab("dx"), a.lab("do"), a.lab("dr"), a.lab("de")
        def put(m):
            for slot, st in m.items(): a(f"v_writelane_b32 v1, s{STAMP0+2*st}, {slot}")
        a(f"s_lshr_b32 s{t1}, s3, 2\ns_cmp_eq_u32 s{t1}, 0\ns_cbranch_scc1 {lx}\ns_cmp_eq_u32 s{t1}, 1\ns_cbranch_scc1 {lo}\ns_cmp_ge_u32 s{sI}, 28\ns_cbranch_scc1 {lr}")
        put({12: 5, 13: 7}); a(f"s_branch {le}\n{lx}:")
        put({2: 1, 3: 2, 4: 4, 5: 5, 7: 7, 8: 9, 14: 14}); a(f"s_branch {le}\n{lo}:")
        put({10: 7, 11: 9}); a(f"s_branch {le}\n{lr}:")
        put({6: 4, 9: 5, 15: 8}); a(f"{le}:")
        a(f"""
        s_cmp_ge_u32 s{sK}, 2
        s_cbranch_scc1 L_end
        v_lshlrev_b32 v2, 2, v0
        s_mov_b64 exec, 0xffff
        global_atomic_umax v2, v1, s[24:25] sc1
        """)
    if P["dev"] == 1:
        a("s_waitcnt lgkmcnt(0)")
        for i in range(15): a(f"v_writelane_b32 v1, s{STAMP0+2*i}, {i}")
        a(f"""
        v_writelane_b32 v1, s{sBUD}, 15
        s_lshl_b32 s{t0}, s2, 4
        s_add_u32 s{t0}, s{t0}, s3
        s_lshl_b32 s{t0}, s{t0}, 6
        s_add_u32 s{t0}, s{t0}, {128<<20}
        v_lshlrev_b32 v2, 2, v0
        v_add_u32 v2, s{t0}, v2
        s_mov_b64 exec, 0xffff
        global_store_dword v2, v1, s[26:27]
        """)
    a("L_end:\ns_endpgm")
    body = a.finish()
    assert a.maxv <= 168, a.maxv
    return wrap([(KNAME, body, 256, 768, LDS, a.maxv)]), a

if __name__ == "__main__":
    kw = eval("dict(" + (sys.argv[2] if len(sys.argv) > 2 else "") + ")")
    s, a = gen(**kw)
    open(sys.argv[1], "w").write(s)
    print("vgpr", a.maxv, "sgpr", a.maxs, "lines", s.count("\n"), "nops", s.count("s_nop"))
```

```python
import sys
from asm import *
KOFF = (65536 - 4096) * 256
XT, Q1, Q2, O2, O3, H1, F1, GU = 0x1000, 0x10000, 0x30000, 0x40000, 0x140000, 0x150000, 0x170000, 0x200000
GUS = 2304
PX, PO, PG, KR, SC, QC, CQ, CO, CG, CD, VERD, E1A, AP = 0, 16, 32, 48, 64, 72, 76, 80, 84, 88, 92, 96, 100
QL, SL, ST, KL, VL, OT, PQ, POo, PD, PGU, LDS = 256, 2560, 3584, 4096, 20480, 36864, 41984, 46080, 50176, 54272, 62464
sJ, sI, sG, sK, sSET, sT, sBUD, sVERD = 28, 29, 30, 31, 32, 33, 40, 41
sTAG, sE1, sE2, sE3, sX1, sX2, sL2E, sGC = 34, 35, 36, 37, 38, 39, 42, 43
sODD, sB1, sB2, sB3, sN8, sSC = 44, 46, 48, 50, 52, 54
sA, sB, sC, sD = 56, 58, 60, 62
t0, t1, t2, t3 = 96, 97, 98, 99
STAMP0 = 64
vL, vN, vKB, vT, vT8, vZ, vONE, vM = 0, 2, 3, 4, 5, 6, 7, 8
vF, vPW, vPR, vH2 = 12, 13, 14, 15
DEF = dict(dev=1, bud=20000, local=1,
           xsig={3: 1, 5: 2, 7: 3}, ogate={0: 1, 2: 2, 4: 3}, owin=5, osig={11: 1, 13: 2, 15: 3},
           ggate={0: 1, 2: 2, 4: 3}, gwin=5, dgate={0: 1, 3: 2}, e1gate=None, prewarm=1, gsleep=1)

def R(b, n=4): return f"v[{b}:{b+n-1}]"
def S2(b): return f"s[{b}:{b+1}]"
def DPP(ctl, bank=0xf): return f"{ctl} row_mask:0xf bank_mask:{bank:#x}"
LAM = [4 * (e % 4) + e // 4 for e in range(8)]

class K(A):
    def __init__(a, P):
        super().__init__(); a.P = P; a.ns = 0
    def stamp(a, i):
        if a.P["dev"]: a(f"s_memrealtime s[{STAMP0+2*i}:{STAMP0+2*i+1}]")
    def budget(a, top):
        a(f"s_sub_u32 s{sBUD}, s{sBUD}, 1\ns_cbranch_scc0 {top}\ns_mov_b32 s{sBUD}, 0")
    def gate(a, addr, off, thr, sleep=None, tmp=1):
        top, done = a.lab("gt"), a.lab("gd")
        if sleep is None: sleep = a.P["gsleep"]
        a(f"{top}:\nds_read_b32 v{tmp}, v{addr} offset:{off}\ns_waitcnt lgkmcnt(0)\nv_readfirstlane_b32 s{t0}, v{tmp}\ns_cmp_ge_u32 s{t0}, {thr}\ns_cbranch_scc1 {done}")
        if sleep: a(f"s_sleep {sleep}")
        a.budget(top); a(f"{done}:")
    def sig_add(a, addr, off):
        a(f"s_mov_b64 exec, 1\nds_add_u32 v{addr}, v{vONE} offset:{off}\ns_mov_b64 exec, -1")
    def sadd(a, d, base, off):
        a(f"s_add_u32 s{d}, s{base}, {off}\ns_addc_u32 s{d+1}, s{base+1}, 0")
    def bf(a, v):
        a(f"v_cvt_pk_bf16_f32 v{v}, v{v}, v{v}\nv_lshlrev_b32 v{v}, 16, v{v}")
    def masks(a):
        a(f"""
        v_and_b32 v1, 1, v{vN}
        v_lshlrev_b32 v1, 4, v1
        v_mov_b32 v{vM+3}, 0xffff
        v_lshlrev_b32 v1, v1, v{vM+3}
        v_lshrrev_b32 v{vH2}, 1, v{vN}
        """)
        for d in range(4): a(f"v_cmp_eq_u32 vcc, {d}, v{vH2}\nv_cndmask_b32 v{vM+d}, 0, v1, vcc")
    def consts(a):
        a(f"""
        s_mov_b32 s{sTAG}, 0x07060500
        s_mov_b32 s{sE1}, 0x07060501
        s_mov_b32 s{sE2}, 0x07060502
        s_mov_b32 s{sE3}, 0x07060503
        s_mov_b32 s{sX1}, 0x04000c0c
        s_mov_b32 s{sX2}, 0x0706000c
        s_mov_b32 s{sL2E}, 0x3fb8aa3b
        s_mov_b32 s{sL2E+1}, 0x3fb8aa3b
        s_mov_b32 s{sODD}, 0xaaaaaaaa
        s_mov_b32 s{sODD+1}, 0xaaaaaaaa
        s_mov_b32 s{sVERD}, 0
        v_mov_b32 v{vZ}, 0
        v_mov_b32 v{vONE}, 1
        v_mov_b32 v{vF}, s{sK}
        v_lshlrev_b32 v{vF}, 2, v{vF}
        v_lshlrev_b32 v{vPR}, 4, v{vL}
        """)
    def pwaddr(a, stride):
        a(f"""
        v_and_b32 v1, 1, v{vKB}
        v_lshlrev_b32 v1, 4, v1
        v_lshl_or_b32 v{vPW}, v{vN}, 5, v1
        v_lshrrev_b32 v1, 1, v{vKB}
        v_lshl_or_b32 v{vPW}, v1, 9, v{vPW}
        s_mul_i32 s{t0}, s{sK}, {stride}
        v_add_u32 v{vPW}, s{t0}, v{vPW}
        """)
    def epoch_barrier(a):
        a(f"""
        s_waitcnt lgkmcnt(0)
        s_add_u32 s{sT}, s{sT}, 0x9e3779b9
        s_barrier
        v_mov_b32 v{vT}, s{sT}
        v_and_b32 v{vT8}, 0xff, v{vT}
        """)
    def abuild(a, dst, t, lam, bank=0xf):
        for d in range(4): a(f"v_and_b32_dpp v{dst+d}, v{vH2}, v{vM+d} {DPP(f'row_newbcast:{lam[t]}', bank)}")
    def gemv(a, W, acc, A0, bank=0xf, fill=None):
        fill = list(fill or [])
        a.abuild(A0, 0, LAM, bank)
        for t in range(8):
            if t < 7: a.abuild(A0 + 4 * ((t + 1) & 1), t + 1, LAM, bank)
            for m, w in enumerate(W):
                a(f"v_mfma_f32_16x16x32_bf16 {R(acc+4*m)}, {R(A0+4*(t&1))}, {R(w+4*t)}, {R(acc+4*m) if t else 0}")
                if fill: a(fill.pop(0))
        for f in fill: a(f)
    def lstore(a, ins):
        if not a.P["local"]:
            a(ins + " sc1"); return
        l1, l2 = a.lab("ls"), a.lab("le")
        a(f"s_cmp_eq_u32 s{sVERD}, 1\ns_cbranch_scc1 {l1}\n{ins} sc1\ns_branch {l2}\n{l1}:\n{ins}\n{l2}:")
    def getverd(a, tmp):
        a(f"v_readfirstlane_b32 s{sVERD}, v{tmp}")
    def publish(a, acc, base, cnt, r0, vaddr, sbase):
        skip = a.lab("pub")
        a(f"""
        ds_write_b128 v{vPW}, {R(acc)} offset:{base}
        s_mov_b64 exec, 1
        ds_add_rtn_u32 v1, v{vZ}, v{vONE} offset:{cnt}
        s_mov_b64 exec, -1
        """)
        for w in range(4): a(f"ds_read_b128 {R(r0+4*w)}, v{vPR} offset:{base+1024*w}")
        a(f"""
        ds_read_b32 v{r0+16}, v{vZ} offset:{VERD}
        s_waitcnt lgkmcnt(0)
        v_readfirstlane_b32 s{t0}, v1
        v_pk_add_f32 {R(r0,2)}, {R(r0,2)}, {R(r0+4,2)}
        v_pk_add_f32 {R(r0+8,2)}, {R(r0+8,2)}, {R(r0+12,2)}
        s_cmp_eq_u32 s{t0}, 3
        s_cbranch_scc0 {skip}
        v_readfirstlane_b32 s{sVERD}, v{r0+16}
        v_pk_add_f32 {R(r0+2,2)}, {R(r0+2,2)}, {R(r0+6,2)}
        v_pk_add_f32 {R(r0+10,2)}, {R(r0+10,2)}, {R(r0+14,2)}
        v_pk_add_f32 {R(r0,2)}, {R(r0,2)}, {R(r0+8,2)}
        v_pk_add_f32 {R(r0+2,2)}, {R(r0+2,2)}, {R(r0+10,2)}
        v_perm_b32 v{r0}, v{r0}, v{vT}, s{sTAG}
        s_mov_b32 exec_hi, 0
        """)
        a.lstore(f"global_store_dwordx4 v{vaddr}, {R(r0)}, {S2(sbase)}")
        a(f"s_mov_b32 exec_hi, -1\n{skip}:")
    def tagcheck(a, d, n, tmp):
        if n == 1:
            a(f"v_xor_b32 v{d}, v{d}, v{vT8}\nv_cmp_ne_u32_sdwa vcc, v{d}, v{vZ} src0_sel:BYTE_0 src1_sel:DWORD")
        else:
            for v in range(4): a(f"v_xor_b32 v{d+4*v}, v{d+4*v}, v{vT8}")
            a(f"v_or3_b32 v{tmp}, v{d}, v{d+4}, v{d+8}\nv_or_b32 v{tmp}, v{tmp}, v{d+12}\nv_cmp_ne_u32_sdwa vcc, v{tmp}, v{vZ} src0_sel:BYTE_0 src1_sel:DWORD")
    def poll(a, loads, d, n, tmp=1, first=None, pre=None, sleep=0):
        top, done = a.lab("pl"), a.lab("pd")
        ent = None
        if first:
            ent = a.lab("pe")
            a(loads); a(first); a(f"s_branch {ent}")
        a(f"{top}:")
        if pre: a(pre)
        a(loads)
        if ent: a(f"{ent}:")
        a("s_waitcnt vmcnt(0)")
        a.tagcheck(d, n, tmp)
        a(f"s_cbranch_vccz {done}")
        if sleep: a(f"s_sleep {sleep}")
        a.budget(top); a(f"{done}:")
    def ld4(a, d, vaddr, sbase, step):
        return "\n".join(f"global_load_dwordx4 {R(d+4*v)}, v{vaddr}, {S2(sbase)} offset:{step*v} sc1" for v in range(4))
    def sum4(a, d):
        a(f"""
        v_pk_add_f32 {R(d,2)}, {R(d,2)}, {R(d+4,2)}
        v_pk_add_f32 {R(d+8,2)}, {R(d+8,2)}, {R(d+12,2)}
        v_pk_add_f32 {R(d+2,2)}, {R(d+2,2)}, {R(d+6,2)}
        v_pk_add_f32 {R(d+10,2)}, {R(d+10,2)}, {R(d+14,2)}
        v_pk_add_f32 {R(d,2)}, {R(d,2)}, {R(d+8,2)}
        v_pk_add_f32 {R(d+2,2)}, {R(d+2,2)}, {R(d+10,2)}
        """)
    def redscat(a, jobs):
        for d, r0, r1, s in jobs:
            a(f"v_add_f32_dpp v{r0}, v{d}, v{d} {DPP('row_ror:8', 0x3)}\nv_add_f32_dpp v{r0}, v{d+2}, v{d+2} {DPP('row_ror:8', 0xc)}")
        for d, r0, r1, s in jobs:
            a(f"v_add_f32_dpp v{r1}, v{d+1}, v{d+1} {DPP('row_ror:8', 0x3)}\nv_add_f32_dpp v{r1}, v{d+3}, v{d+3} {DPP('row_ror:8', 0xc)}")
        for d, r0, r1, s in jobs: a(f"v_add_f32_dpp v{s}, v{r0}, v{r0} {DPP('row_shl:4', 0x5)}")
        for d, r0, r1, s in jobs: a(f"v_add_f32_dpp v{s}, v{r1}, v{r1} {DPP('row_shr:4', 0xa)}")
        for d, r0, r1, s in jobs: a(f"v_add_f32_dpp v{s}, v{s}, v{s} {DPP('quad_perm:[2,3,0,1]')}")
    def extract(a, dst, d):
        a(f"v_perm_b32 v{dst}, v{d+3}, v{d+2}, s{sX1}\nv_perm_b32 v{dst}, v{dst}, v{d+1}, s{sX2}")
    def embed(a, d, val):
        a(f"v_perm_b32 v{d}, v{d}, v{vT}, s{sTAG}\nv_perm_b32 v{d+1}, v{d+1}, v{val}, s{sE1}\nv_perm_b32 v{d+2}, v{d+2}, v{val}, s{sE2}\nv_perm_b32 v{d+3}, v{d+3}, v{val}, s{sE3}")
    def rows_all(a, v, t, op):
        a(f"v_mov_b32 v{t}, v{v}\nv_permlane16_swap_b32 v{v}, v{t}\n{op} v{v}, v{v}, v{t}\nv_mov_b32 v{t}, v{v}\nv_permlane32_swap_b32 v{v}, v{t}\n{op} v{v}, v{v}, v{t}")
    def gatheraddr(a, dst, pstride):
        a(f"""
        v_lshrrev_b32 v1, 1, v{vN}
        v_mul_u32_u24 v{dst}, {pstride}, v1
        v_and_b32 v1, 1, v{vN}
        v_lshl_add_u32 v{dst}, v1, 4, v{dst}
        v_lshl_add_u32 v{dst}, v{vKB}, 5, v{dst}
        """)
    def slotaddr(a, dst):
        a(f"v_lshrrev_b32 v1, 3, v{vL}\nv_lshlrev_b32 v{dst}, 12, v1\nv_and_b32 v1, 7, v{vL}\nv_lshl_add_u32 v{dst}, v1, 4, v{dst}")
    def e2a(a, sL, d, w):
        val, wt, mx, tt, acc, al = w, w + 4, w + 8, w + 9, w + 12, w + 10
        a(f"""
        s_lshl_b32 s{t1}, s{sJ}, 17
        s_lshl_b32 s{t2}, s{sL}, 12
        s_add_u32 s{t1}, s{t1}, s{t2}
        s_add_u32 s{t1}, s{t1}, {O2}
        """)
        a.sadd(sC, 26, f"s{t1}")
        a(f"""
        s_lshl_b32 s{t1}, s{sJ}, 5
        s_add_u32 s{t1}, s{t1}, s{sL}
        s_lshl_b32 s{t1}, s{t1}, 7
        s_add_u32 s{t1}, s{t1}, {O3}
        """)
        a.sadd(sD, 26, f"s{t1}")
        a.gate(vZ, AP, 4)
        a("s_setprio 3")
        a.poll(a.ld4(d, vPR, sC, 1024), d, 4)
        for v in range(4): a.extract(val + v, d + 4 * v)
        a(f"v_max3_f32 v{mx}, v{val}, v{val+1}, v{val+2}\nv_max_f32 v{mx}, v{mx}, v{val+3}")
        a(f"v_max_f32_dpp v{mx}, v{mx}, v{mx} {DPP('row_ror:8')}")
        a.rows_all(mx, tt, "v_max_f32")
        a(f"v_mov_b32_dpp v{mx}, v{mx} {DPP('quad_perm:[0,0,2,2]')}")
        for v in range(4): a(f"v_sub_f32_dpp v{wt+v}, v{val+v}, v{mx} {DPP('quad_perm:[0,0,2,2]')}")
        a(f"v_pk_mul_f32 {R(wt,2)}, {R(wt,2)}, {S2(sL2E)}\nv_pk_mul_f32 {R(wt+2,2)}, {R(wt+2,2)}, {S2(sL2E)}")
        for v in range(4): a(f"v_exp_f32 v{wt+v}, v{wt+v}")
        for v in range(4):
            sel = v & 1; wp = R(wt + (v & 2), 2)
            for h in (0, 2):
                if v == 0: a(f"v_pk_mul_f32 {R(acc+h,2)}, {R(d+h,2)}, {wp} op_sel:[0,0] op_sel_hi:[1,0]")
                else: a(f"v_pk_fma_f32 {R(acc+h,2)}, {R(d+4*v+h,2)}, {wp}, {R(acc+h,2)} op_sel:[0,{sel},0] op_sel_hi:[1,{sel},1]")
            a(f"v_mul_f32 v{al}, v{val}, v{wt}" if v == 0 else f"v_fmac_f32 v{al}, v{val+v}, v{wt+v}")
        a(f"""
        v_permlane32_swap_b32 v{acc}, v{acc+2}
        v_permlane32_swap_b32 v{acc+1}, v{acc+3}
        v_add_f32_dpp v{al}, v{al}, v{al} {DPP('row_ror:8')}
        v_add_f32 v{acc}, v{acc}, v{acc+2}
        v_add_f32 v{acc+1}, v{acc+1}, v{acc+3}
        v_mov_b32 v{tt}, v{al}
        v_permlane16_swap_b32 v{acc}, v{acc+1}
        v_permlane16_swap_b32 v{al}, v{tt}
        v_add_f32 v{acc}, v{acc}, v{acc+1}
        v_add_f32 v{al}, v{al}, v{tt}
        v_mov_b32 v{tt}, v{al}
        v_add_f32_dpp v{acc}, v{acc}, v{acc} {DPP('row_ror:8')}
        v_permlane32_swap_b32 v{al}, v{tt}
        v_mov_b32 v{acc+2}, v{acc}
        v_add_f32 v{al}, v{al}, v{tt}
        v_permlane32_swap_b32 v{acc}, v{acc+2}
        v_cndmask_b32 v{al}, v{mx}, v{al}, {S2(sODD)}
        v_permlane16_swap_b32 v{acc}, v{acc+1}
        v_permlane16_swap_b32 v{acc+2}, v{acc+3}
        """)
        a.embed(acc, al)
        a(f"s_mov_b64 exec, 0xff\nglobal_store_dwordx4 v{vPR}, {R(acc)}, {S2(sD)} sc1\ns_mov_b64 exec, -1\ns_setprio 0")
    def hgather(a, sKk, vaddr, vx, d, w, first=None):
        a(f"s_lshl_b32 s{t1}, s{sJ}, 14\ns_lshl_b32 s{t2}, s{sKk}, 12\ns_add_u32 s{t1}, s{t1}, s{t2}\ns_add_u32 s{t1}, s{t1}, {H1}")
        a.sadd(sC, 26, f"s{t1}")
        a.poll(a.ld4(d, vaddr, sC, 1024), d, 4, first=first)
        a("s_setprio 3")
        a.sum4(d)
        a.redscat([(d, w + 1, w + 2, w)])
        a(f"""
        v_cvt_pk_bf16_f32 v{w}, v{w}, v{w}
        v_lshlrev_b32 v{w}, 16, v{w}
        v_add_f32 v{w}, v{w}, v{vx}
        v_cvt_pk_bf16_f32 v{vH2}, v{w}, v{w}
        v_lshlrev_b32 v{w}, 16, v{vH2}
        """)
    def xload(a, dst, sKk):
        a(f"""
        v_and_b32 v1, 1, v{vN}
        v_lshlrev_b32 v1, 3, v1
        v_lshl_add_u32 v1, v{vKB}, 4, v1
        v_lshrrev_b32 v{dst}, 2, v{vN}
        v_lshl_add_u32 v1, v{dst}, 1, v1
        s_lshl_b32 s{t1}, s{sJ}, 8
        s_lshl_b32 s{t2}, s{sKk}, 6
        s_add_u32 s{t1}, s{t1}, s{t2}
        v_add_u32 v1, s{t1}, v1
        global_load_ushort v{dst}, v1, s[4:5]
        """)

def role_x(a):
    P = a.P
    W, AQ, XF, XU, ACC, KF, VF = 16, 48, 80, 88, 104, 108, 124
    vW, vXO, vA0, vA1, vA2, vA3 = 140, 141, 142, 143, 144, 145
    u0, u1, u2, u3, u4, u5 = 146, 147, 148, 149, 150, 151
    ONES = 152
    a(f"""
    L_X:
    v_lshlrev_b32 v{vW}, 16, v{vKB}
    v_lshl_add_u32 v{vW}, v{vN}, 4, v{vW}
    v_lshlrev_b32 v{u0}, 5, v{vL}
    v_and_b32 v1, 7, v{vN}
    v_lshlrev_b32 v1, 1, v1
    v_lshl_add_u32 v{u1}, v{vKB}, 4, v1
    s_and_b32 s{t0}, s{sI}, 7
    s_lshl_b32 s{t0}, s{t0}, 2
    s_add_u32 s{t0}, s{t0}, s{sK}
    s_lshl_b32 s{t1}, s{t0}, 6
    v_add_u32 v{u1}, s{t1}, v{u1}
    s_lshl_b32 s{t0}, s{t0}, 18
    s_lshl_b32 s{t1}, s{sJ}, 10
    s_add_u32 s{t0}, s{t0}, s{t1}
    s_lshr_b32 s{t1}, s{sI}, 3
    s_lshl_b32 s{t1}, s{t1}, 8
    s_add_u32 s{t0}, s{t0}, s{t1}
    s_waitcnt lgkmcnt(0)
    s_load_dword s{sT}, s[26:27], 0
    global_load_dwordx4 {R(XF)}, v{u0}, s[4:5]
    global_load_dwordx4 {R(XF+4)}, v{u0}, s[4:5] offset:16
    global_load_ushort v{vXO}, v{u1}, s[4:5]
    """)
    a.sadd(sA, 10, f"s{t0}")
    for t in range(8):
        a(f"global_load_dwordx4 {R(W+4*t)}, v{vW}, {S2(sA)} nt")
        if t < 7: a(f"v_add_u32 v{vW}, 0x2000, v{vW}")
    a.consts(); a.masks(); a.pwaddr(1024)
    a(f"""
    s_lshl_b32 s{t0}, s{sJ}, 2
    s_lshr_b32 s{t1}, s{sI}, 3
    s_add_u32 s{t0}, s{t0}, s{t1}
    s_lshl_b32 s{t0}, s{t0}, 12
    s_and_b32 s{t1}, s{sI}, 7
    s_lshl_b32 s{t1}, s{t1}, 9
    s_add_u32 s{t0}, s{t0}, s{t1}
    s_add_u32 s{t0}, s{t0}, {Q1}
    """)
    a.sadd(sB, 26, f"s{t0}")
    a.epoch_barrier()
    a.stamp(1)
    a("s_waitcnt vmcnt(8)")
    a.stamp(2)
    for e in range(8): a(f"v_lshlrev_b32 v{XU+2*e}, 16, v{XF+e}\nv_and_b32 v{XU+2*e+1}, 0xffff0000, v{XF+e}")
    def allsum(v, t):
        a(f"v_add_f32 v{v}, v{v}, v{v+1}")
        for c in ("quad_perm:[1,0,3,2]", "quad_perm:[2,3,0,1]", "row_ror:4", "row_ror:8"):
            a(f"v_add_f32_dpp v{v}, v{v}, v{v} {DPP(c)}")
        a.rows_all(v, t, "v_add_f32")
        a(f"v_mul_f32 v{v}, 0x3a800000, v{v}")
    a(f"v_pk_add_f32 {R(u0,2)}, {R(XU,2)}, {R(XU+2,2)}")
    for e in range(2, 8): a(f"v_pk_add_f32 {R(u0,2)}, {R(u0,2)}, {R(XU+2*e,2)}")
    allsum(u0, u4)
    for e in range(8): a(f"v_pk_add_f32 {R(XU+2*e,2)}, {R(XU+2*e,2)}, {R(u0,2)} op_sel_hi:[1,0] neg_lo:[0,1] neg_hi:[0,1]")
    a(f"v_pk_mul_f32 {R(u2,2)}, {R(XU,2)}, {R(XU,2)}")
    for e in range(1, 8): a(f"v_pk_fma_f32 {R(u2,2)}, {R(XU+2*e,2)}, {R(XU+2*e,2)}, {R(u2,2)}")
    allsum(u2, u4)
    a.bf(u0); a.bf(u2)
    a(f"v_add_f32 v{u2}, 0x3727c5ac, v{u2}"); a.bf(u2)
    a(f"v_sqrt_f32 v{u2}, v{u2}"); a.bf(u2)
    a(f"v_rcp_f32 v{u3}, v{u2}\nv_lshlrev_b32 v{vXO}, 16, v{vXO}\nv_sub_f32 v{vXO}, v{vXO}, v{u0}"); a.bf(vXO)
    a(f"v_mul_f32 v{u4}, v{vXO}, v{u3}\nv_fma_f32 v{u5}, -v{u4}, v{u2}, v{vXO}\nv_fma_f32 v{u4}, v{u5}, v{u3}, v{u4}\nv_cvt_pk_bf16_f32 v{vH2}, v{u4}, v{u4}")
    for t in range(8): a.abuild(AQ + 4 * t, t, list(range(8)))
    a.stamp(3)
    for t in range(8):
        a(f"s_waitcnt vmcnt({7-t})")
        a(f"v_mfma_f32_16x16x32_bf16 {R(ACC)}, {R(AQ+4*t)}, {R(W+4*t)}, {R(ACC) if t else 0}")
        if t in P["xsig"]: a.sig_add(vF, PX)
    a.stamp(4)
    a.publish(ACC, PQ, CQ, AQ, vPR, sB)
    a.stamp(5)
    a(f"""
    s_lshl_b32 s{t0}, s{sG}, 12
    s_lshl_b32 s{t1}, s{sK}, 10
    s_add_u32 s{t0}, s{t0}, s{t1}
    s_add_u32 s{t0}, s{t0}, {Q2}
    """)
    a.sadd(sA, 26, f"s{t0}")
    a(f"s_lshl_b32 s{t0}, s{sJ}, 17\ns_add_u32 s{t0}, s{t0}, {O2}")
    a.sadd(sB, 26, f"s{t0}")
    vQW, vQR, vSW, vVA, vOW, vOR, vO2 = XU, XU + 1, XU + 2, XU + 3, XU + 4, XU + 5, XU + 6
    a(f"""
    v_xor_b32 v1, v{vKB}, v{vN}
    v_lshlrev_b32 v1, 4, v1
    v_lshl_add_u32 v{vA0}, v{vN}, 8, v1
    s_lshl_b32 s{t0}, s{sK}, 12
    v_add_u32 v{vA0}, s{t0}, v{vA0}
    v_xor_b32 v{vA1}, 64, v{vA0}
    v_xor_b32 v{vA2}, 0x80, v{vA0}
    v_xor_b32 v{vA3}, 0xc0, v{vA0}
    v_lshrrev_b32 v1, 5, v{vL}
    v_mul_u32_u24 v{vQW}, 288, v1
    v_and_b32 v1, 31, v{vL}
    v_lshl_add_u32 v{vQW}, v1, 3, v{vQW}
    s_mul_i32 s{t0}, s{sK}, 576
    v_add_u32 v{vQW}, s{t0}, v{vQW}
    v_and_b32 v{u0}, 7, v{vN}
    v_mul_u32_u24 v{vQR}, 288, v{u0}
    v_lshl_add_u32 v{vQR}, v{vKB}, 4, v{vQR}
    v_lshrrev_b32 v1, 1, v{vKB}
    v_lshlrev_b32 v{vSW}, 8, v1
    v_lshl_add_u32 v{vSW}, v{u0}, 4, v{vSW}
    v_and_b32 v1, 1, v{vKB}
    v_lshl_add_u32 v{vSW}, v1, 3, v{vSW}
    s_and_b32 s{t0}, s{sK}, 1
    s_lshl_b32 s{t0}, s{t0}, 9
    s_lshr_b32 s{t1}, s{sK}, 1
    s_lshl_b32 s{t1}, s{t1}, 7
    s_add_u32 s{t0}, s{t0}, s{t1}
    v_add_u32 v{vSW}, s{t0}, v{vSW}
    v_lshrrev_b32 v{u1}, 2, v{vN}
    v_lshl_add_u32 v{u2}, v1, 2, v{u1}
    v_lshlrev_b32 v{u2}, 1, v{u2}
    v_and_b32 v{u3}, 3, v{vN}
    v_lshrrev_b32 v{u4}, 1, v{u3}
    s_lshl_b32 s{t0}, s{sK}, 2
    v_add_u32 v{u4}, s{t0}, v{u4}
    v_xor_b32 v{u4}, v{u4}, v{u2}
    v_lshlrev_b32 v{u4}, 4, v{u4}
    v_and_b32 v{u3}, 1, v{u3}
    v_lshl_add_u32 v{u4}, v{u3}, 3, v{u4}
    v_lshl_add_u32 v{u1}, v{vKB}, 3, v{u1}
    v_lshl_add_u32 v{vVA}, v{u1}, 8, v{u4}
    v_xor_b32 v{vVA+4}, 32, v{vVA}
    v_mul_u32_u24 v{vOW}, 144, v{u0}
    v_lshrrev_b32 v1, 3, v{vN}
    v_lshl_add_u32 v1, v1, 2, v{vKB}
    v_lshl_add_u32 v{vOW}, v1, 4, v{vOW}
    s_mul_i32 s{t0}, s{sK}, 1152
    v_add_u32 v{vOW}, s{t0}, v{vOW}
    v_lshrrev_b32 v{u1}, 3, v{vL}
    v_and_b32 v{u2}, 7, v{vL}
    v_mul_u32_u24 v{vOR}, 144, v{u1}
    v_lshl_add_u32 v{vOR}, v{u2}, 4, v{vOR}
    v_add_u32 v{vOR}, s{t0}, v{vOR}
    v_lshlrev_b32 v{u1}, 2, v{u1}
    v_add_u32 v{u1}, s{sK}, v{u1}
    v_add_u32 v1, s{sI}, v{u1}
    v_and_b32 v1, 31, v1
    v_lshlrev_b32 v1, 7, v1
    v_lshl_add_u32 v{vO2}, v{u1}, 12, v1
    v_lshl_add_u32 v{vO2}, v{u2}, 4, v{vO2}
    s_mov_b32 s{sN8}, 0x00ff00ff
    s_mov_b32 s{sN8+1}, 0x00ff00ff
    s_mov_b32 s{sSC}, 0x3db504f3
    s_mov_b32 s{sSC+1}, 0x3db504f3
    s_mov_b32 s{sB1}, 0xffff0000
    s_mov_b32 s{sB1+1}, 0xffff0000
    """)
    for d in range(4): a(f"v_mov_b32 v{ONES+d}, 0x3f803f80")
    a.gate(vF, KR, 1)
    for s, va in enumerate((vA0, vA1, vA2, vA3)): a(f"ds_read_b128 {R(KF+4*s)}, v{va} offset:{KL}")
    a.stamp(6)
    QD, QF = AQ, AQ + 4
    top, done = a.lab("q2"), a.lab("q2d")
    a(f"""
    {top}:
    global_load_dwordx4 {R(QD)}, v{vPR}, {S2(sA)} sc1
    s_waitcnt vmcnt(0)
    v_cmp_ne_u32 vcc, v{QD+2}, v{vT}
    s_cbranch_vccz {done}
    """)
    a.budget(top)
    a(f"{done}:\ns_setprio 3\nds_write_b64 v{vQW}, {R(QD,2)} offset:{QL}")
    a.sig_add(vZ, QC)
    a.stamp(7)
    top, done = a.lab("qs"), a.lab("qsd")
    a(f"{top}:\nds_read_b32 v1, v{vZ} offset:{QC}")
    for s in range(4): a(f"ds_read_b128 {R(QF+4*s)}, v{vQR} offset:{QL+64*s}")
    a(f"s_waitcnt lgkmcnt(0)\nv_readfirstlane_b32 s{t0}, v1\ns_cmp_eq_u32 s{t0}, 4\ns_cbranch_scc1 {done}")
    a.budget(top); a(f"{done}:")
    for s in range(4): a(f"v_mfma_f32_16x16x32_bf16 {R(ACC)}, {R(KF+4*s)}, {R(QF+4*s)}, {R(ACC) if s else 0}")
    a(f"""
    v_cvt_pk_bf16_f32 v{u0}, v{ACC}, v{ACC+1}
    v_cvt_pk_bf16_f32 v{u1}, v{ACC+2}, v{ACC+3}
    v_lshlrev_b32 v{ACC}, 16, v{u0}
    v_and_b32 v{ACC+1}, 0xffff0000, v{u0}
    v_lshlrev_b32 v{ACC+2}, 16, v{u1}
    v_and_b32 v{ACC+3}, 0xffff0000, v{u1}
    v_pk_mul_f32 {R(ACC,2)}, {R(ACC,2)}, {S2(sSC)}
    v_pk_mul_f32 {R(ACC+2,2)}, {R(ACC+2,2)}, {S2(sSC)}
    v_cvt_pk_bf16_f32 v{u0}, v{ACC}, v{ACC+1}
    v_cvt_pk_bf16_f32 v{u1}, v{ACC+2}, v{ACC+3}
    s_mov_b64 exec, {S2(sN8)}
    ds_write_b64 v{vSW}, {R(u0,2)} offset:{SL}
    """)
    a.sig_add(vZ, SC)
    SR, F, D = AQ, AQ + 4, AQ + 12
    top, done = a.lab("ss"), a.lab("ssd")
    a(f"{top}:\nds_read_b32 v1, v{vZ} offset:{SC}\nds_read_b128 {R(SR)}, v{vPR} offset:{SL}")
    a(f"s_waitcnt lgkmcnt(0)\nv_readfirstlane_b32 s{t0}, v1\ns_cmp_eq_u32 s{t0}, 8\ns_cbranch_scc1 {done}")
    a.budget(top); a(f"{done}:")
    for b in range(2):
        for H in range(2):
            for z in range(2):
                a(f"ds_read_b64_tr_b16 {R(VF+8*b+4*H+2*z,2)}, v{vVA+4*b} offset:{VL+8192*H+1024*z}")
    a.stamp(8)
    for e in range(4): a(f"v_lshlrev_b32 v{F+2*e}, 16, v{SR+e}\nv_and_b32 v{F+2*e+1}, 0xffff0000, v{SR+e}")
    a(f"""
    v_max3_f32 v{u0}, v{F}, v{F+1}, v{F+2}
    v_max3_f32 v{u1}, v{F+3}, v{F+4}, v{F+5}
    v_max3_f32 v{u0}, v{u0}, v{F+6}, v{F+7}
    v_max_f32 v{u0}, v{u0}, v{u1}
    v_max_f32_dpp v{u0}, v{u0}, v{u0} {DPP('row_ror:8')}
    """)
    a.rows_all(u0, u1, "v_max_f32")
    for e in range(4): a(f"v_pk_add_f32 {R(F+2*e,2)}, {R(F+2*e,2)}, {R(u0,2)} op_sel_hi:[1,0] neg_lo:[0,1] neg_hi:[0,1]")
    for e in range(4): a(f"v_pk_mul_f32 {R(F+2*e,2)}, {R(F+2*e,2)}, {S2(sL2E)}")
    for e in range(8): a(f"v_exp_f32 v{F+e}, v{F+e}")
    for e in range(4): a(f"v_cvt_pk_bf16_f32 v{SR+e}, v{F+2*e}, v{F+2*e+1}")
    a(f"ds_read_b32 v{u3}, v{vZ} offset:{VERD}\ns_waitcnt lgkmcnt(0)")
    a(f"v_mfma_f32_16x16x32_bf16 {R(ACC)}, {R(ONES)}, {R(SR)}, 0")
    for b in range(2):
        for H in range(2): a(f"v_mfma_f32_16x16x32_bf16 {R(D+8*b+4*H)}, {R(VF+8*b+4*H)}, {R(SR)}, 0")
    a.getverd(u3)
    a(f"v_add_f32_dpp v{u2}, v{ACC}, v{ACC} {DPP('row_ror:8')}\nv_cndmask_b32 v{u2}, v{u0}, v{u2}, {S2(sB1)}")
    for r in range(4): a(f"v_add_f32_dpp v{F+r}, v{D+4+r}, v{D+r} {DPP('row_ror:8', 0x3)}")
    for r in range(4): a(f"v_add_f32_dpp v{F+r}, v{D+8+r}, v{D+12+r} {DPP('row_ror:8', 0xc)}")
    a.embed(F, u2)
    a(f"ds_write_b128 v{vOW}, {R(F)} offset:{OT}\nds_read_b128 {R(F+4)}, v{vOR} offset:{OT}\ns_waitcnt lgkmcnt(0)")
    a.lstore(f"global_store_dwordx4 v{vO2}, {R(F+4)}, {S2(sB)}")
    a.sig_add(vZ, AP)
    a("s_setprio 0")
    a.stamp(9)
    a(f"s_cmp_ge_u32 s{sI}, 28\ns_cbranch_scc1 L_out")
    GD, vGA, vFA, vINV = AQ, vA0, vA1, vA2
    a(f"""
    s_lshl_b32 s{t0}, s{sI}, 2
    s_add_u32 s{t0}, s{t0}, s{sK}
    s_lshl_b32 s{t0}, s{t0}, 16
    s_lshl_b32 s{t1}, s{sJ}, 8
    s_add_u32 s{t0}, s{t0}, s{t1}
    """)
    a.sadd(sA, 20, f"s{t0}")
    a(f"s_mul_i32 s{t0}, s{sI}, {8*GUS}\ns_lshl_b32 s{t1}, s{sK}, 9\ns_add_u32 s{t0}, s{t0}, s{t1}\ns_add_u32 s{t0}, s{t0}, {GU}")
    a.sadd(sC, 26, f"s{t0}")
    a(f"s_lshl_b32 s{t0}, s{sJ}, 14\ns_lshl_b32 s{t1}, s{sI}, 7\ns_add_u32 s{t0}, s{t0}, s{t1}\ns_add_u32 s{t0}, s{t0}, {F1}")
    a.sadd(sB, 26, f"s{t0}")
    a(f"v_lshlrev_b32 v{vW}, 14, v{vKB}\nv_lshl_add_u32 v{vW}, v{vN}, 4, v{vW}\nv_mov_b32 v{vINV}, 0x3a800000\ns_mov_b32 s{sGC}, 0x3d372713")
    a.gatheraddr(vGA, GUS); a.slotaddr(vFA)
    for t in range(8):
        if t in P["dgate"]: a.gate(vF, PG, P["dgate"][t])
        if t == 0: a.stamp(10)
        a(f"global_load_dwordx4 {R(W+4*t)}, v{vW}, {S2(sA)} offset:{2048*(t&1)} nt")
        if t & 1 and t < 7: a(f"v_add_u32 v{vW}, 0x1000, v{vW}")
    a.stamp(11)
    a.poll(a.ld4(GD, vGA, sC, 128), GD, 4)
    a("s_setprio 3")
    a.stamp(12)
    w = XU
    a.extract(u0, GD)
    a(f"v_add_f32_dpp v{u0}, v{u0}, v{u0} {DPP('row_ror:8')}")
    a.redscat([(GD + 4 * c, w + 4 + 2 * c, w + 5 + 2 * c, w + c) for c in range(4)][:2])
    a(f"v_add_f32_dpp v{u0}, v{u0}, v{u0} {DPP('row_ror:4')}")
    a.redscat([(GD + 4 * c, w + 4 + 2 * c, w + 5 + 2 * c, w + c) for c in range(4)][2:])
    a(f"""
    v_add_f32_dpp v{u0}, v{u0}, v{u0} {DPP('quad_perm:[2,3,0,1]')}
    v_mul_f32_dpp v{u1}, v{u0}, v{vINV} {DPP('quad_perm:[0,0,2,2]')}
    v_mul_f32_dpp v{u2}, v{u0}, v{vINV} {DPP('quad_perm:[1,1,3,3]')}
    v_fma_f32 v{u2}, -v{u1}, v{u1}, v{u2}
    v_max_f32 v{u2}, 0, v{u2}
    v_add_f32 v{u2}, 0x3727c5ac, v{u2}
    v_rsq_f32 v{u2}, v{u2}
    v_fma_f32 v{w}, -v{u1}, v{w+1}, v{w}
    v_fma_f32 v{w+2}, -v{u1}, v{w+3}, v{w+2}
    v_mul_f32 v{w}, v{w}, v{u2}
    v_mul_f32 v{w+2}, v{w+2}, v{u2}
    v_cvt_pk_bf16_f32 v{u3}, v{w}, v{w+2}
    v_lshlrev_b32 v{w}, 16, v{u3}
    v_mul_f32 v{u0}, v{w}, v{w}
    v_mul_f32 v{u1}, 0xc0135761, v{w}
    v_fma_f32 v{u0}, v{u0}, s{sGC}, 1.0
    v_mul_f32 v{u0}, v{u0}, v{u1}
    v_exp_f32 v{u0}, v{u0}
    v_and_b32 v{u3}, 0xffff0000, v{u3}
    v_add_f32 v{u0}, 1.0, v{u0}
    v_rcp_f32 v{u0}, v{u0}
    v_mul_f32 v{u0}, v{u0}, v{w}
    v_cvt_pk_bf16_f32 v{u0}, v{u0}, v{u0}
    v_lshlrev_b32 v{u0}, 16, v{u0}
    v_mul_f32 v{u0}, v{u0}, v{u3}
    v_cvt_pk_bf16_f32 v{vH2}, v{u0}, v{u0}
    """)
    a.gemv([W], ACC, KF)
    a.stamp(13)
    a.publish(ACC, PD, CD, AQ, vFA, sB)
    a.stamp(14)
    a("s_branch L_out")

def role_o(a):
    P = a.P
    W, ACC, A0, D, WK = 16, 48, 52, 60, 80
    vK0, vV0, vW, vO3, vHA = 100, 104, 106, 107, 108
    u0, u1, u2, u3, u4, u5 = 110, 111, 112, 113, 114, 115
    a(f"""
    L_O:
    v_xor_b32 v1, v{vKB}, v{vN}
    v_lshlrev_b32 v1, 4, v1
    v_lshl_add_u32 v{vK0}, v{vKB}, 8, v1
    v_xor_b32 v{vK0+1}, 64, v{vK0}
    v_xor_b32 v{vK0+2}, 0x80, v{vK0}
    v_xor_b32 v{vK0+3}, 0xc0, v{vK0}
    v_lshlrev_b32 v1, 1, v{vKB}
    v_xor_b32 v1, v1, v{vN}
    v_lshlrev_b32 v1, 4, v1
    v_lshl_add_u32 v{vV0}, v{vKB}, 8, v1
    v_xor_b32 v{vV0+1}, 0x80, v{vV0}
    v_lshlrev_b32 v{vW}, 14, v{vKB}
    v_lshl_add_u32 v{vW}, v{vN}, 4, v{vW}
    s_waitcnt lgkmcnt(0)
    s_load_dword s{sT}, s[26:27], 0
    s_lshl_b32 s{t0}, s{sG}, 24
    s_and_b32 s{t1}, s{sJ}, 1
    s_lshl_b32 s{t1}, s{t1}, 5
    s_add_u32 s{t1}, s{t1}, s{sI}
    s_lshl_b32 s{t1}, s{t1}, 14
    s_add_u32 s{t0}, s{t0}, s{t1}
    s_lshl_b32 s{t1}, s{sK}, 12
    s_add_u32 s{t0}, s{t0}, s{t1}
    s_add_u32 s{t0}, s{t0}, {KOFF}
    """)
    a.sadd(sA, 6, f"s{t0}"); a.sadd(sB, 8, f"s{t0}")
    a(f"""
    s_lshl_b32 s{t0}, s{sI}, 2
    s_add_u32 s{t0}, s{t0}, s{sK}
    s_lshl_b32 s{t0}, s{t0}, 16
    s_lshl_b32 s{t1}, s{sJ}, 8
    s_add_u32 s{t0}, s{t0}, s{t1}
    """)
    a.sadd(sC, 12, f"s{t0}")
    a.consts(); a.masks(); a.pwaddr(1024); a.slotaddr(vHA)
    a(f"""
    v_lshrrev_b32 v1, 1, v{vN}
    v_and_b32 v1, 1, v1
    v_lshlrev_b32 v{vO3}, 12, v1
    v_and_b32 v1, 1, v{vN}
    v_lshl_add_u32 v{vO3}, v1, 4, v{vO3}
    v_lshl_add_u32 v{vO3}, v{vKB}, 5, v{vO3}
    s_mov_b32 s{sB2}, 0xf0f0f0f0
    s_mov_b32 s{sB2+1}, 0xf0f0f0f0
    s_mov_b32 s{sB3}, 0xff00ff00
    s_mov_b32 s{sB3+1}, 0xff00ff00
    s_lshl_b32 s{t3}, s{sK}, 12
    s_add_u32 m0, s{t3}, {KL}
    """)
    a.epoch_barrier()
    a.stamp(1)
    win = P["owin"]; landed = -1
    def land(n, issued):
        nonlocal landed
        if n > landed:
            a(f"s_waitcnt vmcnt({issued-1-n})")
            for x in range(landed + 1, n + 1):
                if x == 3: a.sig_add(vF, KR); a.stamp(3)
                if x == 7: a.sig_add(vZ, SC); a.stamp(4)
                if x in P["osig"]: a.sig_add(vF, PO)
            landed = n
    for m in range(16):
        if m in P["ogate"]: a.gate(vF, PX, P["ogate"][m])
        if P["e1gate"] is not None and m == P["e1gate"]:
            l = a.lab("e1g"); a(f"s_cmp_lt_u32 s{sI}, 28\ns_cbranch_scc1 {l}"); a.gate(vZ, E1A, 1); a(f"{l}:")
        if m - win >= 0: land(m - win, m)
        if m == 0: a.stamp(2)
        if m < 4: a(f"global_load_lds_dwordx4 v{vK0+m}, {S2(sA)} offset:{1024*m} nt")
        elif m < 8:
            if m == 4: a(f"s_add_u32 m0, s{t3}, {VL}")
            a(f"global_load_lds_dwordx4 v{vV0+((m-4)>>1)}, {S2(sB)} offset:{1024*(m-4)} nt")
        else:
            t = m - 8
            a(f"global_load_dwordx4 {R(W+4*t)}, v{vW}, {S2(sC)} offset:{2048*(t&1)} nt")
            if t & 1 and t < 7: a(f"v_add_u32 v{vW}, 0x1000, v{vW}")
    for x in sorted(set([3, 7] + list(P["osig"]) + [15])): land(x, 16)
    a.stamp(5)
    l = a.lab("oe")
    a(f"s_cmp_lt_u32 s{sI}, 28\ns_cbranch_scc1 {l}")
    a(f"s_sub_u32 s{t3}, s{sI}, 28\ns_lshl_b32 s{t3}, s{t3}, 2\ns_add_u32 s{t3}, s{t3}, s{sK}\ns_lshl_b32 s{t3}, s{t3}, 1\ns_add_u32 s{t3}, s{t3}, 1")
    a.e2a(t3, D, WK)
    a(f"{l}:")
    a.stamp(6)
    a(f"""
    s_lshr_b32 s{t0}, s{sI}, 3
    s_lshl_b32 s{t0}, s{t0}, 6
    s_and_b32 s{t1}, s{sI}, 7
    s_lshl_b32 s{t1}, s{t1}, 2
    s_add_u32 s{t0}, s{t0}, s{t1}
    s_add_u32 s{t0}, s{t0}, s{sK}
    s_lshl_b32 s{t0}, s{t0}, 7
    s_add_u32 s{t0}, s{t0}, {O3}
    """)
    a.sadd(sA, 26, f"s{t0}")
    a(f"s_lshl_b32 s{t0}, s{sJ}, 14\ns_lshl_b32 s{t1}, s{sI}, 7\ns_add_u32 s{t0}, s{t0}, s{t1}\ns_add_u32 s{t0}, s{t0}, {H1}")
    a.sadd(sB, 26, f"s{t0}")
    a.gate(vZ, AP, 4)
    a.poll(f"global_load_dwordx4 {R(D)}, v{vO3}, {S2(sA)} sc1", D, 1)
    a("s_setprio 3")
    a.stamp(7)
    a.extract(u0, D)
    a(f"""
    v_cndmask_b32 v{u4}, v{D}, v{D+1}, {S2(sB2)}
    v_cndmask_b32 v{u5}, v{D+2}, v{D+3}, {S2(sB2)}
    v_mov_b32_dpp v{u1}, v{u0} {DPP('quad_perm:[0,0,2,2]')}
    v_cndmask_b32 v{u4}, v{u4}, v{u5}, {S2(sB3)}
    v_max_f32_dpp v{u2}, v{u0}, v{u1} {DPP('quad_perm:[2,2,0,0]')}
    v_sub_f32 v{u1}, v{u1}, v{u2}
    v_mul_f32 v{u1}, s{sL2E}, v{u1}
    v_exp_f32 v{u1}, v{u1}
    v_mul_f32 v{u4}, v{u4}, v{u1}
    v_mul_f32_dpp v{u0}, v{u0}, v{u1} {DPP('quad_perm:[1,1,3,3]')}
    v_add_f32_dpp v{u4}, v{u4}, v{u4} {DPP('quad_perm:[2,3,0,1]')}
    v_add_f32_dpp v{u0}, v{u0}, v{u0} {DPP('quad_perm:[2,3,0,1]')}
    v_rcp_f32 v{u0}, v{u0}
    v_mul_f32 v{u4}, v{u4}, v{u0}
    v_cvt_pk_bf16_f32 v{vH2}, v{u4}, v{u4}
    """)
    a.gemv([W], ACC, A0)
    a.stamp(8)
    a.publish(ACC, POo, CO, D, vHA, sB)
    a.stamp(9)
    a("s_branch L_out")

def role_g(a):
    P = a.P
    WG, WU, ACC, A0, D, WK = 16, 48, 80, 88, 96, 128
    vW, vX, vGA, vSA, vST = 146, 147, 148, 149, 150
    u0, u1, u2, u3 = 152, 153, 154, 155
    a(f"""
    L_G:
    v_mov_b32 v1, 0
    v_lshlrev_b32 v{u0}, 2, v{vL}
    ds_write_b32 v{u0}, v1
    s_waitcnt lgkmcnt(0)
    s_load_dword s{sT}, s[26:27], 0
    """)
    a.consts(); a.gatheraddr(vGA, 128)
    a.epoch_barrier()
    a.stamp(1)
    if P["local"]:
        l = a.lab("nv"); top, done = a.lab("xt"), a.lab("xtd")
        a(f"""
        s_cmp_eq_u32 s{sK}, 3
        s_cbranch_scc0 {l}
        s_getreg_b32 s{t0}, hwreg(HW_REG_XCC_ID, 0, 4)
        s_add_u32 s{t0}, s{t0}, s{sT}
        s_lshl_b32 s{t1}, s{sJ}, 7
        s_add_u32 s{t1}, s{t1}, {XT}
        """)
        a.sadd(sA, 26, f"s{t1}")
        a(f"""
        s_lshl_b32 s{t1}, s{sI}, 2
        v_mov_b32 v{u0}, s{t1}
        v_mov_b32 v{u1}, s{t0}
        s_mov_b64 exec, 1
        global_store_dword v{u0}, v{u1}, {S2(sA)} sc1
        s_mov_b64 exec, -1
        v_and_b32 v{u0}, 31, v{vL}
        v_lshlrev_b32 v{u0}, 2, v{u0}
        {top}:
        global_load_dword v{u2}, v{u0}, {S2(sA)} sc1
        s_waitcnt vmcnt(0)
        v_sub_u32 v{u3}, v{u2}, v{vT}
        v_cmp_le_u32 vcc, 16, v{u3}
        s_cbranch_vccz {done}
        s_sleep 2
        """)
        a.budget(top)
        a(f"""
        {done}:
        v_cmp_ne_u32 vcc, v{u2}, v{u1}
        s_cmp_eq_u64 vcc, 0
        s_cselect_b32 s{t0}, 1, 2
        v_mov_b32 v{u2}, s{t0}
        ds_write_b32 v{vZ}, v{u2} offset:{VERD}
        """)
        a.stamp(2)
        a(f"{l}:")
    a(f"s_cmp_ge_u32 s{sI}, 28\ns_cbranch_scc1 L_R")
    a.xload(vX, sK)
    a(f"""
    s_lshl_b32 s{t0}, s{sJ}, 2
    s_add_u32 s{t0}, s{t0}, s{sK}
    s_mul_i32 s{t0}, s{t0}, {32*7168}
    s_lshl_b32 s{t1}, s{sI}, 8
    s_add_u32 s{t0}, s{t0}, s{t1}
    v_mul_u32_u24 v{vW}, {8*7168}, v{vKB}
    v_lshl_add_u32 v{vW}, v{vN}, 4, v{vW}
    """)
    a.sadd(sA, 16, f"s{t0}"); a.sadd(sB, 18, f"s{t0}")
    a(f"s_lshl_b32 s{t0}, s{sI}, 3\ns_add_u32 s{t0}, s{t0}, s{sJ}\ns_mul_i32 s{t0}, s{t0}, {GUS}\ns_add_u32 s{t0}, s{t0}, {GU}")
    a.sadd(sD, 26, f"s{t0}")
    a.masks(); a.pwaddr(2048)
    a(f"""
    v_and_b32 v1, 1, v{vN}
    v_lshlrev_b32 v1, 4, v1
    v_mov_b32 v{u0}, 0x3f80
    v_lshlrev_b32 v{u0}, v1, v{u0}
    v_lshrrev_b32 v1, 1, v{vN}
    """)
    for d in range(4): a(f"v_cmp_eq_u32 vcc, {4+d}, v1\nv_cndmask_b32 v{A0+d}, 0, v{u0}, vcc\nv_mov_b32 v{A0+4+d}, v{A0+d}")
    a(f"""
    v_and_b32 v1, 31, v{vL}
    v_lshrrev_b32 v1, 3, v1
    v_lshlrev_b32 v{vSA}, 9, v1
    v_lshrrev_b32 v1, 5, v{vL}
    v_lshl_add_u32 v{vSA}, v1, 7, v{vSA}
    v_and_b32 v1, 7, v{vL}
    v_lshl_add_u32 v{vSA}, v1, 4, v{vSA}
    v_and_b32 v1, 2, v{vN}
    v_lshl_add_u32 v{vST}, v1, 3, v{vF}
    v_and_b32 v1, 1, v{vN}
    v_lshlrev_b32 v{vST+1}, 4, v1
    s_mov_b32 s{sB1}, 0xcccccccc
    s_mov_b32 s{sB1+1}, 0xcccccccc
    s_waitcnt vmcnt(0)
    v_lshlrev_b32 v{vX}, 16, v{vX}
    """)
    win = P["gwin"]
    for m in range(16):
        if m in P["ggate"]: a.gate(vF, PO, P["ggate"][m])
        if m - win >= 0: a(f"s_waitcnt vmcnt({win-1})")
        if m == 0: a.stamp(3)
        t = m >> 1
        a(f"global_load_dwordx4 {R((WU if m & 1 else WG)+4*t)}, v{vW}, {S2(sB if m & 1 else sA)} nt")
        if m & 1 and t < 7: a(f"v_add_u32 v{vW}, 7168, v{vW}")
    a.stamp(4)
    sig = f"s_mov_b64 exec, 1\nds_add_u32 v{vF}, v{vONE} offset:{PG}\ns_mov_b64 exec, -1"
    a.hgather(sK, vGA, vX, D, WK, first=sig + "\ns_waitcnt vmcnt(4)\n" + sig)
    a.stamp(5)
    hv, z, zt = WK, WK + 1, WK + 2
    fill = [f"v_cndmask_b32 v{z}, 1.0, v{hv}, {S2(sB1)}", f"v_mul_f32 v{z}, v{z}, v{hv}"]
    fill += [f"v_add_f32_dpp v{z}, v{z}, v{z} {DPP(c)}" for c in ("quad_perm:[1,0,3,2]", "row_ror:4", "row_ror:8")]
    fill += [f"v_mov_b32 v{zt}, v{z}", f"v_permlane16_swap_b32 v{z}, v{zt}", f"v_add_f32 v{z}, v{z}, v{zt}",
             f"v_mov_b32 v{zt}, v{z}", f"v_permlane32_swap_b32 v{z}, v{zt}", f"v_add_f32 v{z}, v{z}, v{zt}",
             f"s_mov_b64 exec, 5\nds_write_b32 v{vST}, v{z} offset:{ST}\ns_mov_b64 exec, -1"]
    a.gemv([WG, WU], ACC, A0, bank=0x3, fill=fill)
    a.stamp(6)
    skip = a.lab("pub")
    a(f"""
    ds_write_b128 v{vPW}, {R(ACC)} offset:{PGU}
    ds_write_b128 v{vPW}, {R(ACC+4)} offset:{PGU+1024}
    s_mov_b64 exec, 1
    ds_add_rtn_u32 v1, v{vZ}, v{vONE} offset:{CG}
    s_mov_b64 exec, -1
    ds_read_b128 {R(WK+4)}, v{vST+1} offset:{ST}
    """)
    for m in range(2):
        for w in range(4): a(f"ds_read_b128 {R(D+16*m+4*w)}, v{vPR} offset:{PGU+2048*w+1024*m}")
    a(f"""
    s_waitcnt lgkmcnt(0)
    v_readfirstlane_b32 s{t0}, v1
    v_pk_add_f32 {R(WK+4,2)}, {R(WK+4,2)}, {R(WK+6,2)}
    s_cmp_eq_u32 s{t0}, 3
    s_cbranch_scc0 {skip}
    v_add_f32 v{WK+4}, v{WK+4}, v{WK+5}
    """)
    a.sum4(D)
    a.embed(D, WK + 4)
    a(f"global_store_dwordx4 v{vSA}, {R(D)}, {S2(sD)} sc1")
    a.sum4(D + 16)
    a(f"v_perm_b32 v{D+16}, v{D+16}, v{vT}, s{sTAG}\nglobal_store_dwordx4 v{vSA}, {R(D+16)}, {S2(sD)} offset:256 sc1\n{skip}:")
    a.stamp(7)
    a("s_branch L_out")
    sR = sSET
    a(f"L_R:\n; @reset\ns_sub_u32 s{sR}, s{sI}, 28")
    l1, l2, l3 = a.lab("r1"), a.lab("r2"), a.lab("r3")
    a(f"s_cmp_eq_u32 s{sK}, 0\ns_cbranch_scc0 {l1}")
    a(f"""
    s_lshl_b32 s{t0}, s{sJ}, 2
    s_add_u32 s{t0}, s{t0}, s{sR}
    s_lshl_b32 s{t1}, s{t0}, 12
    s_add_u32 s{t1}, s{t1}, {Q1}
    """)
    a.sadd(sA, 26, f"s{t1}")
    a(f"s_lshl_b32 s{t1}, s{t0}, 9\ns_add_u32 s{t1}, s{t1}, {Q2}")
    a.sadd(sB, 26, f"s{t1}")
    a("s_setprio 3")
    a.poll(a.ld4(D, vPR, sA, 1024), D, 4)
    a.stamp(3)
    a.sum4(D)
    a(f"""
    v_permlane32_swap_b32 v{D}, v{D+2}
    v_permlane32_swap_b32 v{D+1}, v{D+3}
    v_pk_add_f32 {R(D,2)}, {R(D,2)}, {R(D+2,2)}
    v_mov_b32 v{D+6}, v{vT}
    v_mov_b32 v{D+7}, v{vT}
    v_cvt_pk_bf16_f32 v{D+4}, v{D}, v{D+1}
    v_mov_b32 v{D+5}, v{D+4}
    v_permlane32_swap_b32 v{D+4}, v{D+5}
    s_mov_b32 exec_hi, 0
    global_store_dwordx4 v{vPR}, {R(D+4)}, {S2(sB)} sc1
    s_mov_b32 exec_hi, -1
    s_setprio 0
    """)
    a.sig_add(vZ, E1A)
    a.stamp(4)
    a(f"s_branch {l3}\n{l1}:\n; @reset")
    a.xload(vX, sR)
    if P["prewarm"]:
        a(f"s_cmp_eq_u32 s{sK}, 1\ns_cbranch_scc0 {l2}")
        a(f"s_lshl_b32 s{t1}, s{sJ}, 14\ns_lshl_b32 s{t2}, s{sR}, 12\ns_add_u32 s{t1}, s{t1}, s{t2}\ns_add_u32 s{t2}, s{t1}, {H1}")
        a.sadd(sA, 26, f"s{t2}")
        a(f"s_add_u32 s{t2}, s{t1}, {F1}")
        a.sadd(sB, 26, f"s{t2}")
        a(a.ld4(WG, vPR, sA, 1024)); a(a.ld4(WG + 16, vPR, sB, 1024))
        a(f"{l2}:")
        a(f"s_lshl_b32 s{t1}, s{sJ}, 17\ns_lshl_b32 s{t2}, s{sR}, 15\ns_add_u32 s{t1}, s{t1}, s{t2}\ns_add_u32 s{t1}, s{t1}, {O2}\ns_lshl_b32 s{t2}, s{sK}, 13\ns_add_u32 s{t2}, s{t2}, s{t1}")
        a.sadd(sA, 26, f"s{t2}")
        a(f"v_add_u32 v{u0}, 0x1000, v{vPR}")
        a(a.ld4(WU, vPR, sA, 1024)); a(a.ld4(WU + 16, u0, sA, 1024))
        l4 = a.lab("r4")
        a(f"s_cmp_eq_u32 s{sK}, 2\ns_cbranch_scc0 {l4}")
        a.sadd(sA, 26, f"s{t1}")
        a(a.ld4(WG, vPR, sA, 1024)); a(a.ld4(WG + 16, u0, sA, 1024))
        a(f"{l4}:")
    a(f"s_waitcnt vmcnt(0)\nv_lshlrev_b32 v{vX}, 16, v{vX}")
    a(f"{l3}:\ns_lshl_b32 s{t3}, s{sR}, 2\ns_add_u32 s{t3}, s{t3}, s{sK}\ns_lshl_b32 s{t3}, s{t3}, 1")
    a.e2a(t3, D, WK)
    a.stamp(5)
    a(f"s_cmp_eq_u32 s{sK}, 1\ns_cbranch_scc0 L_out")
    a.hgather(sR, vGA, vX, D, WK)
    a.stamp(6)
    a(f"s_lshl_b32 s{t1}, s{sJ}, 14\ns_lshl_b32 s{t2}, s{sR}, 12\ns_add_u32 s{t1}, s{t1}, s{t2}\ns_add_u32 s{t1}, s{t1}, {F1}")
    a.sadd(sC, 26, f"s{t1}")
    a(f"""
    v_mov_b32 v{D+13}, 0
    v_mov_b32 v{D+14}, 0
    v_mov_b32 v{D+15}, 0
    s_mov_b32 s{sN8}, 0x00ff00ff
    s_mov_b32 s{sN8+1}, 0x00ff00ff
    s_mov_b32 s{sB1}, 0x33333333
    s_mov_b32 s{sB1+1}, 0x33333333
    v_and_b32 v1, 1, v{vN}
    v_lshlrev_b32 v1, 3, v1
    v_lshl_add_u32 v1, v{vKB}, 4, v1
    v_lshrrev_b32 v{u0}, 2, v{vN}
    v_lshl_add_u32 v{u0}, v{u0}, 1, v1
    s_lshl_b32 s{t1}, s{sJ}, 8
    s_lshl_b32 s{t2}, s{sR}, 6
    s_add_u32 s{t1}, s{t1}, s{t2}
    v_add_u32 v{u0}, s{t1}, v{u0}
    """)
    ll = a.ld4(D, vGA, sC, 1024).split("\n")
    loads = "\n".join(ll[:3] + [f"s_mov_b64 exec, {S2(sN8)}", ll[3], "s_mov_b64 exec, -1"])
    a.poll(loads, D, 4, pre=f"v_mov_b32 v{D+12}, v{vT8}")
    a.stamp(7)
    a.sum4(D)
    a.redscat([(D, WK + 2, WK + 3, WK + 1)])
    a(f"""
    v_cvt_pk_bf16_f32 v{WK+1}, v{WK+1}, v{WK+1}
    v_lshlrev_b32 v{WK+1}, 16, v{WK+1}
    v_add_f32 v{WK+1}, v{WK+1}, v{WK}
    v_cvt_pk_bf16_f32 v{WK+1}, v{WK+1}, v{WK+1}
    s_mov_b64 exec, {S2(sB1)}
    global_store_short v{u0}, v{WK+1}, s[22:23]
    s_mov_b64 exec, 1
    s_cmp_eq_u32 s2, 224
    s_cbranch_scc0 L_fin
    global_store_dword v{vZ}, v{vT}, s[26:27] sc1
    L_fin:
    s_mov_b64 exec, -1
    """)
    a.stamp(8)

def gen(**kw):
    P = dict(DEF); P.update(kw)
    a = K(P)
    a.stamp(0)
    a(f"""
    s_cmp_ge_u32 s2, 256
    s_cbranch_scc1 L_end
    s_load_dwordx16 s[4:19], s[0:1], 0
    s_load_dwordx8 s[20:27], s[0:1], 64
    v_lshrrev_b32 v1, 6, v0
    v_and_b32 v0, 63, v0
    v_readfirstlane_b32 s3, v1
    v_and_b32 v{vN}, 15, v0
    v_lshrrev_b32 v{vKB}, 4, v0
    s_and_b32 s{sJ}, s2, 7
    s_lshr_b32 s{sI}, s2, 3
    s_lshr_b32 s{sG}, s{sJ}, 1
    s_mov_b32 s{sBUD}, {P['bud']}
    s_and_b32 s{sK}, s3, 3
    s_lshr_b32 s{sSET}, s3, 2
    """)
    if P["dev"]:
        for i in range(1, 15): a(f"s_mov_b32 s{STAMP0+2*i}, 0")
    a(f"""
    s_cmp_eq_u32 s{sSET}, 1
    s_cbranch_scc1 L_O
    s_cmp_eq_u32 s{sSET}, 2
    s_cbranch_scc1 L_G
    """)
    role_x(a); a("; @reset"); role_o(a); a("; @reset"); role_g(a)
    a("L_out:")
    def wait_until(reg):
        top = a.lab("wu")
        a(f"{top}:\ns_sleep 8\ns_memrealtime s[{t2}:{t2+1}]\ns_waitcnt lgkmcnt(0)\ns_sub_u32 s{t2}, s{t2}, s{reg}\ns_cmp_gt_i32 s{t2}, 0\ns_cbranch_scc0 {top}")
    if P["dev"] == 3:
        wg, wv, st = P["enc"]
        a(f"s_waitcnt lgkmcnt(0)\ns_cmp_eq_u32 s2, {wg}\ns_cbranch_scc0 L_end\ns_cmp_eq_u32 s3, {wv}\ns_cbranch_scc0 L_end\ns_add_u32 s{t0}, s{STAMP0+2*st}, 4000")
        wait_until(t0)
    if P["dev"] == 2:
        a(f"s_waitcnt lgkmcnt(0)\ns_add_u32 s{t0}, s{STAMP0}, 4000")
        wait_until(t0)
        a(f"v_mov_b32 v1, 0\ns_not_b32 s{t0}, s{STAMP0}\nv_writelane_b32 v1, s{t0}, 0\nv_writelane_b32 v1, s{STAMP0}, 1")
        lx, lo, lr, le = a.lab("dx"), a.lab("do"), a.lab("dr"), a.lab("de")
        def put(m):
            for slot, st in m.items(): a(f"v_writelane_b32 v1, s{STAMP0+2*st}, {slot}")
        a(f"s_lshr_b32 s{t1}, s3, 2\ns_cmp_eq_u32 s{t1}, 0\ns_cbranch_scc1 {lx}\ns_cmp_eq_u32 s{t1}, 1\ns_cbranch_scc1 {lo}\ns_cmp_ge_u32 s{sI}, 28\ns_cbranch_scc1 {lr}")
        put({12: 5, 13: 7}); a(f"s_branch {le}\n{lx}:")
        put({2: 1, 3: 2, 4: 4, 5: 5, 7: 7, 8: 9, 14: 14}); a(f"s_branch {le}\n{lo}:")
        put({10: 7, 11: 9}); a(f"s_branch {le}\n{lr}:")
        put({6: 4, 9: 5, 15: 8}); a(f"{le}:")
        a(f"""
        s_cmp_ge_u32 s{sK}, 2
        s_cbranch_scc1 L_end
        v_lshlrev_b32 v2, 2, v0
        s_mov_b64 exec, 0xffff
        global_atomic_umax v2, v1, s[24:25] sc1
        """)
    if P["dev"] == 1:
        a("s_waitcnt lgkmcnt(0)")
        for i in range(15): a(f"v_writelane_b32 v1, s{STAMP0+2*i}, {i}")
        a(f"""
        v_writelane_b32 v1, s{sBUD}, 15
        s_lshl_b32 s{t0}, s2, 4
        s_add_u32 s{t0}, s{t0}, s3
        s_lshl_b32 s{t0}, s{t0}, 6
        s_add_u32 s{t0}, s{t0}, {128<<20}
        v_lshlrev_b32 v2, 2, v0
        v_add_u32 v2, s{t0}, v2
        s_mov_b64 exec, 0xffff
        global_store_dword v2, v1, s[26:27]
        """)
    a("L_end:\ns_endpgm")
    body = a.finish()
    assert a.maxv <= 168, a.maxv
    return wrap([(KNAME, body, 256, 768, LDS, a.maxv)]), a

if __name__ == "__main__":
    kw = eval("dict(" + (sys.argv[2] if len(sys.argv) > 2 else "") + ")")
    s, a = gen(**kw)
    open(sys.argv[1], "w").write(s)
    print("vgpr", a.maxv, "sgpr", a.maxs, "lines", s.count("\n"), "nops", s.count("s_nop"))
```

```python
import sys, re
from asm import *
import u2 as U
def waitcode(reg):
    return f"""
    s_movk_i32 s95, 500
    wu_x:
    s_sub_u32 s95, s95, 1
    s_cbranch_scc1 wu_e
    s_sleep 4
    s_memrealtime s[98:99]
    s_waitcnt lgkmcnt(0)
    s_sub_u32 s98, s98, s{reg}
    s_cmp_gt_i32 s98, 0
    s_cbranch_scc0 wu_x
    wu_e:
    """
def body(**kw):
    s, a = U.gen(dev=0, bud=1000000, **kw)
    b = s.split(KNAME + ":\n")[1].split(".section")[0]
    return b, a.maxv
def tiny_rec():
    return """
    s_memrealtime s[64:65]
    s_cmp_ge_u32 s2, 1
    s_cbranch_scc1 T_end
    s_load_dwordx2 s[26:27], s[0:1], 88
    s_waitcnt lgkmcnt(0)
    v_mov_b32 v1, s64
    v_mov_b32 v2, 0x100
    global_store_dword v2, v1, s[26:27]
T_end:
    s_endpgm
"""
def tiny_wait():
    return """
    s_cmp_ge_u32 s2, 1
    s_cbranch_scc1 T_end
    s_load_dwordx2 s[26:27], s[0:1], 88
    s_waitcnt lgkmcnt(0)
    s_load_dword s96, s[26:27], 0x100
    s_waitcnt lgkmcnt(0)
    s_add_u32 s96, s96, 4000
""" + waitcode(96) + """
T_end:
    s_endpgm
"""
sel = "L_out:\n    s_waitcnt lgkmcnt(0)\n    s_cmp_eq_u32 s2, 0\n    s_cbranch_scc0 L_end\n    s_cmp_eq_u32 s3, 0\n    s_cbranch_scc0 L_end\n"
b, v = body()
st0 = "    s_memrealtime s[64:65]\n"
A_ = b.replace("L_out:\n", sel + "    s_load_dword s96, s[26:27], 0x100\n    s_waitcnt lgkmcnt(0)\n    s_add_u32 s96, s96, 4000\n" + waitcode(96))
open("../cdna_kernels/ovA.s", "w").write(wrap([("tiny_kernel", tiny_rec(), 1, 64, 0, 8), (KNAME, A_, 256, 768, U.LDS, v)]))
B_ = st0 + b.replace("L_out:\n", sel + "    v_mov_b32 v1, s64\n    v_mov_b32 v2, 0x100\n    global_store_dword v2, v1, s[26:27]\n")
open("../cdna_kernels/ovB.s", "w").write(wrap([(KNAME, B_, 256, 768, U.LDS, v), ("tiny_kernel", tiny_wait(), 1, 64, 0, 8)]))
def single(b): return st0 + b.replace("L_out:\n", sel + "    s_add_u32 s96, s64, 4000\n" + waitcode(96))
open("../cdna_kernels/ovS.s", "w").write(wrap([(KNAME, single(b), 256, 768, U.LDS, v)]))
open("../cdna_kernels/ovD.s", "w").write(wrap([(KNAME, single(b), 256, 768, 160*1024, v)]))
b0, v0 = body(local=0)
open("../cdna_kernels/ovC.s", "w").write(wrap([(KNAME, single(b0), 256, 768, U.LDS, v0)]))
E_ = b
open("../cdna_kernels/ovE.s", "w").write(wrap([("tiny_kernel", tiny_rec(), 1, 64, 0, 8), (KNAME, E_, 256, 768, U.LDS, v), ("tinyw_kernel", tiny_wait().replace("T_end", "W_end"), 1, 64, 0, 8)]))
```

```python
import sys
from asm import *
KOFF = (65536 - 4096) * 256
XT, QB, O2, HB, F1, GU = 0x1000, 0x10000, 0x40000, 0xC0000, 0xE0000, 0x100000
PX, PK, QC, SC, CQ, CO, CG, CC, CD, VERD, OG = 0, 16, 32, 36, 40, 44, 48, 52, 56, 60, 64
QL, SL, ST, OT, PGU, KL, VL, LDS = 256, 2560, 4608, 4864, 9728, 26624, 59392, 92160
PQ, PO, PD = 1024, 5120, 9216
sJ, sI, sG, sK, sX, sT, sBUD, sVERD = 28, 29, 30, 31, 32, 33, 40, 41
sTAG, sE1, sE2, sE3, sX1, sX2, sL2E, sGC = 34, 35, 36, 37, 38, 39, 42, 44
sB1, sN8, sSC = 46, 48, 50
sA, sB, sC, sD, sE = 52, 54, 56, 58, 60
t0, t1, t2, t3 = 96, 97, 98, 99
STAMP0 = 64
vL, vN, vKB, vT, vT8, vZ, vONE, vM = 0, 2, 3, 4, 5, 6, 7, 8
vF, vPW, vPR, vH2 = 12, 13, 14, 15
DEF = dict(dev=1, bud=20000, local=1, gsleep=1, prewarm=1,
           xsig={11: 1, 15: 2},
           wgate={0: 1}, wwin={2: 1, 4: 1},
           kwin={2: 1}, ksig={1: 1},
           vgate={0: 1}, vwin={},
           gq=4, gwin={}, dgate=4, dwin={}, psleep=0)

def R(b, n=4): return f"v[{b}:{b+n-1}]"
def S2(b): return f"s[{b}:{b+1}]"
def DPP(ctl, bank=0xf): return f"{ctl} row_mask:0xf bank_mask:{bank:#x}"

class K(A):
    def __init__(a, P):
        super().__init__(); a.P = P
    def stamp(a, i):
        if a.P["dev"]: a(f"s_memrealtime s[{STAMP0+2*i}:{STAMP0+2*i+1}]")
    def lg(a, n): return 0 if a.P["dev"] else n
    def budget(a, top):
        a(f"s_sub_u32 s{sBUD}, s{sBUD}, 1\ns_cbranch_scc0 {top}\ns_mov_b32 s{sBUD}, 0")
    def gate(a, addr, off, thr, sleep=None, tmp=1):
        top, done = a.lab("gt"), a.lab("gd")
        if sleep is None: sleep = a.P["gsleep"]
        a(f"{top}:\nds_read_b32 v{tmp}, v{addr} offset:{off}\ns_waitcnt lgkmcnt(0)\nv_readfirstlane_b32 s{t0}, v{tmp}\ns_cmp_ge_u32 s{t0}, {thr}\ns_cbranch_scc1 {done}")
        if sleep: a(f"s_sleep {sleep}")
        a.budget(top); a(f"{done}:")
    def sig_add(a, addr, off):
        a(f"s_mov_b64 exec, 1\nds_add_u32 v{addr}, v{vONE} offset:{off}\ns_mov_b64 exec, -1")
    def sadd(a, d, base, off):
        a(f"s_add_u32 s{d}, s{base}, {off}\ns_addc_u32 s{d+1}, s{base+1}, 0")
    def bf(a, v):
        a(f"v_cvt_pk_bf16_f32 v{v}, v{v}, v{v}\nv_lshlrev_b32 v{v}, 16, v{v}")
    def masks(a, full):
        a(f"""
        v_and_b32 v1, 1, v{vN}
        v_lshlrev_b32 v1, 4, v1
        v_mov_b32 v{vM+3}, 0xffff
        v_lshlrev_b32 v1, v1, v{vM+3}
        v_lshrrev_b32 v{vH2}, 1, v{vN}
        """)
        if full: a(f"v_and_b32 v{vM+3}, 2, v{vKB}\nv_lshlrev_b32 v{vM+3}, 1, v{vM+3}\nv_xor_b32 v{vH2}, v{vH2}, v{vM+3}")
        for d in range(4): a(f"v_cmp_eq_u32 vcc, {d}, v{vH2}\nv_cndmask_b32 v{vM+d}, 0, v1, vcc")
    def consts(a):
        a(f"""
        s_mov_b32 s{sTAG}, 0x07060500
        s_mov_b32 s{sE1}, 0x07060501
        s_mov_b32 s{sE2}, 0x07060502
        s_mov_b32 s{sE3}, 0x07060503
        s_mov_b32 s{sX1}, 0x04000c0c
        s_mov_b32 s{sX2}, 0x0706000c
        s_mov_b32 s{sL2E}, 0x3fb8aa3b
        s_mov_b32 s{sL2E+1}, 0x3fb8aa3b
        s_mov_b32 s{sVERD}, 0
        v_mov_b32 v{vZ}, 0
        v_mov_b32 v{vONE}, 1
        v_mov_b32 v{vF}, s{sK}
        v_lshlrev_b32 v{vF}, 2, v{vF}
        v_lshlrev_b32 v{vPR}, 4, v{vL}
        """)
    def pwaddr(a, sidx, stride):
        a(f"""
        v_and_b32 v1, 1, v{vKB}
        v_lshlrev_b32 v1, 4, v1
        v_lshl_or_b32 v{vPW}, v{vN}, 5, v1
        v_lshrrev_b32 v1, 1, v{vKB}
        v_lshl_or_b32 v{vPW}, v1, 9, v{vPW}
        s_mul_i32 s{t0}, s{sidx}, {stride}
        v_add_u32 v{vPW}, s{t0}, v{vPW}
        """)
    def wideaddr(a, dst, rowstride):
        a(f"""
        v_and_b32 v1, 1, v{vKB}
        v_mul_u32_u24 v{dst}, {2*rowstride}, v1
        v_lshrrev_b32 v1, 1, v{vKB}
        v_lshl_add_u32 v{dst}, v1, 8, v{dst}
        v_lshl_add_u32 v{dst}, v{vN}, 4, v{dst}
        """)
    def slotaddr(a, dst, sCQ, sPROD):
        a(f"""
        v_lshrrev_b32 v1, 3, v{vL}
        s_lshl_b32 s{t0}, s{sCQ}, 3
        v_add_u32 v1, s{t0}, v1
        v_add_u32 v{dst}, s{sPROD}, v1
        v_and_b32 v{dst}, 31, v{dst}
        v_lshlrev_b32 v{dst}, 7, v{dst}
        v_lshl_add_u32 v{dst}, v1, 12, v{dst}
        v_and_b32 v1, 7, v{vL}
        v_lshl_add_u32 v{dst}, v1, 4, v{dst}
        """)
    def epoch_barrier(a):
        a(f"""
        s_waitcnt lgkmcnt(0)
        s_add_u32 s{sT}, s{sT}, 0x9e3779b9
        s_barrier
        v_mov_b32 v{vT}, s{sT}
        v_and_b32 v{vT8}, 0xff, v{vT}
        """)
    def zero_flags(a, tmp):
        l = a.lab("zf")
        a(f"s_cmp_eq_u32 s3, 7\ns_cbranch_scc0 {l}\nv_mov_b32 v1, 0\nv_lshlrev_b32 v{tmp}, 2, v{vL}\nds_write_b32 v{tmp}, v1\n{l}:")
    def xt_publish(a, u0, u1):
        l = a.lab("xp")
        a(f"""
        s_cmp_eq_u32 s3, 7
        s_cbranch_scc0 {l}
        s_getreg_b32 s{t0}, hwreg(HW_REG_XCC_ID, 0, 4)
        s_add_u32 s{t0}, s{t0}, s{sT}
        s_lshl_b32 s{t1}, s{sJ}, 7
        s_lshr_b32 s{t2}, s2, 3
        s_lshl_b32 s{t2}, s{t2}, 2
        s_add_u32 s{t1}, s{t1}, s{t2}
        s_add_u32 s{t1}, s{t1}, {XT}
        v_mov_b32 v{u0}, s{t1}
        v_mov_b32 v{u1}, s{t0}
        s_mov_b64 exec, 1
        global_store_dword v{u0}, v{u1}, s[26:27] sc1
        s_mov_b64 exec, -1
        {l}:
        """)
    def abuild(a, dst, lane, src=vH2):
        for d in range(4): a(f"v_and_b32_dpp v{dst+d}, v{src}, v{vM+d} {DPP(f'row_newbcast:{lane}')}")
    def gemv(a, W, acc, A0, steps, fill=None):
        fill = list(fill or [])
        a.abuild(A0, steps[0][2], steps[0][1])
        for s, (t, src, lane) in enumerate(steps):
            if s + 1 < len(steps): a.abuild(A0 + 4 * ((s + 1) & 1), steps[s+1][2], steps[s+1][1])
            for m, w in enumerate(W):
                a(f"v_mfma_f32_16x16x32_bf16 {R(acc+4*m)}, {R(A0+4*(s&1))}, {R(w+4*t)}, {R(acc+4*m) if s else 0}")
                if fill: a(fill.pop(0))
        for f in fill: a(f)
    def lstore(a, ins):
        if not a.P["local"]:
            a(ins + " sc1"); return
        l1, l2 = a.lab("ls"), a.lab("le")
        a(f"s_cmp_eq_u32 s{sVERD}, 1\ns_cbranch_scc1 {l1}\n{ins} sc1\ns_branch {l2}\n{l1}:\n{ins}\n{l2}:")
    def sumn(a, r0, n):
        live = list(range(n))
        while len(live) > 1:
            nxt = []
            for h in (0, 2):
                for x in range(0, len(live) - 1, 2):
                    p, q = r0 + 4 * live[x] + h, r0 + 4 * live[x+1] + h
                    a(f"v_pk_add_f32 {R(p,2)}, {R(p,2)}, {R(q,2)}")
            live = live[0::2]
    def publish(a, acc, base, cnt, r0, vaddr, sbase, n, half):
        skip = a.lab("pub")
        a(f"""
        ds_write_b128 v{vPW}, {R(acc)} offset:{base}
        s_mov_b64 exec, 1
        ds_add_rtn_u32 v1, v{vZ}, v{vONE} offset:{cnt}
        s_mov_b64 exec, -1
        """)
        for w in range(n): a(f"ds_read_b128 {R(r0+4*w)}, v{vPR} offset:{base+1024*w}")
        a(f"s_waitcnt lgkmcnt({a.lg(n)})\nv_readfirstlane_b32 s{t0}, v1\ns_cmp_eq_u32 s{t0}, {n-1}\ns_cbranch_scc0 {skip}\ns_waitcnt lgkmcnt(0)")
        a.sumn(r0, n)
        a(f"v_perm_b32 v{r0}, v{r0}, v{vT}, s{sTAG}")
        if half: a("s_mov_b32 exec_hi, 0")
        a(f"global_store_dwordx4 v{vaddr}, {R(r0)}, {S2(sbase)} sc1")
        if half: a("s_mov_b32 exec_hi, -1")
        a(f"{skip}:\ns_waitcnt lgkmcnt(0)")
    def tagcheck(a, d, n, tmp):
        for v in range(n): a(f"v_xor_b32 v{d+4*v}, v{d+4*v}, v{vT8}")
        if n == 4: a(f"v_or3_b32 v{tmp}, v{d}, v{d+4}, v{d+8}\nv_or_b32 v{tmp}, v{tmp}, v{d+12}")
        else: a(f"v_or_b32 v{tmp}, v{d}, v{d+4}")
        a(f"v_cmp_ne_u32_sdwa vcc, v{tmp}, v{vZ} src0_sel:BYTE_0 src1_sel:DWORD")
    def poll(a, loads, d, n, tmp=1, first=None):
        top, done = a.lab("pl"), a.lab("pd")
        ent = None
        if first:
            ent = a.lab("pe")
            a(loads); first(); a(f"s_branch {ent}")
        a(f"{top}:")
        a(loads)
        if ent: a(f"{ent}:")
        a("s_waitcnt vmcnt(0)")
        a.tagcheck(d, n, tmp)
        a(f"s_cbranch_vccz {done}")
        if a.P["psleep"]: a(f"s_sleep {a.P['psleep']}")
        a.budget(top); a(f"{done}:")
    def ldn(a, d, vaddr, sbase, step, n=4):
        return "\n".join(f"global_load_dwordx4 {R(d+4*v)}, v{vaddr}, {S2(sbase)} offset:{step*v} sc1" for v in range(n))
    def extract(a, dst, d):
        a(f"v_perm_b32 v{dst}, v{d+3}, v{d+2}, s{sX1}\nv_perm_b32 v{dst}, v{dst}, v{d+1}, s{sX2}")
    def embed(a, d, val):
        a(f"v_perm_b32 v{d}, v{d}, v{vT}, s{sTAG}\nv_perm_b32 v{d+1}, v{d+1}, v{val}, s{sE1}\nv_perm_b32 v{d+2}, v{d+2}, v{val}, s{sE2}\nv_perm_b32 v{d+3}, v{d+3}, v{val}, s{sE3}")
    def rows_all(a, v, t, op):
        a(f"v_mov_b32 v{t}, v{v}\nv_permlane16_swap_b32 v{v}, v{t}\n{op} v{v}, v{v}, v{t}\nv_mov_b32 v{t}, v{v}\nv_permlane32_swap_b32 v{v}, v{t}\n{op} v{v}, v{v}, v{t}")
    def red32(a, d, y, t):
        return [f"v_permlane16_swap_b32 v{d}, v{d+2}", f"v_permlane16_swap_b32 v{d+1}, v{d+3}",
                f"v_pk_add_f32 {R(d,2)}, {R(d,2)}, {R(d+2,2)}",
                f"v_add_f32_dpp v{y}, v{d}, v{d} {DPP('row_ror:8', 0x3)}", f"v_add_f32_dpp v{y}, v{d+1}, v{d+1} {DPP('row_ror:8', 0xc)}",
                f"v_mov_b32 v{t}, v{y}", f"v_permlane32_swap_b32 v{y}, v{t}", f"v_add_f32 v{y}, v{y}, v{t}"]
    def idxaddr(a, dst):
        a(f"""
        v_and_b32 v1, 7, v{vN}
        v_lshlrev_b32 v{dst}, 3, v1
        v_and_b32 v1, 1, v{vKB}
        v_lshl_add_u32 v{dst}, v1, 2, v{dst}
        v_lshrrev_b32 v1, 3, v{vN}
        v_lshl_add_u32 v{dst}, v1, 1, v{dst}
        """)

def interleave(*ls):
    out = []; ls = [list(l) for l in ls]
    while any(ls):
        for l in ls:
            if l: out.append(l.pop(0))
    return out

def role_bq(a):
    P = a.P
    W, AQ, XF, XU, ACC = 16, 80, 144, 152, 168
    vW, vXO = 172, 173
    u0, u1, u2, u3, u4, u5 = 174, 175, 176, 177, 178, 179
    a(f"""
    L_BQ:
    v_lshlrev_b32 v{vW}, 17, v{vKB}
    v_lshl_add_u32 v{vW}, v{vN}, 4, v{vW}
    v_lshlrev_b32 v{u0}, 5, v{vL}
    s_lshr_b32 s{t0}, s{sI}, 2
    s_lshl_b32 s{t0}, s{t0}, 2
    s_add_u32 s{t0}, s{t0}, s{sK}
    s_lshl_b32 s{t1}, s{t0}, 7
    v_lshl_add_u32 v{u1}, v{vL}, 1, s{t1}
    s_lshl_b32 s{t0}, s{t0}, 19
    s_and_b32 s{t1}, s{sI}, 3
    s_lshl_b32 s{t2}, s{sJ}, 2
    s_add_u32 s{sX}, s{t1}, s{t2}
    s_lshl_b32 s{t1}, s{sX}, 8
    s_add_u32 s{t0}, s{t0}, s{t1}
    s_waitcnt lgkmcnt(0)
    s_load_dword s{sT}, s[26:27], 0
    global_load_dwordx4 {R(XF)}, v{u0}, s[4:5]
    global_load_dwordx4 {R(XF+4)}, v{u0}, s[4:5] offset:16
    global_load_ushort v{vXO}, v{u1}, s[4:5]
    """)
    a.sadd(sA, 10, f"s{t0}")
    for t in range(16):
        a(f"global_load_dwordx4 {R(W+4*t)}, v{vW}, {S2(sA)} nt")
        if t < 15: a(f"v_add_u32 v{vW}, 0x2000, v{vW}")
    a.stamp(1)
    a.consts(); a.masks(False); a.pwaddr(sK, 1024)
    a(f"""
    s_lshl_b32 s{t0}, s{sX}, 11
    s_lshr_b32 s{t1}, s{sI}, 2
    s_lshl_b32 s{t1}, s{t1}, 9
    s_add_u32 s{t0}, s{t0}, s{t1}
    s_add_u32 s{t0}, s{t0}, {QB}
    """)
    a.sadd(sB, 26, f"s{t0}")
    a.epoch_barrier()
    a("s_waitcnt vmcnt(16)")
    a.stamp(2)
    for e in range(8): a(f"v_lshlrev_b32 v{XU+2*e}, 16, v{XF+e}\nv_and_b32 v{XU+2*e+1}, 0xffff0000, v{XF+e}")
    def allsum(v, t):
        a(f"v_add_f32 v{v}, v{v}, v{v+1}")
        for c in ("quad_perm:[1,0,3,2]", "quad_perm:[2,3,0,1]", "row_ror:4", "row_ror:8"):
            a(f"v_add_f32_dpp v{v}, v{v}, v{v} {DPP(c)}")
        a.rows_all(v, t, "v_add_f32")
        a(f"v_mul_f32 v{v}, 0x3a800000, v{v}")
    a(f"v_pk_add_f32 {R(u0,2)}, {R(XU,2)}, {R(XU+2,2)}")
    for e in range(2, 8): a(f"v_pk_add_f32 {R(u0,2)}, {R(u0,2)}, {R(XU+2*e,2)}")
    allsum(u0, u4)
    for e in range(8): a(f"v_pk_add_f32 {R(XU+2*e,2)}, {R(XU+2*e,2)}, {R(u0,2)} op_sel_hi:[1,0] neg_lo:[0,1] neg_hi:[0,1]")
    a(f"v_pk_mul_f32 {R(u2,2)}, {R(XU,2)}, {R(XU,2)}")
    for e in range(1, 8): a(f"v_pk_fma_f32 {R(u2,2)}, {R(XU+2*e,2)}, {R(XU+2*e,2)}, {R(u2,2)}")
    allsum(u2, u4)
    a.bf(u0); a.bf(u2)
    a(f"v_add_f32 v{u2}, 0x3727c5ac, v{u2}"); a.bf(u2)
    a(f"v_sqrt_f32 v{u2}, v{u2}"); a.bf(u2)
    a(f"v_rcp_f32 v{u3}, v{u2}\nv_lshlrev_b32 v{vXO}, 16, v{vXO}\nv_sub_f32 v{vXO}, v{vXO}, v{u0}"); a.bf(vXO)
    a(f"v_mul_f32 v{u4}, v{vXO}, v{u3}\nv_fma_f32 v{u5}, -v{u4}, v{u2}, v{vXO}\nv_fma_f32 v{u4}, v{u5}, v{u3}, v{u4}\nv_cvt_pk_bf16_f32 v{vH2}, v{u4}, v{u4}")
    for t in range(16): a.abuild(AQ + 4 * t, t)
    a.stamp(3)
    for t in range(16):
        a(f"s_waitcnt vmcnt({15-t})")
        a(f"v_mfma_f32_16x16x32_bf16 {R(ACC)}, {R(AQ+4*t)}, {R(W+4*t)}, {R(ACC) if t else 0}")
        if t in P["xsig"]: a.sig_add(vF, PX)
    a.stamp(4)
    a.publish(ACC, PQ, CQ, AQ, vPR, sB, 4, True)
    a.stamp(5)
    a.masks(True)
    role_d(a)

def role_d(a):
    P = a.P
    W, GD, ACC, A0 = 16, 48, 80, 84
    vW, vGA, vFA, vINV, AH = 92, 93, 94, 95, 96
    u0, u1, u2, u3, u4 = 98, 99, 100, 101, 102
    a(f"""
    L_D:
    s_lshr_b32 s{t2}, s{sI}, 2
    s_mul_i32 s{t0}, s{t2}, 7
    s_add_u32 s{t0}, s{t0}, s3
    s_lshr_b32 s{t1}, s{t0}, 1
    s_lshl_b32 s{t1}, s{t1}, 12
    s_and_b32 s{t3}, s{t0}, 1
    s_lshl_b32 s{t3}, s{t3}, 6
    s_add_u32 s{t1}, s{t1}, s{t3}
    s_lshl_b32 s{t3}, s{sJ}, 16
    s_add_u32 s{t1}, s{t1}, s{t3}
    s_add_u32 s{t1}, s{t1}, {GU}
    """)
    a.sadd(sC, 26, f"s{t1}")
    a(f"""
    s_mul_i32 s{t1}, s{sJ}, 28
    s_add_u32 s{t0}, s{t0}, s{t1}
    s_lshl_b32 s{t0}, s{t0}, 15
    s_and_b32 s{t3}, s{sI}, 3
    s_lshl_b32 s{t1}, s{t3}, 9
    s_add_u32 s{t0}, s{t0}, s{t1}
    """)
    a.sadd(sA, 20, f"s{t0}")
    a(f"s_lshl_b32 s{t1}, s{sJ}, 2\ns_add_u32 s{t2}, s{t2}, s{t1}")
    a.slotaddr(vFA, t3, t2)
    a.sadd(sB, 26, F1)
    a.wideaddr(vW, 2048); a.pwaddr(3, 1024)
    a(f"""
    v_lshrrev_b32 v1, 2, v{vN}
    v_lshlrev_b32 v{vGA}, 10, v1
    v_lshl_add_u32 v{vGA}, v{vKB}, 7, v{vGA}
    v_and_b32 v1, 3, v{vN}
    v_lshl_add_u32 v{vGA}, v1, 4, v{vGA}
    v_mov_b32 v{vINV}, 0x3a800000
    s_mov_b32 s{sGC}, 0x3d372713
    """)
    if P["prewarm"]:
        l = a.lab("pw")
        a(f"s_cmp_ge_u32 s3, 4\ns_cbranch_scc1 {l}\n" + a.ldn(GD, vGA, sC, 512, 2) + f"\ns_waitcnt vmcnt(0)\n{l}:")
    a.gate(vZ, OG, P["dgate"])
    a.stamp(10)
    for m in range(8):
        if m in P["dwin"]: a(f"s_waitcnt vmcnt({P['dwin'][m]})")
        t = (m >> 1) + 4 * (m & 1)
        a(f"global_load_dwordx4 {R(W+4*t)}, v{vW}, {S2(sA)} offset:{2048*(m&1)} nt")
        if m & 1 and m < 7: a(f"v_add_u32 v{vW}, 0x2000, v{vW}")
    a.stamp(11)
    a.poll(a.ldn(GD, vGA, sC, 512, 2), GD, 2)
    a("s_setprio 3")
    a.stamp(12)
    a.extract(u0, GD); a.extract(u1, GD + 4)
    a(f"""
    v_pk_add_f32 {R(GD,2)}, {R(GD,2)}, {R(GD+4,2)}
    v_pk_add_f32 {R(GD+2,2)}, {R(GD+2,2)}, {R(GD+6,2)}
    v_add_f32 v{u0}, v{u0}, v{u1}
    v_permlane16_swap_b32 v{GD}, v{GD+2}
    v_mov_b32 v{u1}, v{u0}
    v_permlane16_swap_b32 v{GD+1}, v{GD+3}
    v_permlane16_swap_b32 v{u0}, v{u1}
    v_pk_add_f32 {R(GD,2)}, {R(GD,2)}, {R(GD+2,2)}
    v_add_f32 v{u0}, v{u0}, v{u1}
    v_mov_b32 v{u1}, v{u0}
    v_permlane32_swap_b32 v{GD}, v{GD+1}
    v_permlane32_swap_b32 v{u0}, v{u1}
    v_add_f32 v{GD}, v{GD}, v{GD+1}
    v_add_f32 v{u0}, v{u0}, v{u1}
    v_mul_f32_dpp v{u1}, -v{u0}, v{vINV} {DPP('row_newbcast:0')}
    v_mul_f32_dpp v{u2}, v{u0}, v{vINV} {DPP('row_newbcast:1')}
    v_fma_f32 v{u2}, -v{u1}, v{u1}, v{u2}
    v_fmac_f32_dpp v{GD}, v{GD}, v{u1} {DPP('row_shl:4', 0x5)}
    v_max_f32 v{u2}, 0, v{u2}
    v_add_f32 v{u2}, 0x3727c5ac, v{u2}
    v_rsq_f32 v{u2}, v{u2}
    v_mul_f32 v{GD}, v{GD}, v{u2}
    v_cvt_pk_bf16_f32 v{GD}, v{GD}, v{GD}
    v_lshlrev_b32 v{GD}, 16, v{GD}
    v_mul_f32 v{u0}, v{GD}, v{GD}
    v_mul_f32 v{u1}, 0xc0135761, v{GD}
    v_fma_f32 v{u0}, v{u0}, s{sGC}, 1.0
    v_mul_f32 v{u0}, v{u0}, v{u1}
    v_exp_f32 v{u0}, v{u0}
    v_add_f32 v{u0}, 1.0, v{u0}
    v_rcp_f32 v{u0}, v{u0}
    v_mul_f32 v{u0}, v{u0}, v{GD}
    v_cvt_pk_bf16_f32 v{u0}, v{u0}, v{u0}
    v_lshlrev_b32 v{u0}, 16, v{u0}
    v_mul_f32_dpp v{u0}, v{GD}, v{u0} {DPP('row_ror:8')}
    v_cvt_pk_bf16_f32 v{AH}, v{u0}, v{u0}
    v_cvt_pk_bf16_f32 v{AH+1}, v{u0}, v{u0}
    v_permlane32_swap_b32 v{AH}, v{AH+1}
    """)
    a.gemv([W], ACC, A0, [(t, AH + (t >> 2), t & 3) for t in range(8)])
    a.stamp(13)
    a.publish(ACC, PD, CD, GD, vFA, sB, 7, False)
    a.stamp(14)
    a("s_branch L_out")

def role_bw(a):
    P = a.P
    W, D, ACC, A0, WK = 16, 80, 96, 100, 108
    vW, vHA = 124, 125
    a(f"""
    L_BW:
    s_and_b32 s{t1}, s{sI}, 3
    s_lshl_b32 s{t2}, s{sJ}, 2
    s_add_u32 s{sX}, s{t1}, s{t2}
    s_lshl_b32 s{t3}, s{sX}, 2
    s_add_u32 s{t3}, s{t3}, s{sK}
    s_lshl_b32 s{t0}, s{t3}, 16
    s_lshr_b32 s{t2}, s{sI}, 2
    s_lshl_b32 s{t1}, s{t2}, 9
    s_add_u32 s{t1}, s{t0}, s{t1}
    """)
    a.zero_flags(vW)
    a(f"s_waitcnt lgkmcnt(0)\ns_load_dword s{sT}, s[26:27], 0")
    a.sadd(sA, 12, f"s{t1}")
    a(f"s_lshl_b32 s{t3}, s{t3}, 12\ns_add_u32 s{t3}, s{t3}, {O2}")
    a.sadd(sC, 26, f"s{t3}")
    a.sadd(sB, 26, HB)
    a.consts(); a.masks(True); a.pwaddr(sK, 1024); a.wideaddr(vW, 2048); a.slotaddr(vHA, t2, sX)
    a.epoch_barrier()
    a.xt_publish(WK, WK + 1)
    a.stamp(1)
    for m in range(16):
        if m in P["wgate"]: a.gate(vF, PX, P["wgate"][m])
        if m in P["wwin"]: a(f"s_waitcnt vmcnt({P['wwin'][m]})")
        if m == 0: a.stamp(2)
        t = (m >> 1) + 8 * (m & 1)
        a(f"global_load_dwordx4 {R(W+4*t)}, v{vW}, {S2(sA)} offset:{2048*(m&1)} nt")
        if m & 1 and m < 15: a(f"v_add_u32 v{vW}, 0x2000, v{vW}")
    a.stamp(3)
    def first():
        a("s_waitcnt vmcnt(4)"); a.stamp(4)
    a.poll(a.ldn(D, vPR, sC, 1024), D, 4, first=first if P["dev"] else None)
    a("s_setprio 3")
    a.sig_add(vZ, OG)
    a.stamp(5)
    val, wt, mx, tt, acc, al, y = WK, WK + 4, WK + 8, WK + 9, WK + 12, WK + 10, WK + 11
    for v in range(4): a.extract(val + v, D + 4 * v)
    a(f"v_max3_f32 v{mx}, v{val}, v{val+1}, v{val+2}\nv_max_f32 v{mx}, v{mx}, v{val+3}")
    a(f"v_max_f32_dpp v{mx}, v{mx}, v{mx} {DPP('row_ror:8')}")
    a.rows_all(mx, tt, "v_max_f32")
    a(f"v_mov_b32_dpp v{mx}, v{mx} {DPP('quad_perm:[0,0,2,2]')}")
    for v in range(4): a(f"v_sub_f32_dpp v{wt+v}, v{val+v}, v{mx} {DPP('quad_perm:[0,0,2,2]')}")
    a(f"v_pk_mul_f32 {R(wt,2)}, {R(wt,2)}, {S2(sL2E)}\nv_pk_mul_f32 {R(wt+2,2)}, {R(wt+2,2)}, {S2(sL2E)}")
    for v in range(4): a(f"v_exp_f32 v{wt+v}, v{wt+v}")
    for v in range(4):
        sel = v & 1; wp = R(wt + (v & 2), 2)
        a(f"v_mul_f32 v{al}, v{val}, v{wt}" if v == 0 else f"v_fmac_f32 v{al}, v{val+v}, v{wt+v}")
        for h in (0, 2):
            if v == 0: a(f"v_pk_mul_f32 {R(acc+h,2)}, {R(D+h,2)}, {wp} op_sel:[0,0] op_sel_hi:[1,0]")
            else: a(f"v_pk_fma_f32 {R(acc+h,2)}, {R(D+4*v+h,2)}, {wp}, {R(acc+h,2)} op_sel:[0,{sel},0] op_sel_hi:[1,{sel},1]")
    la = [f"v_add_f32_dpp v{al}, v{al}, v{al} {DPP('row_ror:8')}", f"v_mov_b32 v{tt}, v{al}", f"v_permlane16_swap_b32 v{al}, v{tt}",
          f"v_add_f32 v{al}, v{al}, v{tt}", f"v_mov_b32 v{tt}, v{al}", f"v_permlane32_swap_b32 v{al}, v{tt}", f"v_add_f32 v{al}, v{al}, v{tt}",
          f"v_rcp_f32 v{al}, v{al}"]
    for x in interleave(la, a.red32(acc, y, mx)): a(x)
    a(f"v_mul_f32_dpp v{y}, v{al}, v{y} {DPP('quad_perm:[1,1,3,3]')}\nv_cvt_pk_bf16_f32 v{vH2}, v{y}, v{y}")
    a.stamp(6)
    a.gemv([W], ACC, A0, [(t, vH2, t) for t in range(16)])
    a.stamp(7)
    a.publish(ACC, PO, CO, D, vHA, sB, 4, False)
    a("s_setprio 0")
    a.stamp(8)
    a("s_cmp_eq_u32 s3, 7\ns_cbranch_scc1 L_out\ns_branch L_D")

def role_ax(a):
    P = a.P
    KF, VF, QD, QF, ACC, SR, F, D, ONES = 16, 48, 80, 80, 96, 104, 112, 128, 144
    vK0, vA0 = 148, 152
    vQW, vQR, vSW, vVA, vOW, vOR, vO2 = 156, 157, 158, 159, 161, 162, 163
    u0, u1, u2, u3, u4 = 164, 165, 166, 167, 168
    a(f"""
    L_AX:
    v_xor_b32 v1, v{vKB}, v{vN}
    v_lshlrev_b32 v1, 4, v1
    v_lshl_add_u32 v{vK0}, v{vKB}, 8, v1
    v_xor_b32 v{vK0+1}, 64, v{vK0}
    v_xor_b32 v{vK0+2}, 0x80, v{vK0}
    v_xor_b32 v{vK0+3}, 0xc0, v{vK0}
    s_and_b32 s{sX}, s{sJ}, 1
    s_lshl_b32 s{sX}, s{sX}, 4
    s_add_u32 s{sX}, s{sX}, s{sI}
    s_lshl_b32 s{t0}, s{sG}, 24
    s_lshl_b32 s{t1}, s{sX}, 15
    s_add_u32 s{t0}, s{t0}, s{t1}
    s_lshl_b32 s{t3}, s{sK}, 13
    s_add_u32 s{t0}, s{t0}, s{t3}
    s_add_u32 s{t0}, s{t0}, {KOFF}
    s_add_u32 m0, s{t3}, {KL}
    s_waitcnt lgkmcnt(0)
    s_load_dword s{sT}, s[26:27], 0
    """)
    a.sadd(sA, 6, f"s{t0}"); a.sadd(sB, sA, 4096)
    def kload(m):
        if m == 4: a(f"s_add_u32 m0, s{t3}, {KL+4096}")
        a(f"global_load_lds_dwordx4 v{vK0+(m&3)}, {S2(sA if m < 4 else sB)} offset:{1024*(m&3)} nt")
    n0 = min(list(P["kwin"]) + [8])
    for m in range(n0): kload(m)
    a.stamp(1)
    a.consts()
    a(f"s_lshl_b32 s{t0}, s{sG}, 14\ns_lshl_b32 s{t1}, s{sK}, 12\ns_add_u32 s{t0}, s{t0}, s{t1}\ns_add_u32 s{t0}, s{t0}, {QB}")
    a.sadd(sC, 26, f"s{t0}")
    a(f"s_lshl_b32 s{t0}, s{sG}, 17\ns_add_u32 s{t0}, s{t0}, {O2}")
    a.sadd(sD, 26, f"s{t0}")
    a(f"""
    v_xor_b32 v1, v{vKB}, v{vN}
    v_lshlrev_b32 v1, 4, v1
    v_lshl_add_u32 v{vA0}, v{vN}, 8, v1
    v_add_u32 v{vA0}, s{t3}, v{vA0}
    v_xor_b32 v{vA0+1}, 64, v{vA0}
    v_xor_b32 v{vA0+2}, 0x80, v{vA0}
    v_xor_b32 v{vA0+3}, 0xc0, v{vA0}
    v_lshrrev_b32 v1, 5, v{vL}
    v_mul_u32_u24 v{vQW}, 288, v1
    v_and_b32 v1, 31, v{vL}
    v_lshl_add_u32 v{vQW}, v1, 3, v{vQW}
    s_mul_i32 s{t0}, s{sK}, 576
    v_add_u32 v{vQW}, s{t0}, v{vQW}
    v_and_b32 v{u0}, 7, v{vN}
    v_mul_u32_u24 v{vQR}, 288, v{u0}
    v_lshl_add_u32 v{vQR}, v{vKB}, 4, v{vQR}
    v_lshrrev_b32 v1, 1, v{vKB}
    v_lshlrev_b32 v{vSW}, 8, v1
    v_lshrrev_b32 v1, 3, v{vN}
    v_lshl_add_u32 v{vSW}, v1, 9, v{vSW}
    v_lshl_add_u32 v{vSW}, v{u0}, 4, v{vSW}
    v_and_b32 v1, 1, v{vKB}
    v_lshl_add_u32 v{vSW}, v1, 3, v{vSW}
    s_and_b32 s{t0}, s{sK}, 1
    s_lshl_b32 s{t0}, s{t0}, 7
    s_lshr_b32 s{t1}, s{sK}, 1
    s_lshl_b32 s{t1}, s{t1}, 10
    s_add_u32 s{t0}, s{t0}, s{t1}
    v_add_u32 v{vSW}, s{t0}, v{vSW}
    v_lshrrev_b32 v{u1}, 2, v{vN}
    v_lshl_add_u32 v{u2}, v1, 2, v{u1}
    v_lshlrev_b32 v{u2}, 1, v{u2}
    v_and_b32 v{u3}, 3, v{vN}
    v_lshrrev_b32 v{u4}, 1, v{u3}
    s_lshl_b32 s{t0}, s{sK}, 2
    v_add_u32 v{u4}, s{t0}, v{u4}
    v_xor_b32 v{u4}, v{u4}, v{u2}
    v_lshlrev_b32 v{u4}, 4, v{u4}
    v_and_b32 v{u3}, 1, v{u3}
    v_lshl_add_u32 v{u4}, v{u3}, 3, v{u4}
    v_lshl_add_u32 v{u1}, v{vKB}, 3, v{u1}
    v_lshl_add_u32 v{vVA}, v{u1}, 8, v{u4}
    v_add_u32 v{vVA}, {VL}, v{vVA}
    v_xor_b32 v{vVA+1}, 32, v{vVA}
    v_mul_u32_u24 v{vOW}, 144, v{u0}
    v_lshrrev_b32 v1, 3, v{vN}
    v_lshl_add_u32 v1, v1, 2, v{vKB}
    v_lshl_add_u32 v{vOW}, v1, 4, v{vOW}
    s_mul_i32 s{t0}, s{sK}, 1152
    v_add_u32 v{vOW}, s{t0}, v{vOW}
    v_lshrrev_b32 v{u1}, 3, v{vL}
    v_and_b32 v{u2}, 7, v{vL}
    v_mul_u32_u24 v{vOR}, 144, v{u1}
    v_lshl_add_u32 v{vOR}, v{u2}, 4, v{vOR}
    v_add_u32 v{vOR}, s{t0}, v{vOR}
    v_lshlrev_b32 v{u1}, 2, v{u1}
    v_add_u32 v{u1}, s{sK}, v{u1}
    v_add_u32 v1, s{sX}, v{u1}
    v_and_b32 v1, 31, v1
    v_lshlrev_b32 v1, 7, v1
    v_lshl_add_u32 v{vO2}, v{u1}, 12, v1
    v_lshl_add_u32 v{vO2}, v{u2}, 4, v{vO2}
    s_mov_b32 s{sN8}, 0xff00ff00
    s_mov_b32 s{sN8+1}, 0xff00ff00
    s_mov_b32 s{sSC}, 0x3db504f3
    s_mov_b32 s{sSC+1}, 0x3db504f3
    s_mov_b32 s{sB1}, 0xffff0000
    s_mov_b32 s{sB1+1}, 0xffff0000
    """)
    for d in range(4): a(f"v_mov_b32 v{ONES+d}, 0x3f803f80")
    a.epoch_barrier()
    landed = -1
    def land(n):
        nonlocal landed
        for x in range(landed + 1, n + 1):
            if x in P["ksig"]: a.sig_add(vF, PK)
        landed = max(landed, n)
    for m in range(n0, 8):
        if m in P["kwin"]:
            a(f"s_waitcnt vmcnt({P['kwin'][m]})"); land(m - 1 - P["kwin"][m])
        kload(m)
    a.stamp(2)
    def first():
        for x in sorted(P["ksig"]):
            if landed < x < 7: a(f"s_waitcnt vmcnt({4+7-x})"); land(x)
        a("s_waitcnt vmcnt(4)"); land(7)
        a.stamp(3)
        for z in range(2):
            for s in range(4): a(f"ds_read_b128 {R(KF+16*z+4*s)}, v{vA0+s} offset:{KL+4096*z}")
    a.poll(a.ldn(QD, vPR, sC, 1024), QD, 4, first=first)
    a("s_setprio 3")
    a.stamp(4)
    for h in (0, 8):
        for p in (0, 2): a(f"v_pk_add_f32 {R(QD+h+p,2)}, {R(QD+h+p,2)}, {R(QD+h+4+p,2)}")
    for d in range(4): a(f"v_permlane32_swap_b32 v{QD+d}, v{QD+8+d}")
    a(f"""
    v_pk_add_f32 {R(QD,2)}, {R(QD,2)}, {R(QD+8,2)}
    v_pk_add_f32 {R(QD+2,2)}, {R(QD+2,2)}, {R(QD+10,2)}
    v_cvt_pk_bf16_f32 v{u0}, v{QD}, v{QD+1}
    v_cvt_pk_bf16_f32 v{u1}, v{QD+2}, v{QD+3}
    ds_write_b64 v{vQW}, {R(u0,2)} offset:{QL}
    """)
    a.sig_add(vZ, QC)
    top, done = a.lab("qs"), a.lab("qsd")
    a(f"{top}:\nds_read_b32 v1, v{vZ} offset:{QC}")
    for s in range(4): a(f"ds_read_b128 {R(QF+4*s)}, v{vQR} offset:{QL+64*s}")
    a(f"s_waitcnt lgkmcnt(0)\nv_readfirstlane_b32 s{t0}, v1\ns_cmp_eq_u32 s{t0}, 4\ns_cbranch_scc1 {done}")
    a.budget(top); a(f"{done}:")
    a.stamp(5)
    for s in range(4):
        for z in range(2): a(f"v_mfma_f32_16x16x32_bf16 {R(ACC+4*z)}, {R(KF+16*z+4*s)}, {R(QF+4*s)}, {R(ACC+4*z) if s else 0}")
    for r in range(4): a(f"v_cndmask_b32 v{ACC+r}, v{ACC+r}, v{ACC+4+r}, {S2(sN8)}")
    a(f"""
    v_cvt_pk_bf16_f32 v{u0}, v{ACC}, v{ACC+1}
    v_cvt_pk_bf16_f32 v{u1}, v{ACC+2}, v{ACC+3}
    v_lshlrev_b32 v{ACC}, 16, v{u0}
    v_and_b32 v{ACC+1}, 0xffff0000, v{u0}
    v_lshlrev_b32 v{ACC+2}, 16, v{u1}
    v_and_b32 v{ACC+3}, 0xffff0000, v{u1}
    v_pk_mul_f32 {R(ACC,2)}, {R(ACC,2)}, {S2(sSC)}
    v_pk_mul_f32 {R(ACC+2,2)}, {R(ACC+2,2)}, {S2(sSC)}
    v_cvt_pk_bf16_f32 v{u0}, v{ACC}, v{ACC+1}
    v_cvt_pk_bf16_f32 v{u1}, v{ACC+2}, v{ACC+3}
    ds_write_b64 v{vSW}, {R(u0,2)} offset:{SL}
    """)
    a.sig_add(vZ, SC)
    top, done = a.lab("ss"), a.lab("ssd")
    a(f"{top}:\nds_read_b32 v1, v{vZ} offset:{SC}\nds_read_b128 {R(SR)}, v{vPR} offset:{SL}\nds_read_b128 {R(SR+4)}, v{vPR} offset:{SL+1024}")
    a(f"s_waitcnt lgkmcnt(0)\nv_readfirstlane_b32 s{t0}, v1\ns_cmp_eq_u32 s{t0}, 8\ns_cbranch_scc1 {done}")
    a.budget(top); a(f"{done}:")
    for H in range(4):
        for b in range(2):
            for z in range(2):
                a(f"ds_read_b64_tr_b16 {R(VF+16*b+4*H+2*z,2)}, v{vVA+b} offset:{8192*H+1024*z}")
    a.stamp(6)
    for e in range(8): a(f"v_lshlrev_b32 v{F+2*e}, 16, v{SR+e}\nv_and_b32 v{F+2*e+1}, 0xffff0000, v{SR+e}")
    a(f"""
    v_max3_f32 v{u0}, v{F}, v{F+1}, v{F+2}
    v_max3_f32 v{u1}, v{F+3}, v{F+4}, v{F+5}
    v_max3_f32 v{u2}, v{F+6}, v{F+7}, v{F+8}
    v_max3_f32 v{u3}, v{F+9}, v{F+10}, v{F+11}
    v_max3_f32 v{u0}, v{u0}, v{F+12}, v{F+13}
    v_max3_f32 v{u1}, v{u1}, v{F+14}, v{F+15}
    v_max3_f32 v{u0}, v{u0}, v{u2}, v{u3}
    v_max_f32 v{u0}, v{u0}, v{u1}
    v_max_f32_dpp v{u0}, v{u0}, v{u0} {DPP('row_ror:8')}
    """)
    a.rows_all(u0, u1, "v_max_f32")
    for e in range(8): a(f"v_pk_add_f32 {R(F+2*e,2)}, {R(F+2*e,2)}, {R(u0,2)} op_sel_hi:[1,0] neg_lo:[0,1] neg_hi:[0,1]")
    for e in range(8): a(f"v_pk_mul_f32 {R(F+2*e,2)}, {R(F+2*e,2)}, {S2(sL2E)}")
    for p in range(2):
        for e in range(8): a(f"v_exp_f32 v{F+8*p+e}, v{F+8*p+e}")
        for e in range(4): a(f"v_cvt_pk_bf16_f32 v{SR+4*p+e}, v{F+8*p+2*e}, v{F+8*p+2*e+1}")
        if p == 0: a("s_waitcnt lgkmcnt(0)")
        a(f"v_mfma_f32_16x16x32_bf16 {R(ACC)}, {R(ONES)}, {R(SR+4*p)}, {R(ACC) if p else 0}")
        for b in range(2):
            for hi in range(2):
                dd = D + 8 * b + 4 * hi
                a(f"v_mfma_f32_16x16x32_bf16 {R(dd)}, {R(VF+16*b+4*(2*p+hi))}, {R(SR+4*p)}, {R(dd) if p else 0}")
    a(f"v_add_f32_dpp v{u2}, v{ACC}, v{ACC} {DPP('row_ror:8')}\nv_cndmask_b32 v{u2}, v{u0}, v{u2}, {S2(sB1)}")
    for r in range(4): a(f"v_add_f32_dpp v{F+r}, v{D+4+r}, v{D+r} {DPP('row_ror:8', 0x3)}")
    for r in range(4): a(f"v_add_f32_dpp v{F+r}, v{D+8+r}, v{D+12+r} {DPP('row_ror:8', 0xc)}")
    a.embed(F, u2)
    a(f"ds_write_b128 v{vOW}, {R(F)} offset:{OT}\nds_read_b128 {R(F+4)}, v{vOR} offset:{OT}\ns_waitcnt lgkmcnt(0)")
    a(f"global_store_dwordx4 v{vO2}, {R(F+4)}, {S2(sD)} sc1")
    a.sig_add(vZ, OG)
    a("s_setprio 0")
    a.stamp(7)
    a(f"s_cmp_ge_u32 s{sK}, 2\ns_cbranch_scc1 L_out")
    if P["local"]:
        top, done = a.lab("xt"), a.lab("xtd")
        a(f"""
        s_getreg_b32 s{t0}, hwreg(HW_REG_XCC_ID, 0, 4)
        s_add_u32 s{t0}, s{t0}, s{sT}
        v_mov_b32 v{u1}, s{t0}
        s_lshl_b32 s{t1}, s{sJ}, 7
        s_add_u32 s{t1}, s{t1}, {XT}
        v_and_b32 v{u0}, 31, v{vL}
        v_lshl_add_u32 v{u0}, v{u0}, 2, s{t1}
        {top}:
        global_load_dword v{u2}, v{u0}, s[26:27] sc1
        s_waitcnt vmcnt(0)
        v_sub_u32 v{u3}, v{u2}, v{vT}
        v_cmp_le_u32 vcc, 16, v{u3}
        s_cbranch_vccz {done}
        s_sleep 2
        """)
        a.budget(top)
        a(f"""
        {done}:
        v_cmp_ne_u32 vcc, v{u2}, v{u1}
        s_cmp_eq_u64 vcc, 0
        s_cselect_b32 s{sVERD}, 1, 2
        v_mov_b32 v{u2}, s{sVERD}
        ds_write_b32 v{vZ}, v{u2} offset:{VERD}
        """)
    a.stamp(8)
    guaddr(a, vO2, sA)
    a(f"s_lshl_b32 s{t0}, s{sK}, 11\ns_add_u32 s{t0}, s{t0}, 1024\nv_add_u32 v{vO2}, s{t0}, v{vO2}\nv_add_u32 v{u0}, s{t0}, v{vPR}")
    a.gate(vZ, CC, 4)
    for w in range(4): a(f"ds_read_b128 {R(KF+4*w)}, v{u0} offset:{PGU+4096*w}")
    a("s_waitcnt lgkmcnt(0)")
    a.sumn(KF, 4)
    a(f"v_perm_b32 v{KF}, v{KF}, v{vT}, s{sTAG}\ns_mov_b64 exec, {S2(sE)}")
    a.lstore(f"global_store_dwordx4 v{vO2}, {R(KF)}, {S2(sA)}")
    a("s_mov_b64 exec, -1")
    a.stamp(9)
    a("s_branch L_out")

def guaddr(a, dst, sbase):
    a(f"""
    s_and_b32 s{t0}, s{sI}, 1
    s_lshl_b32 s{t1}, s{t0}, 15
    s_lshr_b32 s{t2}, s{sI}, 1
    s_lshl_b32 s{t2}, s{t2}, 7
    s_add_u32 s{t1}, s{t1}, s{t2}
    s_lshl_b32 s{t2}, s{sJ}, 16
    s_add_u32 s{t1}, s{t1}, s{t2}
    s_add_u32 s{t1}, s{t1}, {GU}
    s_cmp_eq_u32 s{t0}, 0
    s_mov_b32 s{sE}, -1
    s_cselect_b32 s{sE+1}, -1, 0xffff
    v_lshrrev_b32 v1, 3, v{vL}
    v_lshlrev_b32 v{dst}, 12, v1
    v_and_b32 v1, 7, v{vL}
    v_lshl_add_u32 v{dst}, v1, 4, v{dst}
    """)
    a.sadd(sbase, 26, f"s{t1}")

def role_ag(a):
    P = a.P
    WG, WU, ACC, CS, A0, UN, D, E = 16, 80, 144, 152, 160, 168, 172, 188
    vW, vX, vSA, vST, vOA, vV0 = 204, 205, 206, 207, 209, 210
    hv, z, zt, u0, u1 = 212, 213, 214, 215, 216
    sG1, sU1 = sC, sD
    a(f"""
    L_AG:
    v_lshlrev_b32 v1, 1, v{vKB}
    v_xor_b32 v1, v1, v{vN}
    v_lshlrev_b32 v1, 4, v1
    v_lshl_add_u32 v{vV0}, v{vKB}, 8, v1
    v_xor_b32 v{vV0+1}, 0x80, v{vV0}
    s_and_b32 s{sX}, s{sJ}, 1
    s_lshl_b32 s{sX}, s{sX}, 4
    s_add_u32 s{sX}, s{sX}, s{sI}
    s_lshl_b32 s{t0}, s{sG}, 24
    s_lshl_b32 s{t1}, s{sX}, 15
    s_add_u32 s{t0}, s{t0}, s{t1}
    s_lshl_b32 s{t3}, s{sK}, 13
    s_add_u32 s{t0}, s{t0}, s{t3}
    s_add_u32 s{t2}, s{t0}, {KOFF}
    s_add_u32 m0, s{t3}, {VL}
    """)
    a.zero_flags(vW)
    a(f"s_waitcnt lgkmcnt(0)\ns_load_dword s{sT}, s[26:27], 0")
    a.sadd(sA, 8, f"s{t2}"); a.sadd(sB, sA, 4096)
    def vload(m):
        if m == 4: a(f"s_add_u32 m0, s{t3}, {VL+4096}")
        a(f"global_load_lds_dwordx4 v{vV0+((m>>1)&1)}, {S2(sA if m < 4 else sB)} offset:{1024*(m&3)} nt")
    n0 = min(list(P["vwin"]) + list(P["vgate"]) + [8])
    for m in range(n0): vload(m)
    a.consts(); a.masks(True); a.pwaddr(sK, 4096)
    a(f"s_lshr_b32 s{sX}, s{sI}, 1\ns_lshl_b32 s{sX}, s{sX}, 2\ns_add_u32 s{sX}, s{sX}, s{sK}")
    a.idxaddr(vOA)
    a(f"s_lshl_b32 s{t0}, s{sX}, 6\nv_add_u32 v{vOA}, s{t0}, v{vOA}")
    for d in range(4): a(f"v_and_b32 v{UN+d}, 0x3f803f80, v{vM+d}")
    a.epoch_barrier()
    a.xt_publish(u0, u1)
    a(f"global_load_ushort v{vX}, v{vOA}, s[4:5]")
    a.stamp(1)
    for m in range(n0, 8):
        if m in P["vgate"]: a.gate(vF, PK, P["vgate"][m])
        if m in P["vwin"]: a(f"s_waitcnt vmcnt({P['vwin'][m]})")
        if m == n0: a.stamp(2)
        vload(m)
    a.wideaddr(vW, 7168)
    a(f"""
    s_mul_i32 s{t0}, s{sX}, {32*7168}
    s_mul_i32 s{t1}, s{sJ}, 896
    s_add_u32 s{t0}, s{t0}, s{t1}
    s_and_b32 s{t1}, s{sI}, 1
    s_lshl_b32 s{t2}, s{t1}, 9
    s_add_u32 s{t0}, s{t0}, s{t2}
    s_mul_i32 s{t1}, s{t1}, 0xff00ff00
    s_mov_b32 s{sN8}, 0
    s_mov_b32 s{sN8+1}, s{t1}
    v_subrev_u32 v1, 0x80, v{vW}
    v_cndmask_b32 v{vW}, v{vW}, v1, {S2(sN8)}
    v_lshrrev_b32 v1, 5, v{vL}
    v_lshl_add_u32 v{vST}, v1, 4, v{vF}
    v_and_b32 v1, 1, v{vL}
    v_lshlrev_b32 v{vST+1}, 4, v1
    s_mov_b32 s{sB1}, 0
    s_mov_b32 s{sB1+1}, -1
    s_mov_b32 s{sSC}, 1
    s_mov_b32 s{sSC+1}, 1
    s_waitcnt vmcnt(0)
    """)
    a.sig_add(vZ, SC)
    a.stamp(3)
    a.sadd(sA, 16, f"s{t0}"); a.sadd(sB, 18, f"s{t0}"); a.sadd(sG1, sA, 7168); a.sadd(sU1, sB, 7168)
    a(f"v_lshlrev_b32 v{vX}, 16, v{vX}")
    if P["gq"]: a.gate(vZ, QC, P["gq"])
    a.stamp(4)
    order = []
    for c in range(8): order += [(WG, c, sA), (WU, c, sB), (WG, c + 8, sG1), (WU, c + 8, sU1)]
    done_c = 0
    def csum(n):
        nonlocal done_c
        for x in range(done_c, n):
            w, t, _ = order[x]; cc = CS + (4 if w == WU else 0)
            a(f"v_mfma_f32_16x16x32_bf16 {R(cc)}, {R(UN)}, {R(w+4*t)}, {R(cc) if x > 1 else 0}")
        done_c = max(done_c, n)
    for m, (w, t, sb) in enumerate(order):
        if m in P["gwin"]:
            g = P["gwin"][m]
            if g == "o": a.gate(vZ, OG, 4)
            else: a(f"s_waitcnt vmcnt({g})"); csum(m - g)
        a(f"global_load_dwordx4 {R(w+4*t)}, v{vW}, {S2(sb)} nt")
        if m & 3 == 3 and m < 31: a(f"v_add_u32 v{vW}, {4*7168}, v{vW}")
    a.stamp(5)
    a(f"s_lshl_b32 s{t1}, s{sX}, 12\ns_add_u32 s{t1}, s{t1}, {HB}")
    a.sadd(sC, 26, f"s{t1}")
    guaddr(a, vSA, sD)
    def first():
        for x in range(done_c, 32, 2):
            a(f"s_waitcnt vmcnt({4+30-x})"); csum(x + 2)
        a.stamp(6)
        a(f"ds_write_b128 v{vPW}, {R(CS)} offset:{PGU+1024}\nds_write_b128 v{vPW}, {R(CS+4)} offset:{PGU+3072}")
        a.sig_add(vZ, CC)
    a.poll(a.ldn(D, vPR, sC, 1024), D, 4, first=first)
    a("s_setprio 3")
    a.stamp(7)
    a.sumn(D, 4)
    for x in a.red32(D, hv, z): a(x)
    a(f"""
    v_cvt_pk_bf16_f32 v{hv}, v{hv}, v{hv}
    v_lshlrev_b32 v{hv}, 16, v{hv}
    v_add_f32 v{hv}, v{hv}, v{vX}
    v_cvt_pk_bf16_f32 v{vH2}, v{hv}, v{hv}
    """)
    fill = [f"v_lshlrev_b32 v{hv}, 16, v{vH2}", f"v_cndmask_b32 v{z}, 1.0, v{hv}, {S2(sB1)}", f"v_mul_f32 v{z}, v{z}, v{hv}"]
    fill += [f"v_add_f32_dpp v{z}, v{z}, v{z} {DPP(c)}" for c in ("quad_perm:[1,0,3,2]", "quad_perm:[2,3,0,1]", "row_ror:4", "row_ror:8")]
    fill += [f"v_mov_b32 v{zt}, v{z}", f"v_permlane16_swap_b32 v{z}, v{zt}", f"v_add_f32 v{z}, v{z}, v{zt}",
             f"s_mov_b64 exec, {S2(sSC)}\nds_write_b32 v{vST}, v{z} offset:{ST}\ns_mov_b64 exec, -1"]
    a.gemv([WG, WU], ACC, A0, [(t, vH2, t) for t in range(16)], fill=fill)
    a.stamp(8)
    skip = a.lab("pub")
    a(f"""
    ds_write_b128 v{vPW}, {R(ACC)} offset:{PGU}
    ds_write_b128 v{vPW}, {R(ACC+4)} offset:{PGU+2048}
    s_mov_b64 exec, 1
    ds_add_rtn_u32 v1, v{vZ}, v{vONE} offset:{CG}
    s_mov_b64 exec, -1
    ds_read_b32 v{u0}, v{vZ} offset:{VERD}
    ds_read_b128 {R(A0)}, v{vST+1} offset:{ST}
    """)
    for m in range(2):
        for w in range(4): a(f"ds_read_b128 {R(D+16*m+4*w)}, v{vPR} offset:{PGU+4096*w+2048*m}")
    a(f"""
    s_waitcnt lgkmcnt({a.lg(10)})
    v_readfirstlane_b32 s{t0}, v1
    s_cmp_eq_u32 s{t0}, 3
    s_cbranch_scc0 {skip}
    s_waitcnt lgkmcnt({a.lg(4)})
    v_readfirstlane_b32 s{sVERD}, v{u0}
    v_pk_add_f32 {R(A0,2)}, {R(A0,2)}, {R(A0+2,2)}
    v_add_f32 v{A0}, v{A0}, v{A0+1}
    """)
    a.sumn(D, 4)
    a.embed(D, A0)
    a(f"s_mov_b64 exec, {S2(sE)}")
    a.lstore(f"global_store_dwordx4 v{vSA}, {R(D)}, {S2(sD)}")
    a("s_waitcnt lgkmcnt(0)")
    a.sumn(E, 4)
    a(f"v_perm_b32 v{E}, v{E}, v{vT}, s{sTAG}")
    a.lstore(f"global_store_dwordx4 v{vSA}, {R(E)}, {S2(sD)} offset:2048")
    a(f"s_mov_b64 exec, -1\n{skip}:\ns_waitcnt lgkmcnt(0)\ns_setprio 0")
    a.stamp(9)
    a(f"""
    s_and_b32 s{t0}, s{sX}, 7
    s_cmp_eq_u32 s{t0}, s{sJ}
    s_cbranch_scc0 L_out
    s_bitcmp1_b32 s{sI}, 0
    s_cbranch_scc0 L_out
    s_lshl_b32 s{t1}, s{sX}, 12
    s_add_u32 s{t1}, s{t1}, {F1}
    """)
    a.sadd(sC, 26, f"s{t1}")
    if P["prewarm"]: a(f"global_load_ushort v{u0}, v{vOA}, s[22:23]")
    a.poll(a.ldn(D, vPR, sC, 1024), D, 4)
    a.stamp(10)
    a.sumn(D, 4)
    for x in a.red32(D, z, zt): a(x)
    a(f"""
    v_cvt_pk_bf16_f32 v{z}, v{z}, v{z}
    v_lshlrev_b32 v{z}, 16, v{z}
    v_add_f32 v{z}, v{z}, v{hv}
    v_cvt_pk_bf16_f32 v{z}, v{z}, v{z}
    s_mov_b32 exec_hi, 0
    global_store_short v{vOA}, v{z}, s[22:23]
    s_mov_b64 exec, 1
    s_cmp_eq_u32 s{sX}, 0
    s_cbranch_scc0 L_fin
    global_store_dword v{vZ}, v{vT}, s[26:27] sc1
    L_fin:
    s_mov_b64 exec, -1
    """)
    a.stamp(11)

def gen(**kw):
    P = dict(DEF); P.update(kw)
    a = K(P)
    a.stamp(0)
    a(f"""
    s_cmp_ge_u32 s2, 256
    s_cbranch_scc1 L_end
    s_load_dwordx16 s[4:19], s[0:1], 0
    s_load_dwordx8 s[20:27], s[0:1], 64
    v_lshrrev_b32 v1, 6, v0
    v_and_b32 v0, 63, v0
    v_readfirstlane_b32 s3, v1
    v_and_b32 v{vN}, 15, v0
    v_lshrrev_b32 v{vKB}, 4, v0
    s_and_b32 s{sJ}, s2, 7
    s_bfe_u32 s{sI}, s2, 0x40003
    s_lshr_b32 s{sG}, s{sJ}, 1
    s_mov_b32 s{sBUD}, {P['bud']}
    s_and_b32 s{sK}, s3, 3
    """)
    if P["dev"]:
        for i in range(1, 15): a(f"s_mov_b32 s{STAMP0+2*i}, 0")
    a(f"""
    s_cmp_ge_u32 s2, 128
    s_cbranch_scc1 L_A
    s_cmp_ge_u32 s3, 4
    s_cbranch_scc1 L_BW
    """)
    role_bq(a); a("; @reset"); role_bw(a); a("; @reset")
    a("L_A:\ns_cmp_ge_u32 s3, 4\ns_cbranch_scc1 L_AG")
    role_ax(a); a("; @reset"); role_ag(a)
    a("L_out:")
    if P["dev"]:
        a("s_waitcnt lgkmcnt(0)")
        for i in range(15): a(f"v_writelane_b32 v1, s{STAMP0+2*i}, {i}")
        a(f"""
        v_writelane_b32 v1, s{sBUD}, 15
        s_lshl_b32 s{t0}, s2, 4
        s_add_u32 s{t0}, s{t0}, s3
        s_lshl_b32 s{t0}, s{t0}, 6
        s_add_u32 s{t0}, s{t0}, {128<<20}
        v_lshlrev_b32 v2, 2, v0
        v_add_u32 v2, s{t0}, v2
        s_mov_b64 exec, 0xffff
        global_store_dword v2, v1, s[26:27]
        """)
    a("L_end:\ns_endpgm")
    body = a.finish()
    assert 128 < a.maxv <= 256, a.maxv
    return wrap([(KNAME, body, 256, 512, LDS, a.maxv)]), a

if __name__ == "__main__":
    kw = eval("dict(" + (sys.argv[2] if len(sys.argv) > 2 else "") + ")")
    s, a = gen(**kw)
    open(sys.argv[1], "w").write(s)
    print("vgpr", a.maxv, "sgpr", a.maxs, "lines", s.count("\n"), "nops", s.count("s_nop"))
```

```python
import sys
from asm import *
KOFF = (65536 - 4096) * 256
XT, QB, O2, HB, F1, GU = 0x1000, 0x10000, 0x40000, 0xC0000, 0xE0000, 0x100000
PX, PK, QC, SC, CQ, CO, CG, CC, CD, VERD, OG, PP = 0, 16, 32, 36, 40, 44, 48, 52, 56, 60, 64, 68
QL, SL, ST, OT, PGU, KL, VL, LDS = 256, 2560, 4608, 4864, 9728, 26624, 59392, 92160
PQ, PO, PD, XN = 1024, 5120, 9216, 16384
sJ, sI, sG, sK, sX, sT, sBUD, sVERD = 28, 29, 30, 31, 32, 33, 40, 41
sTAG, sE1, sE2, sE3, sX1, sX2, sL2E, sGC = 34, 35, 36, 37, 38, 39, 42, 44
sB1, sN8, sSC = 46, 48, 50
sA, sB, sC, sD, sE = 52, 54, 56, 58, 60
t0, t1, t2, t3 = 96, 97, 98, 99
STAMP0 = 64
vL, vN, vKB, vT, vT8, vZ, vONE, vM = 0, 2, 3, 4, 5, 6, 7, 8
vF, vPW, vPR, vH2 = 12, 13, 14, 15
DEF = dict(dev=1, bud=20000, local=1, gsleep=1, prewarm=1,
           xsig={11: 1, 15: 2},
           wgate={0: 1}, wwin={2: 1, 4: 1},
           kwin={2: 1}, ksig={1: 1},
           vgate={0: 1}, vwin={},
           gq=4, gwin={}, dgate=4, dwin={}, psleep=0, dafter="h", bal=1, gearly=0)

def R(b, n=4): return f"v[{b}:{b+n-1}]"
def S2(b): return f"s[{b}:{b+1}]"
def DPP(ctl, bank=0xf): return f"{ctl} row_mask:0xf bank_mask:{bank:#x}"

class K(A):
    def __init__(a, P):
        super().__init__(); a.P = P
    def stamp(a, i):
        if a.P["dev"]: a(f"s_memrealtime s[{STAMP0+2*i}:{STAMP0+2*i+1}]")
    def lg(a, n): return 0 if a.P["dev"] else n
    def budget(a, top):
        a(f"s_sub_u32 s{sBUD}, s{sBUD}, 1\ns_cbranch_scc0 {top}\ns_mov_b32 s{sBUD}, 0")
    def gate(a, addr, off, thr, sleep=None, tmp=1):
        top, done = a.lab("gt"), a.lab("gd")
        if sleep is None: sleep = a.P["gsleep"]
        a(f"{top}:\nds_read_b32 v{tmp}, v{addr} offset:{off}\ns_waitcnt lgkmcnt(0)\nv_readfirstlane_b32 s{t0}, v{tmp}\ns_cmp_ge_u32 s{t0}, {thr}\ns_cbranch_scc1 {done}")
        if sleep: a(f"s_sleep {sleep}")
        a.budget(top); a(f"{done}:")
    def sig_add(a, addr, off):
        a(f"s_mov_b64 exec, 1\nds_add_u32 v{addr}, v{vONE} offset:{off}\ns_mov_b64 exec, -1")
    def sadd(a, d, base, off):
        a(f"s_add_u32 s{d}, s{base}, {off}\ns_addc_u32 s{d+1}, s{base+1}, 0")
    def bf(a, v):
        a(f"v_cvt_pk_bf16_f32 v{v}, v{v}, v{v}\nv_lshlrev_b32 v{v}, 16, v{v}")
    def masks(a, full):
        a(f"""
        v_and_b32 v1, 1, v{vN}
        v_lshlrev_b32 v1, 4, v1
        v_mov_b32 v{vM+3}, 0xffff
        v_lshlrev_b32 v1, v1, v{vM+3}
        v_lshrrev_b32 v{vH2}, 1, v{vN}
        """)
        if full: a(f"v_and_b32 v{vM+3}, 2, v{vKB}\nv_lshlrev_b32 v{vM+3}, 1, v{vM+3}\nv_xor_b32 v{vH2}, v{vH2}, v{vM+3}")
        for d in range(4): a(f"v_cmp_eq_u32 vcc, {d}, v{vH2}\nv_cndmask_b32 v{vM+d}, 0, v1, vcc")
    def consts(a):
        a(f"""
        s_mov_b32 s{sTAG}, 0x07060500
        s_mov_b32 s{sE1}, 0x07060501
        s_mov_b32 s{sE2}, 0x07060502
        s_mov_b32 s{sE3}, 0x07060503
        s_mov_b32 s{sX1}, 0x04000c0c
        s_mov_b32 s{sX2}, 0x0706000c
        s_mov_b32 s{sL2E}, 0x3fb8aa3b
        s_mov_b32 s{sL2E+1}, 0x3fb8aa3b
        s_mov_b32 s{sVERD}, 0
        v_mov_b32 v{vZ}, 0
        v_mov_b32 v{vONE}, 1
        v_mov_b32 v{vF}, s{sK}
        v_lshlrev_b32 v{vF}, 2, v{vF}
        v_lshlrev_b32 v{vPR}, 4, v{vL}
        """)
    def pwaddr(a, sidx, stride):
        a(f"""
        v_and_b32 v1, 1, v{vKB}
        v_lshlrev_b32 v1, 4, v1
        v_lshl_or_b32 v{vPW}, v{vN}, 5, v1
        v_lshrrev_b32 v1, 1, v{vKB}
        v_lshl_or_b32 v{vPW}, v1, 9, v{vPW}
        s_mul_i32 s{t0}, s{sidx}, {stride}
        v_add_u32 v{vPW}, s{t0}, v{vPW}
        """)
    def wideaddr(a, dst, rowstride):
        a(f"""
        v_and_b32 v1, 1, v{vKB}
        v_mul_u32_u24 v{dst}, {2*rowstride}, v1
        v_lshrrev_b32 v1, 1, v{vKB}
        v_lshl_add_u32 v{dst}, v1, 8, v{dst}
        v_lshl_add_u32 v{dst}, v{vN}, 4, v{dst}
        """)
    def slotaddr(a, dst, sCQ, sPROD):
        a(f"""
        v_lshrrev_b32 v1, 3, v{vL}
        s_lshl_b32 s{t0}, s{sCQ}, 3
        v_add_u32 v1, s{t0}, v1
        v_add_u32 v{dst}, s{sPROD}, v1
        v_and_b32 v{dst}, 31, v{dst}
        v_lshlrev_b32 v{dst}, 7, v{dst}
        v_lshl_add_u32 v{dst}, v1, 12, v{dst}
        v_and_b32 v1, 7, v{vL}
        v_lshl_add_u32 v{dst}, v1, 4, v{dst}
        """)
    def epoch_barrier(a):
        a(f"""
        s_waitcnt lgkmcnt(0)
        s_add_u32 s{sT}, s{sT}, 0x9e3779b9
        s_barrier
        v_mov_b32 v{vT}, s{sT}
        v_and_b32 v{vT8}, 0xff, v{vT}
        """)
    def zero_flags(a, tmp):
        l = a.lab("zf")
        a(f"s_cmp_eq_u32 s3, 7\ns_cbranch_scc0 {l}\nv_mov_b32 v1, 0\nv_lshlrev_b32 v{tmp}, 2, v{vL}\nds_write_b32 v{tmp}, v1\n{l}:")
    def xt_publish(a, u0, u1):
        l = a.lab("xp")
        a(f"""
        s_cmp_eq_u32 s3, 7
        s_cbranch_scc0 {l}
        s_getreg_b32 s{t0}, hwreg(HW_REG_XCC_ID, 0, 4)
        s_add_u32 s{t0}, s{t0}, s{sT}
        s_lshl_b32 s{t1}, s{sJ}, 7
        s_lshr_b32 s{t2}, s2, 3
        s_lshl_b32 s{t2}, s{t2}, 2
        s_add_u32 s{t1}, s{t1}, s{t2}
        s_add_u32 s{t1}, s{t1}, {XT}
        v_mov_b32 v{u0}, s{t1}
        v_mov_b32 v{u1}, s{t0}
        s_mov_b64 exec, 1
        global_store_dword v{u0}, v{u1}, s[26:27] sc1
        s_mov_b64 exec, -1
        {l}:
        """)
    def abuild(a, dst, lane, src=vH2):
        for d in range(4): a(f"v_and_b32_dpp v{dst+d}, v{src}, v{vM+d} {DPP(f'row_newbcast:{lane}')}")
    def gemv(a, W, acc, A0, steps, fill=None, pre=None):
        fill = list(fill or [])
        a.abuild(A0, steps[0][2], steps[0][1])
        for s, (t, src, lane) in enumerate(steps):
            if s + 1 < len(steps): a.abuild(A0 + 4 * ((s + 1) & 1), steps[s+1][2], steps[s+1][1])
            if pre: pre(s)
            for m, w in enumerate(W):
                a(f"v_mfma_f32_16x16x32_bf16 {R(acc+4*m)}, {R(A0+4*(s&1))}, {R(w+4*t)}, {R(acc+4*m) if s else 0}")
                if fill: a(fill.pop(0))
        for f in fill: a(f)
    def lstore(a, ins):
        if not a.P["local"]:
            a(ins + " sc1"); return
        l1, l2 = a.lab("ls"), a.lab("le")
        a(f"s_cmp_eq_u32 s{sVERD}, 1\ns_cbranch_scc1 {l1}\n{ins} sc1\ns_branch {l2}\n{l1}:\n{ins}\n{l2}:")
    def sumn(a, r0, n):
        live = list(range(n))
        while len(live) > 1:
            nxt = []
            for h in (0, 2):
                for x in range(0, len(live) - 1, 2):
                    p, q = r0 + 4 * live[x] + h, r0 + 4 * live[x+1] + h
                    a(f"v_pk_add_f32 {R(p,2)}, {R(p,2)}, {R(q,2)}")
            live = live[0::2]
    def publish(a, acc, base, cnt, r0, vaddr, sbase, n, half):
        skip = a.lab("pub")
        a(f"""
        ds_write_b128 v{vPW}, {R(acc)} offset:{base}
        s_mov_b64 exec, 1
        ds_add_rtn_u32 v1, v{vZ}, v{vONE} offset:{cnt}
        s_mov_b64 exec, -1
        """)
        for w in range(n): a(f"ds_read_b128 {R(r0+4*w)}, v{vPR} offset:{base+1024*w}")
        a(f"s_waitcnt lgkmcnt({a.lg(n)})\nv_readfirstlane_b32 s{t0}, v1\ns_cmp_eq_u32 s{t0}, {n-1}\ns_cbranch_scc0 {skip}\ns_waitcnt lgkmcnt(0)")
        a.sumn(r0, n)
        a(f"v_perm_b32 v{r0}, v{r0}, v{vT}, s{sTAG}")
        if half: a("s_mov_b32 exec_hi, 0")
        a(f"global_store_dwordx4 v{vaddr}, {R(r0)}, {S2(sbase)} sc1")
        if half: a("s_mov_b32 exec_hi, -1")
        a(f"{skip}:\ns_waitcnt lgkmcnt(0)")
    def tagcheck(a, d, n, tmp):
        for v in range(n): a(f"v_xor_b32 v{d+4*v}, v{d+4*v}, v{vT8}")
        if n == 4: a(f"v_or3_b32 v{tmp}, v{d}, v{d+4}, v{d+8}\nv_or_b32 v{tmp}, v{tmp}, v{d+12}")
        else: a(f"v_or_b32 v{tmp}, v{d}, v{d+4}")
        a(f"v_cmp_ne_u32_sdwa vcc, v{tmp}, v{vZ} src0_sel:BYTE_0 src1_sel:DWORD")
    def poll(a, loads, d, n, tmp=1, first=None):
        top, done = a.lab("pl"), a.lab("pd")
        ent = None
        if first:
            ent = a.lab("pe")
            a(loads); first(); a(f"s_branch {ent}")
        a(f"{top}:")
        a(loads)
        if ent: a(f"{ent}:")
        a("s_waitcnt vmcnt(0)")
        a.tagcheck(d, n, tmp)
        a(f"s_cbranch_vccz {done}")
        if a.P["psleep"]: a(f"s_sleep {a.P['psleep']}")
        a.budget(top); a(f"{done}:")
    def ldn(a, d, vaddr, sbase, step, n=4):
        return "\n".join(f"global_load_dwordx4 {R(d+4*v)}, v{vaddr}, {S2(sbase)} offset:{step*v} sc1" for v in range(n))
    def extract(a, dst, d):
        a(f"v_perm_b32 v{dst}, v{d+3}, v{d+2}, s{sX1}\nv_perm_b32 v{dst}, v{dst}, v{d+1}, s{sX2}")
    def embed(a, d, val):
        a(f"v_perm_b32 v{d}, v{d}, v{vT}, s{sTAG}\nv_perm_b32 v{d+1}, v{d+1}, v{val}, s{sE1}\nv_perm_b32 v{d+2}, v{d+2}, v{val}, s{sE2}\nv_perm_b32 v{d+3}, v{d+3}, v{val}, s{sE3}")
    def rows_all(a, v, t, op):
        a(f"v_mov_b32 v{t}, v{v}\nv_permlane16_swap_b32 v{v}, v{t}\n{op} v{v}, v{v}, v{t}\nv_mov_b32 v{t}, v{v}\nv_permlane32_swap_b32 v{v}, v{t}\n{op} v{v}, v{v}, v{t}")
    def red32(a, d, y, t):
        return [f"v_permlane16_swap_b32 v{d}, v{d+2}", f"v_permlane16_swap_b32 v{d+1}, v{d+3}",
                f"v_pk_add_f32 {R(d,2)}, {R(d,2)}, {R(d+2,2)}",
                f"v_add_f32_dpp v{y}, v{d}, v{d} {DPP('row_ror:8', 0x3)}", f"v_add_f32_dpp v{y}, v{d+1}, v{d+1} {DPP('row_ror:8', 0xc)}",
                f"v_mov_b32 v{t}, v{y}", f"v_permlane32_swap_b32 v{y}, v{t}", f"v_add_f32 v{y}, v{y}, v{t}"]
    def idxaddr(a, dst):
        a(f"""
        v_and_b32 v1, 7, v{vN}
        v_lshlrev_b32 v{dst}, 3, v1
        v_and_b32 v1, 1, v{vKB}
        v_lshl_add_u32 v{dst}, v1, 2, v{dst}
        v_lshrrev_b32 v1, 3, v{vN}
        v_lshl_add_u32 v{dst}, v1, 1, v{dst}
        """)

def interleave(*ls):
    out = []; ls = [list(l) for l in ls]
    while any(ls):
        for l in ls:
            if l: out.append(l.pop(0))
    return out

def role_bq(a):
    P = a.P
    W, D, ACC, A0 = 16, 80, 96, 100
    vW, vXA = 108, 109
    a(f"""
    L_BQ:
    v_lshlrev_b32 v{vW}, 17, v{vKB}
    v_lshl_add_u32 v{vW}, v{vN}, 4, v{vW}
    s_lshr_b32 s{t0}, s{sI}, 2
    s_lshl_b32 s{t0}, s{t0}, 2
    s_add_u32 s{t0}, s{t0}, s{sK}
    s_lshl_b32 s{t0}, s{t0}, 19
    s_and_b32 s{t1}, s{sI}, 3
    s_lshl_b32 s{t2}, s{sJ}, 2
    s_add_u32 s{sX}, s{t1}, s{t2}
    s_lshl_b32 s{t1}, s{sX}, 8
    s_add_u32 s{t0}, s{t0}, s{t1}
    s_waitcnt lgkmcnt(0)
    s_load_dword s{sT}, s[26:27], 0
    """)
    a.sadd(sA, 10, f"s{t0}")
    for t in range(16):
        a(f"global_load_dwordx4 {R(W+4*t)}, v{vW}, {S2(sA)} nt")
        if t < 15: a(f"v_add_u32 v{vW}, 0x2000, v{vW}")
        if t == 7:
            a.consts(); a.masks(False); a.pwaddr(sK, 1024)
            a(f"""
            s_lshl_b32 s{t0}, s{sX}, 11
            s_lshr_b32 s{t1}, s{sI}, 2
            s_lshl_b32 s{t1}, s{t1}, 9
            s_add_u32 s{t0}, s{t0}, s{t1}
            s_add_u32 s{t0}, s{t0}, {QB}
            s_lshl_b32 s{t1}, s{sK}, 8
            v_lshl_add_u32 v{vXA}, v{vL}, 2, s{t1}
            """)
            a.sadd(sB, 26, f"s{t0}")
    a.stamp(1)
    a.epoch_barrier()
    a(f"ds_read_b32 v{vH2}, v{vXA} offset:{XN}\ns_waitcnt lgkmcnt(0)")
    a.stamp(2)
    def pre(t):
        a(f"s_waitcnt vmcnt({15-t})")
        if t - 1 in P["xsig"]: a.sig_add(vF, PX)
    a.gemv([W], ACC, A0, [(t, vH2, t) for t in range(16)], pre=pre)
    if 15 in P["xsig"]: a.sig_add(vF, PX)
    a.stamp(4)
    a.publish(ACC, PQ, CQ, D, vPR, sB, 4, True)
    a.sig_add(vZ, PP)
    a.stamp(5)
    a.masks(True)
    role_d(a)

def layernorm(a, XF, XU, vXO, u0):
    u1, u2, u3, u4, u5 = range(u0 + 1, u0 + 6)
    for e in range(8): a(f"v_lshlrev_b32 v{XU+2*e}, 16, v{XF+e}\nv_and_b32 v{XU+2*e+1}, 0xffff0000, v{XF+e}")
    def allsum(v, t):
        a(f"v_add_f32 v{v}, v{v}, v{v+1}")
        for c in ("quad_perm:[1,0,3,2]", "quad_perm:[2,3,0,1]", "row_ror:4", "row_ror:8"):
            a(f"v_add_f32_dpp v{v}, v{v}, v{v} {DPP(c)}")
        a.rows_all(v, t, "v_add_f32")
        a(f"v_mul_f32 v{v}, 0x3a800000, v{v}")
    a(f"v_pk_add_f32 {R(u0,2)}, {R(XU,2)}, {R(XU+2,2)}")
    for e in range(2, 8): a(f"v_pk_add_f32 {R(u0,2)}, {R(u0,2)}, {R(XU+2*e,2)}")
    allsum(u0, u4)
    for e in range(8): a(f"v_pk_add_f32 {R(XU+2*e,2)}, {R(XU+2*e,2)}, {R(u0,2)} op_sel_hi:[1,0] neg_lo:[0,1] neg_hi:[0,1]")
    a(f"v_pk_mul_f32 {R(u2,2)}, {R(XU,2)}, {R(XU,2)}")
    for e in range(1, 8): a(f"v_pk_fma_f32 {R(u2,2)}, {R(XU+2*e,2)}, {R(XU+2*e,2)}, {R(u2,2)}")
    allsum(u2, u4)
    a.bf(u0); a.bf(u2)
    a(f"v_add_f32 v{u2}, 0x3727c5ac, v{u2}"); a.bf(u2)
    a(f"v_sqrt_f32 v{u2}, v{u2}"); a.bf(u2)
    a(f"v_rcp_f32 v{u3}, v{u2}\nv_lshlrev_b32 v{vXO}, 16, v{vXO}\nv_sub_f32 v{vXO}, v{vXO}, v{u0}"); a.bf(vXO)
    a(f"v_mul_f32 v{u4}, v{vXO}, v{u3}\nv_fma_f32 v{u5}, -v{u4}, v{u2}, v{vXO}\nv_fma_f32 v{u4}, v{u5}, v{u3}, v{u4}\nv_cvt_pk_bf16_f32 v{vXO}, v{u4}, v{u4}")

def role_d(a):
    P = a.P
    W, GD, ACC, A0 = 16, 48, 80, 84
    vW, vGA, vFA, vINV, AH = 92, 93, 94, 95, 96
    u0, u1, u2, u3, u4 = 98, 99, 100, 101, 102
    a(f"""
    L_D:
    s_lshr_b32 s{t2}, s{sI}, 2
    s_mul_i32 s{t0}, s{t2}, 7
    s_add_u32 s{t0}, s{t0}, s3
    s_lshr_b32 s{t1}, s{t0}, 1
    s_lshl_b32 s{t1}, s{t1}, 12
    s_and_b32 s{t3}, s{t0}, 1
    s_lshl_b32 s{t3}, s{t3}, 6
    s_add_u32 s{t1}, s{t1}, s{t3}
    s_lshl_b32 s{t3}, s{sJ}, 16
    s_add_u32 s{t1}, s{t1}, s{t3}
    s_add_u32 s{t1}, s{t1}, {GU}
    """)
    a.sadd(sC, 26, f"s{t1}")
    a(f"""
    s_mul_i32 s{t1}, s{sJ}, 28
    s_add_u32 s{t0}, s{t0}, s{t1}
    s_lshl_b32 s{t0}, s{t0}, 15
    s_and_b32 s{t3}, s{sI}, 3
    s_lshl_b32 s{t1}, s{t3}, 9
    s_add_u32 s{t0}, s{t0}, s{t1}
    """)
    a.sadd(sA, 20, f"s{t0}")
    a(f"s_lshl_b32 s{t1}, s{sJ}, 2\ns_add_u32 s{t2}, s{t2}, s{t1}")
    a.slotaddr(vFA, t3, t2)
    a.sadd(sB, 26, F1)
    a.wideaddr(vW, 2048); a.pwaddr(3, 1024)
    a(f"""
    v_lshrrev_b32 v1, 2, v{vN}
    v_lshlrev_b32 v{vGA}, 10, v1
    v_lshl_add_u32 v{vGA}, v{vKB}, 7, v{vGA}
    v_and_b32 v1, 3, v{vN}
    v_lshl_add_u32 v{vGA}, v1, 4, v{vGA}
    v_mov_b32 v{vINV}, 0x3a800000
    s_mov_b32 s{sGC}, 0x3d372713
    """)
    if P["prewarm"]:
        l = a.lab("pw")
        a(f"s_cmp_ge_u32 s3, 4\ns_cbranch_scc1 {l}\n" + a.ldn(GD, vGA, sC, 512, 2) + f"\ns_waitcnt vmcnt(0)\n{l}:")
    a.gate(vZ, OG, P["dgate"])
    a.stamp(10)
    for m in range(8):
        if m in P["dwin"]: a(f"s_waitcnt vmcnt({P['dwin'][m]})")
        t = (m >> 1) + 4 * (m & 1)
        a(f"global_load_dwordx4 {R(W+4*t)}, v{vW}, {S2(sA)} offset:{2048*(m&1)} nt")
        if m & 1 and m < 7: a(f"v_add_u32 v{vW}, 0x2000, v{vW}")
    a.stamp(11)
    a.poll(a.ldn(GD, vGA, sC, 512, 2), GD, 2)
    a("s_setprio 3")
    a.stamp(12)
    a.extract(u0, GD); a.extract(u1, GD + 4)
    a(f"""
    v_pk_add_f32 {R(GD,2)}, {R(GD,2)}, {R(GD+4,2)}
    v_pk_add_f32 {R(GD+2,2)}, {R(GD+2,2)}, {R(GD+6,2)}
    v_add_f32 v{u0}, v{u0}, v{u1}
    v_permlane16_swap_b32 v{GD}, v{GD+2}
    v_mov_b32 v{u1}, v{u0}
    v_permlane16_swap_b32 v{GD+1}, v{GD+3}
    v_permlane16_swap_b32 v{u0}, v{u1}
    v_pk_add_f32 {R(GD,2)}, {R(GD,2)}, {R(GD+2,2)}
    v_add_f32 v{u0}, v{u0}, v{u1}
    v_mov_b32 v{u1}, v{u0}
    v_permlane32_swap_b32 v{GD}, v{GD+1}
    v_permlane32_swap_b32 v{u0}, v{u1}
    v_add_f32 v{GD}, v{GD}, v{GD+1}
    v_add_f32 v{u0}, v{u0}, v{u1}
    v_mul_f32_dpp v{u1}, -v{u0}, v{vINV} {DPP('row_newbcast:0')}
    v_mul_f32_dpp v{u2}, v{u0}, v{vINV} {DPP('row_newbcast:1')}
    v_fma_f32 v{u2}, -v{u1}, v{u1}, v{u2}
    v_fmac_f32_dpp v{GD}, v{GD}, v{u1} {DPP('row_shl:4', 0x5)}
    v_max_f32 v{u2}, 0, v{u2}
    v_add_f32 v{u2}, 0x3727c5ac, v{u2}
    v_rsq_f32 v{u2}, v{u2}
    v_mul_f32 v{GD}, v{GD}, v{u2}
    v_cvt_pk_bf16_f32 v{GD}, v{GD}, v{GD}
    v_lshlrev_b32 v{GD}, 16, v{GD}
    v_mul_f32 v{u0}, v{GD}, v{GD}
    v_mul_f32 v{u1}, 0xc0135761, v{GD}
    v_fma_f32 v{u0}, v{u0}, s{sGC}, 1.0
    v_mul_f32 v{u0}, v{u0}, v{u1}
    v_exp_f32 v{u0}, v{u0}
    v_add_f32 v{u0}, 1.0, v{u0}
    v_rcp_f32 v{u0}, v{u0}
    v_mul_f32 v{u0}, v{u0}, v{GD}
    v_cvt_pk_bf16_f32 v{u0}, v{u0}, v{u0}
    v_lshlrev_b32 v{u0}, 16, v{u0}
    v_mul_f32_dpp v{u0}, v{GD}, v{u0} {DPP('row_ror:8')}
    v_cvt_pk_bf16_f32 v{AH}, v{u0}, v{u0}
    v_cvt_pk_bf16_f32 v{AH+1}, v{u0}, v{u0}
    v_permlane32_swap_b32 v{AH}, v{AH+1}
    """)
    a.gemv([W], ACC, A0, [(t, AH + (t >> 2), t & 3) for t in range(8)])
    a.stamp(13)
    a.publish(ACC, PD, CD, GD, vFA, sB, 7, False)
    a.stamp(14)
    a("s_branch L_out")

def role_bw(a):
    P = a.P
    W, D, ACC, A0, WK = 16, 80, 96, 100, 108
    vW, vHA = 124, 125
    XF, XU, vXO, vXA, u0 = 16, 24, 40, 41, 42
    a(f"""
    L_BW:
    s_setprio 3
    v_lshlrev_b32 v{u0}, 5, v{vL}
    s_lshr_b32 s{t0}, s{sI}, 2
    s_lshl_b32 s{t0}, s{t0}, 2
    s_add_u32 s{t0}, s{t0}, s{sK}
    s_lshl_b32 s{t0}, s{t0}, 7
    v_lshl_add_u32 v{u0+1}, v{vL}, 1, s{t0}
    s_waitcnt lgkmcnt(0)
    s_load_dword s{sT}, s[26:27], 0
    global_load_dwordx4 {R(XF)}, v{u0}, s[4:5]
    global_load_dwordx4 {R(XF+4)}, v{u0}, s[4:5] offset:16
    global_load_ushort v{vXO}, v{u0+1}, s[4:5]
    s_lshl_b32 s{t1}, s{sK}, 8
    v_lshl_add_u32 v{vXA}, v{vL}, 2, s{t1}
    s_and_b32 s{t1}, s{sI}, 3
    s_lshl_b32 s{t2}, s{sJ}, 2
    s_add_u32 s{sX}, s{t1}, s{t2}
    s_lshl_b32 s{t3}, s{sX}, 2
    s_add_u32 s{t3}, s{t3}, s{sK}
    s_lshl_b32 s{t0}, s{t3}, 16
    s_lshr_b32 s{t2}, s{sI}, 2
    s_lshl_b32 s{t1}, s{t2}, 9
    s_add_u32 s{t1}, s{t0}, s{t1}
    """)
    a.zero_flags(vW)
    a.sadd(sA, 12, f"s{t1}")
    a(f"s_lshl_b32 s{t3}, s{t3}, 12\ns_add_u32 s{t3}, s{t3}, {O2}")
    a.sadd(sC, 26, f"s{t3}")
    a.sadd(sB, 26, HB)
    a.consts(); a.masks(True); a.pwaddr(sK, 1024); a.wideaddr(vW, 2048); a.slotaddr(vHA, t2, sX)
    a("s_waitcnt vmcnt(0)")
    a.stamp(9)
    layernorm(a, XF, XU, vXO, u0)
    a(f"ds_write_b32 v{vXA}, v{vXO} offset:{XN}\ns_setprio 0")
    a.epoch_barrier()
    a.xt_publish(WK, WK + 1)
    a.stamp(1)
    for m in range(16):
        if m in P["wgate"]:
            if P["wgate"][m] == "p": a.gate(vZ, PP, 4)
            else: a.gate(vF, PX, P["wgate"][m])
        if m in P["wwin"]: a(f"s_waitcnt vmcnt({P['wwin'][m]})")
        if m == 0: a.stamp(2)
        t = (m >> 1) + 8 * (m & 1)
        a(f"global_load_dwordx4 {R(W+4*t)}, v{vW}, {S2(sA)} offset:{2048*(m&1)} nt")
        if m & 1 and m < 15: a(f"v_add_u32 v{vW}, 0x2000, v{vW}")
    a.stamp(3)
    def first():
        a("s_waitcnt vmcnt(4)"); a.stamp(4)
    a.poll(a.ldn(D, vPR, sC, 1024), D, 4, first=first if P["dev"] else None)
    a("s_setprio 3")
    if P["dafter"] == "o": a.sig_add(vZ, OG)
    a.stamp(5)
    val, wt, mx, tt, acc, al, y = WK, WK + 4, WK + 8, WK + 9, WK + 12, WK + 10, WK + 11
    for v in range(4): a.extract(val + v, D + 4 * v)
    a(f"v_max3_f32 v{mx}, v{val}, v{val+1}, v{val+2}\nv_max_f32 v{mx}, v{mx}, v{val+3}")
    a(f"v_max_f32_dpp v{mx}, v{mx}, v{mx} {DPP('row_ror:8')}")
    a.rows_all(mx, tt, "v_max_f32")
    a(f"v_mov_b32_dpp v{mx}, v{mx} {DPP('quad_perm:[0,0,2,2]')}")
    for v in range(4): a(f"v_sub_f32_dpp v{wt+v}, v{val+v}, v{mx} {DPP('quad_perm:[0,0,2,2]')}")
    a(f"v_pk_mul_f32 {R(wt,2)}, {R(wt,2)}, {S2(sL2E)}\nv_pk_mul_f32 {R(wt+2,2)}, {R(wt+2,2)}, {S2(sL2E)}")
    for v in range(4): a(f"v_exp_f32 v{wt+v}, v{wt+v}")
    for v in range(4):
        sel = v & 1; wp = R(wt + (v & 2), 2)
        a(f"v_mul_f32 v{al}, v{val}, v{wt}" if v == 0 else f"v_fmac_f32 v{al}, v{val+v}, v{wt+v}")
        for h in (0, 2):
            if v == 0: a(f"v_pk_mul_f32 {R(acc+h,2)}, {R(D+h,2)}, {wp} op_sel:[0,0] op_sel_hi:[1,0]")
            else: a(f"v_pk_fma_f32 {R(acc+h,2)}, {R(D+4*v+h,2)}, {wp}, {R(acc+h,2)} op_sel:[0,{sel},0] op_sel_hi:[1,{sel},1]")
    la = [f"v_add_f32_dpp v{al}, v{al}, v{al} {DPP('row_ror:8')}", f"v_mov_b32 v{tt}, v{al}", f"v_permlane16_swap_b32 v{al}, v{tt}",
          f"v_add_f32 v{al}, v{al}, v{tt}", f"v_mov_b32 v{tt}, v{al}", f"v_permlane32_swap_b32 v{al}, v{tt}", f"v_add_f32 v{al}, v{al}, v{tt}",
          f"v_rcp_f32 v{al}, v{al}"]
    for x in interleave(la, a.red32(acc, y, mx)): a(x)
    a(f"v_mul_f32_dpp v{y}, v{al}, v{y} {DPP('quad_perm:[1,1,3,3]')}\nv_cvt_pk_bf16_f32 v{vH2}, v{y}, v{y}")
    a.stamp(6)
    a.gemv([W], ACC, A0, [(t, vH2, t) for t in range(16)])
    a.stamp(7)
    a.publish(ACC, PO, CO, D, vHA, sB, 4, False)
    if P["dafter"] == "h": a.sig_add(vZ, OG)
    a("s_setprio 0")
    a.stamp(8)
    a("s_cmp_eq_u32 s3, 7\ns_cbranch_scc1 L_out\ns_branch L_D")

def role_ax(a):
    P = a.P
    KF, VF, QD, QF, ACC, SR, F, D, ONES = 16, 48, 80, 80, 96, 104, 112, 128, 144
    vK0, vA0 = 148, 152
    vQW, vQR, vSW, vVA, vOW, vOR, vO2 = 156, 157, 158, 159, 161, 162, 163
    u0, u1, u2, u3, u4 = 164, 165, 166, 167, 168
    a(f"""
    L_AX:
    v_xor_b32 v1, v{vKB}, v{vN}
    v_lshlrev_b32 v1, 4, v1
    v_lshl_add_u32 v{vK0}, v{vKB}, 8, v1
    v_xor_b32 v{vK0+1}, 64, v{vK0}
    v_xor_b32 v{vK0+2}, 0x80, v{vK0}
    v_xor_b32 v{vK0+3}, 0xc0, v{vK0}
    s_and_b32 s{sX}, s{sJ}, 1
    s_lshl_b32 s{sX}, s{sX}, 4
    s_add_u32 s{sX}, s{sX}, s{sI}
    s_lshl_b32 s{t0}, s{sG}, 24
    s_lshl_b32 s{t1}, s{sX}, 15
    s_add_u32 s{t0}, s{t0}, s{t1}
    s_lshl_b32 s{t3}, s{sK}, 13
    s_add_u32 s{t0}, s{t0}, s{t3}
    s_add_u32 s{t0}, s{t0}, {KOFF}
    s_add_u32 m0, s{t3}, {KL}
    s_waitcnt lgkmcnt(0)
    s_load_dword s{sT}, s[26:27], 0
    """)
    a.sadd(sA, 6, f"s{t0}"); a.sadd(sB, sA, 4096)
    def kload(m):
        if m == 4: a(f"s_add_u32 m0, s{t3}, {KL+4096}")
        a(f"global_load_lds_dwordx4 v{vK0+(m&3)}, {S2(sA if m < 4 else sB)} offset:{1024*(m&3)} nt")
    n0 = min(list(P["kwin"]) + [8])
    for m in range(n0): kload(m)
    a.stamp(1)
    a.consts()
    a(f"s_lshl_b32 s{t0}, s{sG}, 14\ns_lshl_b32 s{t1}, s{sK}, 12\ns_add_u32 s{t0}, s{t0}, s{t1}\ns_add_u32 s{t0}, s{t0}, {QB}")
    a.sadd(sC, 26, f"s{t0}")
    a(f"s_lshl_b32 s{t0}, s{sG}, 17\ns_add_u32 s{t0}, s{t0}, {O2}")
    a.sadd(sD, 26, f"s{t0}")
    a(f"""
    v_xor_b32 v1, v{vKB}, v{vN}
    v_lshlrev_b32 v1, 4, v1
    v_lshl_add_u32 v{vA0}, v{vN}, 8, v1
    v_add_u32 v{vA0}, s{t3}, v{vA0}
    v_xor_b32 v{vA0+1}, 64, v{vA0}
    v_xor_b32 v{vA0+2}, 0x80, v{vA0}
    v_xor_b32 v{vA0+3}, 0xc0, v{vA0}
    v_lshrrev_b32 v1, 5, v{vL}
    v_mul_u32_u24 v{vQW}, 288, v1
    v_and_b32 v1, 31, v{vL}
    v_lshl_add_u32 v{vQW}, v1, 3, v{vQW}
    s_mul_i32 s{t0}, s{sK}, 576
    v_add_u32 v{vQW}, s{t0}, v{vQW}
    v_and_b32 v{u0}, 7, v{vN}
    v_mul_u32_u24 v{vQR}, 288, v{u0}
    v_lshl_add_u32 v{vQR}, v{vKB}, 4, v{vQR}
    v_lshrrev_b32 v1, 1, v{vKB}
    v_lshlrev_b32 v{vSW}, 8, v1
    v_lshrrev_b32 v1, 3, v{vN}
    v_lshl_add_u32 v{vSW}, v1, 9, v{vSW}
    v_lshl_add_u32 v{vSW}, v{u0}, 4, v{vSW}
    v_and_b32 v1, 1, v{vKB}
    v_lshl_add_u32 v{vSW}, v1, 3, v{vSW}
    s_and_b32 s{t0}, s{sK}, 1
    s_lshl_b32 s{t0}, s{t0}, 7
    s_lshr_b32 s{t1}, s{sK}, 1
    s_lshl_b32 s{t1}, s{t1}, 10
    s_add_u32 s{t0}, s{t0}, s{t1}
    v_add_u32 v{vSW}, s{t0}, v{vSW}
    v_lshrrev_b32 v{u1}, 2, v{vN}
    v_lshl_add_u32 v{u2}, v1, 2, v{u1}
    v_lshlrev_b32 v{u2}, 1, v{u2}
    v_and_b32 v{u3}, 3, v{vN}
    v_lshrrev_b32 v{u4}, 1, v{u3}
    s_lshl_b32 s{t0}, s{sK}, 2
    v_add_u32 v{u4}, s{t0}, v{u4}
    v_xor_b32 v{u4}, v{u4}, v{u2}
    v_lshlrev_b32 v{u4}, 4, v{u4}
    v_and_b32 v{u3}, 1, v{u3}
    v_lshl_add_u32 v{u4}, v{u3}, 3, v{u4}
    v_lshl_add_u32 v{u1}, v{vKB}, 3, v{u1}
    v_lshl_add_u32 v{vVA}, v{u1}, 8, v{u4}
    v_add_u32 v{vVA}, {VL}, v{vVA}
    v_xor_b32 v{vVA+1}, 32, v{vVA}
    v_mul_u32_u24 v{vOW}, 144, v{u0}
    v_lshrrev_b32 v1, 3, v{vN}
    v_lshl_add_u32 v1, v1, 2, v{vKB}
    v_lshl_add_u32 v{vOW}, v1, 4, v{vOW}
    s_mul_i32 s{t0}, s{sK}, 1152
    v_add_u32 v{vOW}, s{t0}, v{vOW}
    v_lshrrev_b32 v{u1}, 3, v{vL}
    v_and_b32 v{u2}, 7, v{vL}
    v_mul_u32_u24 v{vOR}, 144, v{u1}
    v_lshl_add_u32 v{vOR}, v{u2}, 4, v{vOR}
    v_add_u32 v{vOR}, s{t0}, v{vOR}
    v_lshlrev_b32 v{u1}, 2, v{u1}
    v_add_u32 v{u1}, s{sK}, v{u1}
    v_add_u32 v1, s{sX}, v{u1}
    v_and_b32 v1, 31, v1
    v_lshlrev_b32 v1, 7, v1
    v_lshl_add_u32 v{vO2}, v{u1}, 12, v1
    v_lshl_add_u32 v{vO2}, v{u2}, 4, v{vO2}
    s_mov_b32 s{sN8}, 0xff00ff00
    s_mov_b32 s{sN8+1}, 0xff00ff00
    s_mov_b32 s{sSC}, 0x3db504f3
    s_mov_b32 s{sSC+1}, 0x3db504f3
    s_mov_b32 s{sB1}, 0xffff0000
    s_mov_b32 s{sB1+1}, 0xffff0000
    """)
    for d in range(4): a(f"v_mov_b32 v{ONES+d}, 0x3f803f80")
    a.epoch_barrier()
    landed = -1
    def land(n):
        nonlocal landed
        for x in range(landed + 1, n + 1):
            if x in P["ksig"]: a.sig_add(vF, PK)
        landed = max(landed, n)
    for m in range(n0, 8):
        if m in P["kwin"]:
            a(f"s_waitcnt vmcnt({P['kwin'][m]})"); land(m - 1 - P["kwin"][m])
        kload(m)
    a.stamp(2)
    def first():
        for x in sorted(P["ksig"]):
            if landed < x < 7: a(f"s_waitcnt vmcnt({4+7-x})"); land(x)
        a("s_waitcnt vmcnt(4)"); land(7)
        a.stamp(3)
        for z in range(2):
            for s in range(4): a(f"ds_read_b128 {R(KF+16*z+4*s)}, v{vA0+s} offset:{KL+4096*z}")
    a.poll(a.ldn(QD, vPR, sC, 1024), QD, 4, first=first)
    a("s_setprio 3")
    a.stamp(4)
    for h in (0, 8):
        for p in (0, 2): a(f"v_pk_add_f32 {R(QD+h+p,2)}, {R(QD+h+p,2)}, {R(QD+h+4+p,2)}")
    for d in range(4): a(f"v_permlane32_swap_b32 v{QD+d}, v{QD+8+d}")
    a(f"""
    v_pk_add_f32 {R(QD,2)}, {R(QD,2)}, {R(QD+8,2)}
    v_pk_add_f32 {R(QD+2,2)}, {R(QD+2,2)}, {R(QD+10,2)}
    v_cvt_pk_bf16_f32 v{u0}, v{QD}, v{QD+1}
    v_cvt_pk_bf16_f32 v{u1}, v{QD+2}, v{QD+3}
    ds_write_b64 v{vQW}, {R(u0,2)} offset:{QL}
    """)
    a.sig_add(vZ, QC)
    top, done = a.lab("qs"), a.lab("qsd")
    a(f"{top}:\nds_read_b32 v1, v{vZ} offset:{QC}")
    for s in range(4): a(f"ds_read_b128 {R(QF+4*s)}, v{vQR} offset:{QL+64*s}")
    a(f"s_waitcnt lgkmcnt(0)\nv_readfirstlane_b32 s{t0}, v1\ns_cmp_eq_u32 s{t0}, 4\ns_cbranch_scc1 {done}")
    a.budget(top); a(f"{done}:")
    a.stamp(5)
    for s in range(4):
        for z in range(2): a(f"v_mfma_f32_16x16x32_bf16 {R(ACC+4*z)}, {R(KF+16*z+4*s)}, {R(QF+4*s)}, {R(ACC+4*z) if s else 0}")
    for r in range(4): a(f"v_cndmask_b32 v{ACC+r}, v{ACC+r}, v{ACC+4+r}, {S2(sN8)}")
    a(f"""
    v_cvt_pk_bf16_f32 v{u0}, v{ACC}, v{ACC+1}
    v_cvt_pk_bf16_f32 v{u1}, v{ACC+2}, v{ACC+3}
    v_lshlrev_b32 v{ACC}, 16, v{u0}
    v_and_b32 v{ACC+1}, 0xffff0000, v{u0}
    v_lshlrev_b32 v{ACC+2}, 16, v{u1}
    v_and_b32 v{ACC+3}, 0xffff0000, v{u1}
    v_pk_mul_f32 {R(ACC,2)}, {R(ACC,2)}, {S2(sSC)}
    v_pk_mul_f32 {R(ACC+2,2)}, {R(ACC+2,2)}, {S2(sSC)}
    v_cvt_pk_bf16_f32 v{u0}, v{ACC}, v{ACC+1}
    v_cvt_pk_bf16_f32 v{u1}, v{ACC+2}, v{ACC+3}
    ds_write_b64 v{vSW}, {R(u0,2)} offset:{SL}
    """)
    a.sig_add(vZ, SC)
    top, done = a.lab("ss"), a.lab("ssd")
    a(f"{top}:\nds_read_b32 v1, v{vZ} offset:{SC}\nds_read_b128 {R(SR)}, v{vPR} offset:{SL}\nds_read_b128 {R(SR+4)}, v{vPR} offset:{SL+1024}")
    a(f"s_waitcnt lgkmcnt(0)\nv_readfirstlane_b32 s{t0}, v1\ns_cmp_eq_u32 s{t0}, 8\ns_cbranch_scc1 {done}")
    a.budget(top); a(f"{done}:")
    for H in range(4):
        for b in range(2):
            for z in range(2):
                a(f"ds_read_b64_tr_b16 {R(VF+16*b+4*H+2*z,2)}, v{vVA+b} offset:{8192*H+1024*z}")
    a.stamp(6)
    for e in range(8): a(f"v_lshlrev_b32 v{F+2*e}, 16, v{SR+e}\nv_and_b32 v{F+2*e+1}, 0xffff0000, v{SR+e}")
    a(f"""
    v_max3_f32 v{u0}, v{F}, v{F+1}, v{F+2}
    v_max3_f32 v{u1}, v{F+3}, v{F+4}, v{F+5}
    v_max3_f32 v{u2}, v{F+6}, v{F+7}, v{F+8}
    v_max3_f32 v{u3}, v{F+9}, v{F+10}, v{F+11}
    v_max3_f32 v{u0}, v{u0}, v{F+12}, v{F+13}
    v_max3_f32 v{u1}, v{u1}, v{F+14}, v{F+15}
    v_max3_f32 v{u0}, v{u0}, v{u2}, v{u3}
    v_max_f32 v{u0}, v{u0}, v{u1}
    v_max_f32_dpp v{u0}, v{u0}, v{u0} {DPP('row_ror:8')}
    """)
    a.rows_all(u0, u1, "v_max_f32")
    for e in range(8): a(f"v_pk_add_f32 {R(F+2*e,2)}, {R(F+2*e,2)}, {R(u0,2)} op_sel_hi:[1,0] neg_lo:[0,1] neg_hi:[0,1]")
    for e in range(8): a(f"v_pk_mul_f32 {R(F+2*e,2)}, {R(F+2*e,2)}, {S2(sL2E)}")
    for p in range(2):
        for e in range(8): a(f"v_exp_f32 v{F+8*p+e}, v{F+8*p+e}")
        for e in range(4): a(f"v_cvt_pk_bf16_f32 v{SR+4*p+e}, v{F+8*p+2*e}, v{F+8*p+2*e+1}")
        if p == 0: a("s_waitcnt lgkmcnt(0)")
        a(f"v_mfma_f32_16x16x32_bf16 {R(ACC)}, {R(ONES)}, {R(SR+4*p)}, {R(ACC) if p else 0}")
        for b in range(2):
            for hi in range(2):
                dd = D + 8 * b + 4 * hi
                a(f"v_mfma_f32_16x16x32_bf16 {R(dd)}, {R(VF+16*b+4*(2*p+hi))}, {R(SR+4*p)}, {R(dd) if p else 0}")
    a(f"v_add_f32_dpp v{u2}, v{ACC}, v{ACC} {DPP('row_ror:8')}\nv_cndmask_b32 v{u2}, v{u0}, v{u2}, {S2(sB1)}")
    for r in range(4): a(f"v_add_f32_dpp v{F+r}, v{D+4+r}, v{D+r} {DPP('row_ror:8', 0x3)}")
    for r in range(4): a(f"v_add_f32_dpp v{F+r}, v{D+8+r}, v{D+12+r} {DPP('row_ror:8', 0xc)}")
    a.embed(F, u2)
    a(f"ds_write_b128 v{vOW}, {R(F)} offset:{OT}\nds_read_b128 {R(F+4)}, v{vOR} offset:{OT}\ns_waitcnt lgkmcnt(0)")
    a(f"global_store_dwordx4 v{vO2}, {R(F+4)}, {S2(sD)} sc1")
    a.sig_add(vZ, OG)
    a("s_setprio 0")
    a.stamp(7)
    a(f"s_cmp_ge_u32 s{sK}, 2\ns_cbranch_scc1 L_out")
    if P["local"]:
        top, done = a.lab("xt"), a.lab("xtd")
        a(f"""
        s_getreg_b32 s{t0}, hwreg(HW_REG_XCC_ID, 0, 4)
        s_add_u32 s{t0}, s{t0}, s{sT}
        v_mov_b32 v{u1}, s{t0}
        s_lshl_b32 s{t1}, s{sJ}, 7
        s_add_u32 s{t1}, s{t1}, {XT}
        v_and_b32 v{u0}, 31, v{vL}
        v_lshl_add_u32 v{u0}, v{u0}, 2, s{t1}
        {top}:
        global_load_dword v{u2}, v{u0}, s[26:27] sc1
        s_waitcnt vmcnt(0)
        v_sub_u32 v{u3}, v{u2}, v{vT}
        v_cmp_le_u32 vcc, 16, v{u3}
        s_cbranch_vccz {done}
        s_sleep 2
        """)
        a.budget(top)
        a(f"""
        {done}:
        v_cmp_ne_u32 vcc, v{u2}, v{u1}
        s_cmp_eq_u64 vcc, 0
        s_cselect_b32 s{sVERD}, 1, 2
        v_mov_b32 v{u2}, s{sVERD}
        ds_write_b32 v{vZ}, v{u2} offset:{VERD}
        """)
    a.stamp(8)
    guaddr(a, vO2, sA, sE, f"s{sK}" if P["bal"] else 0)
    a(f"s_lshl_b32 s{t0}, s{sK}, 11\ns_add_u32 s{t0}, s{t0}, 1024\nv_add_u32 v{vO2}, s{t0}, v{vO2}\nv_add_u32 v{u0}, s{t0}, v{vPR}")
    a.gate(vZ, CC, 4)
    for w in range(4): a(f"ds_read_b128 {R(KF+4*w)}, v{u0} offset:{PGU+4096*w}")
    a("s_waitcnt lgkmcnt(0)")
    a.sumn(KF, 4)
    a(f"v_perm_b32 v{KF}, v{KF}, v{vT}, s{sTAG}\ns_mov_b64 exec, {S2(sE)}")
    a.lstore(f"global_store_dwordx4 v{vO2}, {R(KF)}, {S2(sA)}")
    a("s_mov_b64 exec, -1")
    a.stamp(9)
    a("s_branch L_out")

def guaddr(a, dst, sbase, sE, flip):
    a(f"""
    s_xor_b32 s{t0}, s{sI}, {flip}
    s_and_b32 s{t0}, s{t0}, 1
    s_lshl_b32 s{t1}, s{t0}, 15
    s_lshr_b32 s{t2}, s{sI}, 1
    s_lshl_b32 s{t2}, s{t2}, 7
    s_add_u32 s{t1}, s{t1}, s{t2}
    s_lshl_b32 s{t2}, s{sJ}, 16
    s_add_u32 s{t1}, s{t1}, s{t2}
    s_add_u32 s{t1}, s{t1}, {GU}
    s_cmp_eq_u32 s{t0}, 0
    s_mov_b32 s{sE}, -1
    s_cselect_b32 s{sE+1}, -1, 0xffff
    """)
    if dst: a(f"v_lshrrev_b32 v1, 3, v{vL}\nv_lshlrev_b32 v{dst}, 12, v1\nv_and_b32 v1, 7, v{vL}\nv_lshl_add_u32 v{dst}, v1, 4, v{dst}")
    a.sadd(sbase, 26, f"s{t1}")

def role_ag(a):
    P = a.P
    WG, WU, ACC, CS, A0, UN, D, E = 16, 80, 144, 152, 160, 168, 172, 188
    vW, vX, vSA, vST, vOA, vV0 = 204, 205, 206, 207, 209, 210
    hv, z, zt, u0, u1, vWU = 212, 213, 214, 215, 216, 217
    sG1, sU1 = sC, sD
    a(f"""
    L_AG:
    v_lshlrev_b32 v1, 1, v{vKB}
    v_xor_b32 v1, v1, v{vN}
    v_lshlrev_b32 v1, 4, v1
    v_lshl_add_u32 v{vV0}, v{vKB}, 8, v1
    v_xor_b32 v{vV0+1}, 0x80, v{vV0}
    s_and_b32 s{sX}, s{sJ}, 1
    s_lshl_b32 s{sX}, s{sX}, 4
    s_add_u32 s{sX}, s{sX}, s{sI}
    s_lshl_b32 s{t0}, s{sG}, 24
    s_lshl_b32 s{t1}, s{sX}, 15
    s_add_u32 s{t0}, s{t0}, s{t1}
    s_lshl_b32 s{t3}, s{sK}, 13
    s_add_u32 s{t0}, s{t0}, s{t3}
    s_add_u32 s{t2}, s{t0}, {KOFF}
    s_add_u32 m0, s{t3}, {VL}
    """)
    a.zero_flags(vW)
    a(f"s_waitcnt lgkmcnt(0)\ns_load_dword s{sT}, s[26:27], 0")
    a.sadd(sA, 8, f"s{t2}"); a.sadd(sB, sA, 4096)
    def vload(m):
        if m == 4: a(f"s_add_u32 m0, s{t3}, {VL+4096}")
        a(f"global_load_lds_dwordx4 v{vV0+((m>>1)&1)}, {S2(sA if m < 4 else sB)} offset:{1024*(m&3)} nt")
    n0 = min(list(P["vwin"]) + list(P["vgate"]) + [8])
    for m in range(n0): vload(m)
    a.consts(); a.masks(True); a.pwaddr(sK, 4096)
    a(f"s_lshr_b32 s{sX}, s{sI}, 1\ns_lshl_b32 s{sX}, s{sX}, 2\ns_add_u32 s{sX}, s{sX}, s{sK}")
    a.idxaddr(vOA)
    a(f"s_lshl_b32 s{t0}, s{sX}, 6\nv_add_u32 v{vOA}, s{t0}, v{vOA}")
    for d in range(4): a(f"v_and_b32 v{UN+d}, 0x3f803f80, v{vM+d}")
    a.epoch_barrier()
    a.xt_publish(u0, u1)
    a(f"global_load_ushort v{vX}, v{vOA}, s[4:5]")
    a.stamp(1)
    for m in range(n0, 8):
        if m in P["vgate"]: a.gate(vF, PK, P["vgate"][m])
        if m in P["vwin"]: a(f"s_waitcnt vmcnt({P['vwin'][m]})")
        if m == n0: a.stamp(2)
        vload(m)
    a.wideaddr(vW, 7168)
    a(f"""
    s_mul_i32 s{t0}, s{sX}, {32*7168}
    s_mul_i32 s{t1}, s{sJ}, 896
    s_add_u32 s{t0}, s{t0}, s{t1}
    s_and_b32 s{t1}, s{sI}, 1
    s_xor_b32 s{t3}, s{t1}, {P["bal"]}
    s_mov_b32 s{sN8}, 0
    s_mul_i32 s{sN8+1}, s{t3}, 0xff00ff00
    v_subrev_u32 v1, 0x80, v{vW}
    v_cndmask_b32 v{vWU}, v{vW}, v1, {S2(sN8)}
    s_mul_i32 s{sN8+1}, s{t1}, 0xff00ff00
    s_lshl_b32 s{t3}, s{t3}, 9
    s_add_u32 s{t3}, s{t3}, s{t0}
    s_lshl_b32 s{t1}, s{t1}, 9
    s_add_u32 s{t0}, s{t0}, s{t1}
    v_cndmask_b32 v{vW}, v{vW}, v1, {S2(sN8)}
    v_lshrrev_b32 v1, 5, v{vL}
    v_lshl_add_u32 v{vST}, v1, 4, v{vF}
    v_and_b32 v1, 1, v{vL}
    v_lshlrev_b32 v{vST+1}, 4, v1
    s_mov_b32 s{sB1}, 0
    s_mov_b32 s{sB1+1}, -1
    s_mov_b32 s{sSC}, 1
    s_mov_b32 s{sSC+1}, 1
    """)
    a.sadd(sA, 16, f"s{t0}"); a.sadd(sB, 18, f"s{t3}"); a.sadd(sG1, sA, 7168); a.sadd(sU1, sB, 7168)
    def vlanded(n):
        a(f"s_waitcnt vmcnt({n})")
        a.sig_add(vZ, SC)
        a.stamp(3)
        a(f"v_lshlrev_b32 v{vX}, 16, v{vX}")
        if P["gq"]: a.gate(vZ, QC, P["gq"])
        a.stamp(4)
    order = []
    for c in range(8): order += [(WG, c, sA), (WU, c, sB), (WG, c + 8, sG1), (WU, c + 8, sU1)]
    done_c = 0
    def csum(n):
        nonlocal done_c
        for x in range(done_c, n):
            w, t, _ = order[x]; cc = CS + (4 if w == WU else 0)
            a(f"v_mfma_f32_16x16x32_bf16 {R(cc)}, {R(UN)}, {R(w+4*t)}, {R(cc) if x > 1 else 0}")
        done_c = max(done_c, n)
    for m, (w, t, sb) in enumerate(order):
        if m == P["gearly"]: vlanded(m)
        if m in P["gwin"]:
            g = P["gwin"][m]
            if g == "o": a.gate(vZ, OG, 4)
            else: a(f"s_waitcnt vmcnt({g})"); csum(m - g)
        a(f"global_load_dwordx4 {R(w+4*t)}, v{vW if w == WG else vWU}, {S2(sb)} nt")
        if m & 3 == 2 and m < 30: a(f"v_add_u32 v{vW}, {4*7168}, v{vW}")
        if m & 3 == 3 and m < 30: a(f"v_add_u32 v{vWU}, {4*7168}, v{vWU}")
    a.stamp(5)
    a(f"s_lshl_b32 s{t1}, s{sX}, 12\ns_add_u32 s{t1}, s{t1}, {HB}")
    a.sadd(sC, 26, f"s{t1}")
    guaddr(a, vSA, sD, sE, 0); guaddr(a, None, sA, sB, P["bal"])
    def first():
        for x in range(done_c, 32, 2):
            a(f"s_waitcnt vmcnt({4+30-x})"); csum(x + 2)
        a.stamp(6)
        a(f"ds_write_b128 v{vPW}, {R(CS)} offset:{PGU+1024}\nds_write_b128 v{vPW}, {R(CS+4)} offset:{PGU+3072}")
        a.sig_add(vZ, CC)
    a.poll(a.ldn(D, vPR, sC, 1024), D, 4, first=first)
    a("s_setprio 3")
    a.stamp(7)
    a.sumn(D, 4)
    for x in a.red32(D, hv, z): a(x)
    a(f"""
    v_cvt_pk_bf16_f32 v{hv}, v{hv}, v{hv}
    v_lshlrev_b32 v{hv}, 16, v{hv}
    v_add_f32 v{hv}, v{hv}, v{vX}
    v_cvt_pk_bf16_f32 v{vH2}, v{hv}, v{hv}
    """)
    fill = [f"v_lshlrev_b32 v{hv}, 16, v{vH2}", f"v_cndmask_b32 v{z}, 1.0, v{hv}, {S2(sB1)}", f"v_mul_f32 v{z}, v{z}, v{hv}"]
    fill += [f"v_add_f32_dpp v{z}, v{z}, v{z} {DPP(c)}" for c in ("quad_perm:[1,0,3,2]", "quad_perm:[2,3,0,1]", "row_ror:4", "row_ror:8")]
    fill += [f"v_mov_b32 v{zt}, v{z}", f"v_permlane16_swap_b32 v{z}, v{zt}", f"v_add_f32 v{z}, v{z}, v{zt}",
             f"s_mov_b64 exec, {S2(sSC)}\nds_write_b32 v{vST}, v{z} offset:{ST}\ns_mov_b64 exec, -1"]
    a.gemv([WG, WU], ACC, A0, [(t, vH2, t) for t in range(16)], fill=fill)
    a.stamp(8)
    skip = a.lab("pub")
    a(f"""
    ds_write_b128 v{vPW}, {R(ACC)} offset:{PGU}
    ds_write_b128 v{vPW}, {R(ACC+4)} offset:{PGU+2048}
    s_mov_b64 exec, 1
    ds_add_rtn_u32 v1, v{vZ}, v{vONE} offset:{CG}
    s_mov_b64 exec, -1
    ds_read_b32 v{u0}, v{vZ} offset:{VERD}
    ds_read_b128 {R(A0)}, v{vST+1} offset:{ST}
    """)
    for m in range(2):
        for w in range(4): a(f"ds_read_b128 {R(D+16*m+4*w)}, v{vPR} offset:{PGU+4096*w+2048*m}")
    a(f"""
    s_waitcnt lgkmcnt({a.lg(10)})
    v_readfirstlane_b32 s{t0}, v1
    s_cmp_eq_u32 s{t0}, 3
    s_cbranch_scc0 {skip}
    s_waitcnt lgkmcnt({a.lg(4)})
    v_readfirstlane_b32 s{sVERD}, v{u0}
    v_pk_add_f32 {R(A0,2)}, {R(A0,2)}, {R(A0+2,2)}
    v_add_f32 v{A0}, v{A0}, v{A0+1}
    """)
    a.sumn(D, 4)
    a.embed(D, A0)
    a(f"s_mov_b64 exec, {S2(sE)}")
    a.lstore(f"global_store_dwordx4 v{vSA}, {R(D)}, {S2(sD)}")
    a(f"s_mov_b64 exec, {S2(sB)}\ns_waitcnt lgkmcnt(0)")
    a.sumn(E, 4)
    a(f"v_perm_b32 v{E}, v{E}, v{vT}, s{sTAG}")
    a.lstore(f"global_store_dwordx4 v{vSA}, {R(E)}, {S2(sA)} offset:2048")
    a(f"s_mov_b64 exec, -1\n{skip}:\ns_waitcnt lgkmcnt(0)\ns_setprio 0")
    a.stamp(9)
    a(f"""
    s_and_b32 s{t0}, s{sX}, 7
    s_cmp_eq_u32 s{t0}, s{sJ}
    s_cbranch_scc0 L_out
    s_bitcmp1_b32 s{sI}, 0
    s_cbranch_scc0 L_out
    s_lshl_b32 s{t1}, s{sX}, 12
    s_add_u32 s{t1}, s{t1}, {F1}
    """)
    a.sadd(sC, 26, f"s{t1}")
    if P["prewarm"]: a(f"global_load_ushort v{u0}, v{vOA}, s[22:23]")
    a.poll(a.ldn(D, vPR, sC, 1024), D, 4)
    a.stamp(10)
    a.sumn(D, 4)
    for x in a.red32(D, z, zt): a(x)
    a(f"""
    v_cvt_pk_bf16_f32 v{z}, v{z}, v{z}
    v_lshlrev_b32 v{z}, 16, v{z}
    v_add_f32 v{z}, v{z}, v{hv}
    v_cvt_pk_bf16_f32 v{z}, v{z}, v{z}
    s_mov_b32 exec_hi, 0
    global_store_short v{vOA}, v{z}, s[22:23]
    s_mov_b64 exec, 1
    s_cmp_eq_u32 s{sX}, 0
    s_cbranch_scc0 L_fin
    global_store_dword v{vZ}, v{vT}, s[26:27] sc1
    L_fin:
    s_mov_b64 exec, -1
    """)
    a.stamp(11)

def gen(**kw):
    P = dict(DEF); P.update(kw)
    a = K(P)
    a.stamp(0)
    a(f"""
    s_cmp_ge_u32 s2, 256
    s_cbranch_scc1 L_end
    s_load_dwordx16 s[4:19], s[0:1], 0
    s_load_dwordx8 s[20:27], s[0:1], 64
    v_lshrrev_b32 v1, 6, v0
    v_and_b32 v0, 63, v0
    v_readfirstlane_b32 s3, v1
    v_and_b32 v{vN}, 15, v0
    v_lshrrev_b32 v{vKB}, 4, v0
    s_and_b32 s{sJ}, s2, 7
    s_bfe_u32 s{sI}, s2, 0x40003
    s_lshr_b32 s{sG}, s{sJ}, 1
    s_mov_b32 s{sBUD}, {P['bud']}
    s_and_b32 s{sK}, s3, 3
    """)
    if P["dev"]:
        for i in range(1, 15): a(f"s_mov_b32 s{STAMP0+2*i}, 0")
    a(f"""
    s_cmp_ge_u32 s2, 128
    s_cbranch_scc1 L_A
    s_cmp_ge_u32 s3, 4
    s_cbranch_scc1 L_BW
    """)
    role_bq(a); a("; @reset"); role_bw(a); a("; @reset")
    a("L_A:\ns_cmp_ge_u32 s3, 4\ns_cbranch_scc1 L_AG")
    role_ax(a); a("; @reset"); role_ag(a)
    a("L_out:")
    if P["dev"]:
        a("s_waitcnt lgkmcnt(0)")
        for i in range(15): a(f"v_writelane_b32 v1, s{STAMP0+2*i}, {i}")
        a(f"""
        v_writelane_b32 v1, s{sBUD}, 15
        s_lshl_b32 s{t0}, s2, 4
        s_add_u32 s{t0}, s{t0}, s3
        s_lshl_b32 s{t0}, s{t0}, 6
        s_add_u32 s{t0}, s{t0}, {128<<20}
        v_lshlrev_b32 v2, 2, v0
        v_add_u32 v2, s{t0}, v2
        s_mov_b64 exec, 0xffff
        global_store_dword v2, v1, s[26:27]
        """)
    a("L_end:\ns_endpgm")
    body = a.finish()
    assert 128 < a.maxv <= 256, a.maxv
    return wrap([(KNAME, body, 256, 512, LDS, a.maxv)]), a

if __name__ == "__main__":
    kw = eval("dict(" + (sys.argv[2] if len(sys.argv) > 2 else "") + ")")
    s, a = gen(**kw)
    open(sys.argv[1], "w").write(s)
    print("vgpr", a.maxv, "sgpr", a.maxs, "lines", s.count("\n"), "nops", s.count("s_nop"))
```

```python
import sys
from asm import *
KOFF = (65536 - 4096) * 256
XT, QB, O2, HB, F1, GU = 0x1000, 0x10000, 0x40000, 0xC0000, 0xE0000, 0x100000
PX, PK, QC, SC, CQ, CO, CG, CC, CD, VERD, OG, PP = 0, 16, 32, 36, 40, 44, 48, 52, 56, 60, 64, 68
QL, SL, ST, OT, PGU, KL, VL, LDS = 256, 2560, 4608, 4864, 9728, 26624, 59392, 92160
PQ, PO, PD, XN = 1024, 5120, 9216, 16384
sJ, sI, sG, sK, sX, sT, sBUD, sVERD = 28, 29, 30, 31, 32, 33, 40, 41
sTAG, sE1, sE2, sE3, sX1, sX2, sL2E, sGC = 34, 35, 36, 37, 38, 39, 42, 44
sB1, sN8, sSC = 46, 48, 50
sA, sB, sC, sD, sE = 52, 54, 56, 58, 60
t0, t1, t2, t3 = 96, 97, 98, 99
STAMP0 = 64
vL, vN, vKB, vT, vT8, vZ, vONE, vM = 0, 2, 3, 4, 5, 6, 7, 8
vF, vPW, vPR, vH2 = 12, 13, 14, 15
DEF = dict(dev=1, bud=20000, local=1, gsleep=1, prewarm=1,
           xsig={11: 1, 15: 2},
           wgate={0: 1}, wwin={2: 1, 4: 1},
           kwin={2: 1}, ksig={1: 1},
           vgate={0: 1}, vwin={},
           gq=4, gwin={}, dgate=4, dwin={}, psleep=0, dafter="h", bal=1, gearly=0, xbar=0, qsleep=None, osleep=None, oafter=0, hafter=0, hsleep=None, gafter=0, gusleep=None, fsleep=None, qafter=0, gpre=None)

def R(b, n=4): return f"v[{b}:{b+n-1}]"
def S2(b): return f"s[{b}:{b+1}]"
def DPP(ctl, bank=0xf): return f"{ctl} row_mask:0xf bank_mask:{bank:#x}"

class K(A):
    def __init__(a, P):
        super().__init__(); a.P = P
    def stamp(a, i):
        if a.P["dev"]: a(f"s_memrealtime s[{STAMP0+2*i}:{STAMP0+2*i+1}]")
    def lg(a, n): return 0 if a.P["dev"] else n
    def budget(a, top):
        a(f"s_sub_u32 s{sBUD}, s{sBUD}, 1\ns_cbranch_scc0 {top}\ns_mov_b32 s{sBUD}, 0")
    def gate(a, addr, off, thr, sleep=None, tmp=1):
        top, done = a.lab("gt"), a.lab("gd")
        if sleep is None: sleep = a.P["gsleep"]
        a(f"{top}:\nds_read_b32 v{tmp}, v{addr} offset:{off}\ns_waitcnt lgkmcnt(0)\nv_readfirstlane_b32 s{t0}, v{tmp}\ns_cmp_ge_u32 s{t0}, {thr}\ns_cbranch_scc1 {done}")
        if sleep: a(f"s_sleep {sleep}")
        a.budget(top); a(f"{done}:")
    def sig_add(a, addr, off):
        a(f"s_mov_b64 exec, 1\nds_add_u32 v{addr}, v{vONE} offset:{off}\ns_mov_b64 exec, -1")
    def sadd(a, d, base, off):
        a(f"s_add_u32 s{d}, s{base}, {off}\ns_addc_u32 s{d+1}, s{base+1}, 0")
    def bf(a, v):
        a(f"v_cvt_pk_bf16_f32 v{v}, v{v}, v{v}\nv_lshlrev_b32 v{v}, 16, v{v}")
    def masks(a, full):
        a(f"""
        v_and_b32 v1, 1, v{vN}
        v_lshlrev_b32 v1, 4, v1
        v_mov_b32 v{vM+3}, 0xffff
        v_lshlrev_b32 v1, v1, v{vM+3}
        v_lshrrev_b32 v{vH2}, 1, v{vN}
        """)
        if full: a(f"v_and_b32 v{vM+3}, 2, v{vKB}\nv_lshlrev_b32 v{vM+3}, 1, v{vM+3}\nv_xor_b32 v{vH2}, v{vH2}, v{vM+3}")
        for d in range(4): a(f"v_cmp_eq_u32 vcc, {d}, v{vH2}\nv_cndmask_b32 v{vM+d}, 0, v1, vcc")
    def consts(a):
        a(f"""
        s_mov_b32 s{sTAG}, 0x07060500
        s_mov_b32 s{sE1}, 0x07060501
        s_mov_b32 s{sE2}, 0x07060502
        s_mov_b32 s{sE3}, 0x07060503
        s_mov_b32 s{sX1}, 0x04000c0c
        s_mov_b32 s{sX2}, 0x0706000c
        s_mov_b32 s{sL2E}, 0x3fb8aa3b
        s_mov_b32 s{sL2E+1}, 0x3fb8aa3b
        s_mov_b32 s{sVERD}, 0
        v_mov_b32 v{vZ}, 0
        v_mov_b32 v{vONE}, 1
        v_mov_b32 v{vF}, s{sK}
        v_lshlrev_b32 v{vF}, 2, v{vF}
        v_lshlrev_b32 v{vPR}, 4, v{vL}
        """)
    def pwaddr(a, sidx, stride):
        a(f"""
        v_and_b32 v1, 1, v{vKB}
        v_lshlrev_b32 v1, 4, v1
        v_lshl_or_b32 v{vPW}, v{vN}, 5, v1
        v_lshrrev_b32 v1, 1, v{vKB}
        v_lshl_or_b32 v{vPW}, v1, 9, v{vPW}
        s_mul_i32 s{t0}, s{sidx}, {stride}
        v_add_u32 v{vPW}, s{t0}, v{vPW}
        """)
    def wideaddr(a, dst, rowstride):
        a(f"""
        v_and_b32 v1, 1, v{vKB}
        v_mul_u32_u24 v{dst}, {2*rowstride}, v1
        v_lshrrev_b32 v1, 1, v{vKB}
        v_lshl_add_u32 v{dst}, v1, 8, v{dst}
        v_lshl_add_u32 v{dst}, v{vN}, 4, v{dst}
        """)
    def slotaddr(a, dst, sCQ, sPROD):
        a(f"""
        v_lshrrev_b32 v1, 3, v{vL}
        s_lshl_b32 s{t0}, s{sCQ}, 3
        v_add_u32 v1, s{t0}, v1
        v_add_u32 v{dst}, s{sPROD}, v1
        v_and_b32 v{dst}, 31, v{dst}
        v_lshlrev_b32 v{dst}, 7, v{dst}
        v_lshl_add_u32 v{dst}, v1, 12, v{dst}
        v_and_b32 v1, 7, v{vL}
        v_lshl_add_u32 v{dst}, v1, 4, v{dst}
        """)
    def epoch_barrier(a):
        a(f"""
        s_waitcnt lgkmcnt(0)
        s_add_u32 s{sT}, s{sT}, 0x9e3779b9
        s_barrier
        v_mov_b32 v{vT}, s{sT}
        v_and_b32 v{vT8}, 0xff, v{vT}
        """)
    def zero_flags(a, tmp):
        l = a.lab("zf")
        a(f"s_cmp_eq_u32 s3, 7\ns_cbranch_scc0 {l}\nv_mov_b32 v1, 0\nv_lshlrev_b32 v{tmp}, 2, v{vL}\nds_write_b32 v{tmp}, v1\n{l}:")
    def xt_publish(a, u0, u1):
        l = a.lab("xp")
        a(f"""
        s_cmp_eq_u32 s3, 7
        s_cbranch_scc0 {l}
        s_getreg_b32 s{t0}, hwreg(HW_REG_XCC_ID, 0, 4)
        s_add_u32 s{t0}, s{t0}, s{sT}
        s_lshl_b32 s{t1}, s{sJ}, 7
        s_lshr_b32 s{t2}, s2, 3
        s_lshl_b32 s{t2}, s{t2}, 2
        s_add_u32 s{t1}, s{t1}, s{t2}
        s_add_u32 s{t1}, s{t1}, {XT}
        v_mov_b32 v{u0}, s{t1}
        v_mov_b32 v{u1}, s{t0}
        s_mov_b64 exec, 1
        global_store_dword v{u0}, v{u1}, s[26:27] sc1
        s_mov_b64 exec, -1
        {l}:
        """)
    def abuild(a, dst, lane, src=vH2):
        for d in range(4): a(f"v_and_b32_dpp v{dst+d}, v{src}, v{vM+d} {DPP(f'row_newbcast:{lane}')}")
    def gemv(a, W, acc, A0, steps, fill=None, pre=None):
        fill = list(fill or [])
        a.abuild(A0, steps[0][2], steps[0][1])
        for s, (t, src, lane) in enumerate(steps):
            if s + 1 < len(steps): a.abuild(A0 + 4 * ((s + 1) & 1), steps[s+1][2], steps[s+1][1])
            if pre: pre(s)
            for m, w in enumerate(W):
                a(f"v_mfma_f32_16x16x32_bf16 {R(acc+4*m)}, {R(A0+4*(s&1))}, {R(w+4*t)}, {R(acc+4*m) if s else 0}")
                if fill: a(fill.pop(0))
        for f in fill: a(f)
    def lstore(a, ins):
        if not a.P["local"]:
            a(ins + " sc1"); return
        l1, l2 = a.lab("ls"), a.lab("le")
        a(f"s_cmp_eq_u32 s{sVERD}, 1\ns_cbranch_scc1 {l1}\n{ins} sc1\ns_branch {l2}\n{l1}:\n{ins}\n{l2}:")
    def sumn(a, r0, n):
        live = list(range(n))
        while len(live) > 1:
            nxt = []
            for h in (0, 2):
                for x in range(0, len(live) - 1, 2):
                    p, q = r0 + 4 * live[x] + h, r0 + 4 * live[x+1] + h
                    a(f"v_pk_add_f32 {R(p,2)}, {R(p,2)}, {R(q,2)}")
            live = live[0::2]
    def publish(a, acc, base, cnt, r0, vaddr, sbase, n, half):
        skip = a.lab("pub")
        a(f"""
        ds_write_b128 v{vPW}, {R(acc)} offset:{base}
        s_mov_b64 exec, 1
        ds_add_rtn_u32 v1, v{vZ}, v{vONE} offset:{cnt}
        s_mov_b64 exec, -1
        """)
        for w in range(n): a(f"ds_read_b128 {R(r0+4*w)}, v{vPR} offset:{base+1024*w}")
        a(f"s_waitcnt lgkmcnt({a.lg(n)})\nv_readfirstlane_b32 s{t0}, v1\ns_cmp_eq_u32 s{t0}, {n-1}\ns_cbranch_scc0 {skip}\ns_waitcnt lgkmcnt(0)")
        a.sumn(r0, n)
        a(f"v_perm_b32 v{r0}, v{r0}, v{vT}, s{sTAG}")
        if half: a("s_mov_b32 exec_hi, 0")
        a(f"global_store_dwordx4 v{vaddr}, {R(r0)}, {S2(sbase)} sc1")
        if half: a("s_mov_b32 exec_hi, -1")
        a(f"{skip}:\ns_waitcnt lgkmcnt(0)")
    def tagcheck(a, d, n, tmp):
        for v in range(n): a(f"v_xor_b32 v{d+4*v}, v{d+4*v}, v{vT8}")
        if n == 4: a(f"v_or3_b32 v{tmp}, v{d}, v{d+4}, v{d+8}\nv_or_b32 v{tmp}, v{tmp}, v{d+12}")
        else: a(f"v_or_b32 v{tmp}, v{d}, v{d+4}")
        a(f"v_cmp_ne_u32_sdwa vcc, v{tmp}, v{vZ} src0_sel:BYTE_0 src1_sel:DWORD")
    def poll(a, loads, d, n, tmp=1, first=None, sleep=None):
        top, done = a.lab("pl"), a.lab("pd")
        ent = None
        if first:
            ent = a.lab("pe")
            a(loads); first(); a(f"s_branch {ent}")
        a(f"{top}:")
        a(loads)
        if ent: a(f"{ent}:")
        a("s_waitcnt vmcnt(0)")
        a.tagcheck(d, n, tmp)
        a(f"s_cbranch_vccz {done}")
        if sleep is None: sleep = a.P["psleep"]
        if sleep: a(f"s_sleep {sleep}")
        a.budget(top); a(f"{done}:")
    def ldn(a, d, vaddr, sbase, step, n=4):
        return "\n".join(f"global_load_dwordx4 {R(d+4*v)}, v{vaddr}, {S2(sbase)} offset:{step*v} sc1" for v in range(n))
    def extract(a, dst, d):
        a(f"v_perm_b32 v{dst}, v{d+3}, v{d+2}, s{sX1}\nv_perm_b32 v{dst}, v{dst}, v{d+1}, s{sX2}")
    def embed(a, d, val):
        a(f"v_perm_b32 v{d}, v{d}, v{vT}, s{sTAG}\nv_perm_b32 v{d+1}, v{d+1}, v{val}, s{sE1}\nv_perm_b32 v{d+2}, v{d+2}, v{val}, s{sE2}\nv_perm_b32 v{d+3}, v{d+3}, v{val}, s{sE3}")
    def rows_all(a, v, t, op):
        a(f"v_mov_b32 v{t}, v{v}\nv_permlane16_swap_b32 v{v}, v{t}\n{op} v{v}, v{v}, v{t}\nv_mov_b32 v{t}, v{v}\nv_permlane32_swap_b32 v{v}, v{t}\n{op} v{v}, v{v}, v{t}")
    def red32(a, d, y, t):
        return [f"v_permlane16_swap_b32 v{d}, v{d+2}", f"v_permlane16_swap_b32 v{d+1}, v{d+3}",
                f"v_pk_add_f32 {R(d,2)}, {R(d,2)}, {R(d+2,2)}",
                f"v_add_f32_dpp v{y}, v{d}, v{d} {DPP('row_ror:8', 0x3)}", f"v_add_f32_dpp v{y}, v{d+1}, v{d+1} {DPP('row_ror:8', 0xc)}",
                f"v_mov_b32 v{t}, v{y}", f"v_permlane32_swap_b32 v{y}, v{t}", f"v_add_f32 v{y}, v{y}, v{t}"]
    def idxaddr(a, dst):
        a(f"""
        v_and_b32 v1, 7, v{vN}
        v_lshlrev_b32 v{dst}, 3, v1
        v_and_b32 v1, 1, v{vKB}
        v_lshl_add_u32 v{dst}, v1, 2, v{dst}
        v_lshrrev_b32 v1, 3, v{vN}
        v_lshl_add_u32 v{dst}, v1, 1, v{dst}
        """)

def interleave(*ls):
    out = []; ls = [list(l) for l in ls]
    while any(ls):
        for l in ls:
            if l: out.append(l.pop(0))
    return out

def role_bq(a):
    P = a.P
    W, D, ACC, A0 = 16, 80, 96, 100
    vW, vXA = 108, 109
    a(f"""
    L_BQ:
    v_lshlrev_b32 v{vW}, 17, v{vKB}
    v_lshl_add_u32 v{vW}, v{vN}, 4, v{vW}
    s_lshr_b32 s{t0}, s{sI}, 2
    s_lshl_b32 s{t0}, s{t0}, 2
    s_add_u32 s{t0}, s{t0}, s{sK}
    s_lshl_b32 s{t0}, s{t0}, 19
    s_and_b32 s{t1}, s{sI}, 3
    s_lshl_b32 s{t2}, s{sJ}, 2
    s_add_u32 s{sX}, s{t1}, s{t2}
    s_lshl_b32 s{t1}, s{sX}, 8
    s_add_u32 s{t0}, s{t0}, s{t1}
    s_waitcnt lgkmcnt(0)
    s_load_dword s{sT}, s[26:27], 0
    """)
    a.sadd(sA, 10, f"s{t0}")
    if P["xbar"]: a("s_barrier")
    for t in range(16):
        a(f"global_load_dwordx4 {R(W+4*t)}, v{vW}, {S2(sA)} nt")
        if t < 15: a(f"v_add_u32 v{vW}, 0x2000, v{vW}")
        if t == 7:
            a.consts(); a.masks(False); a.pwaddr(sK, 1024)
            a(f"""
            s_lshl_b32 s{t0}, s{sX}, 11
            s_lshr_b32 s{t1}, s{sI}, 2
            s_lshl_b32 s{t1}, s{t1}, 9
            s_add_u32 s{t0}, s{t0}, s{t1}
            s_add_u32 s{t0}, s{t0}, {QB}
            s_lshl_b32 s{t1}, s{sK}, 8
            v_lshl_add_u32 v{vXA}, v{vL}, 2, s{t1}
            """)
            a.sadd(sB, 26, f"s{t0}")
    a.stamp(1)
    a.epoch_barrier()
    a(f"ds_read_b32 v{vH2}, v{vXA} offset:{XN}\ns_waitcnt lgkmcnt(0)")
    a.stamp(2)
    def pre(t):
        a(f"s_waitcnt vmcnt({15-t})")
        if t - 1 in P["xsig"]: a.sig_add(vF, PX)
    a.gemv([W], ACC, A0, [(t, vH2, t) for t in range(16)], pre=pre)
    if 15 in P["xsig"]: a.sig_add(vF, PX)
    a.stamp(4)
    a.publish(ACC, PQ, CQ, D, vPR, sB, 4, True)
    a.sig_add(vZ, PP)
    a.stamp(5)
    a.masks(True)
    role_d(a)

def layernorm(a, XF, XU, vXO, u0):
    u1, u2, u3, u4, u5 = range(u0 + 1, u0 + 6)
    for e in range(8): a(f"v_lshlrev_b32 v{XU+2*e}, 16, v{XF+e}\nv_and_b32 v{XU+2*e+1}, 0xffff0000, v{XF+e}")
    def allsum(v, t):
        a(f"v_add_f32 v{v}, v{v}, v{v+1}")
        for c in ("quad_perm:[1,0,3,2]", "quad_perm:[2,3,0,1]", "row_ror:4", "row_ror:8"):
            a(f"v_add_f32_dpp v{v}, v{v}, v{v} {DPP(c)}")
        a.rows_all(v, t, "v_add_f32")
        a(f"v_mul_f32 v{v}, 0x3a800000, v{v}")
    a(f"v_pk_add_f32 {R(u0,2)}, {R(XU,2)}, {R(XU+2,2)}")
    for e in range(2, 8): a(f"v_pk_add_f32 {R(u0,2)}, {R(u0,2)}, {R(XU+2*e,2)}")
    allsum(u0, u4)
    for e in range(8): a(f"v_pk_add_f32 {R(XU+2*e,2)}, {R(XU+2*e,2)}, {R(u0,2)} op_sel_hi:[1,0] neg_lo:[0,1] neg_hi:[0,1]")
    a(f"v_pk_mul_f32 {R(u2,2)}, {R(XU,2)}, {R(XU,2)}")
    for e in range(1, 8): a(f"v_pk_fma_f32 {R(u2,2)}, {R(XU+2*e,2)}, {R(XU+2*e,2)}, {R(u2,2)}")
    allsum(u2, u4)
    a.bf(u0); a.bf(u2)
    a(f"v_add_f32 v{u2}, 0x3727c5ac, v{u2}"); a.bf(u2)
    a(f"v_sqrt_f32 v{u2}, v{u2}"); a.bf(u2)
    a(f"v_rcp_f32 v{u3}, v{u2}\nv_lshlrev_b32 v{vXO}, 16, v{vXO}\nv_sub_f32 v{vXO}, v{vXO}, v{u0}"); a.bf(vXO)
    a(f"v_mul_f32 v{u4}, v{vXO}, v{u3}\nv_fma_f32 v{u5}, -v{u4}, v{u2}, v{vXO}\nv_fma_f32 v{u4}, v{u5}, v{u3}, v{u4}\nv_cvt_pk_bf16_f32 v{vXO}, v{u4}, v{u4}")

def role_d(a):
    P = a.P
    W, GD, ACC, A0 = 16, 48, 80, 84
    vW, vGA, vFA, vINV, AH = 92, 93, 94, 95, 96
    u0, u1, u2, u3, u4 = 98, 99, 100, 101, 102
    a(f"""
    L_D:
    s_lshr_b32 s{t2}, s{sI}, 2
    s_mul_i32 s{t0}, s{t2}, 7
    s_add_u32 s{t0}, s{t0}, s3
    s_lshr_b32 s{t1}, s{t0}, 1
    s_lshl_b32 s{t1}, s{t1}, 12
    s_and_b32 s{t3}, s{t0}, 1
    s_lshl_b32 s{t3}, s{t3}, 6
    s_add_u32 s{t1}, s{t1}, s{t3}
    s_lshl_b32 s{t3}, s{sJ}, 16
    s_add_u32 s{t1}, s{t1}, s{t3}
    s_add_u32 s{t1}, s{t1}, {GU}
    """)
    a.sadd(sC, 26, f"s{t1}")
    a(f"""
    s_mul_i32 s{t1}, s{sJ}, 28
    s_add_u32 s{t0}, s{t0}, s{t1}
    s_lshl_b32 s{t0}, s{t0}, 15
    s_and_b32 s{t3}, s{sI}, 3
    s_lshl_b32 s{t1}, s{t3}, 9
    s_add_u32 s{t0}, s{t0}, s{t1}
    """)
    a.sadd(sA, 20, f"s{t0}")
    a(f"s_lshl_b32 s{t1}, s{sJ}, 2\ns_add_u32 s{t2}, s{t2}, s{t1}")
    a.slotaddr(vFA, t3, t2)
    a.sadd(sB, 26, F1)
    a.wideaddr(vW, 2048); a.pwaddr(3, 1024)
    a(f"""
    v_lshrrev_b32 v1, 2, v{vN}
    v_lshlrev_b32 v{vGA}, 10, v1
    v_lshl_add_u32 v{vGA}, v{vKB}, 7, v{vGA}
    v_and_b32 v1, 3, v{vN}
    v_lshl_add_u32 v{vGA}, v1, 4, v{vGA}
    v_mov_b32 v{vINV}, 0x3a800000
    s_mov_b32 s{sGC}, 0x3d372713
    """)
    if P["prewarm"]:
        l = a.lab("pw")
        a(f"s_cmp_ge_u32 s3, 4\ns_cbranch_scc1 {l}\n" + a.ldn(GD, vGA, sC, 512, 2) + f"\ns_waitcnt vmcnt(0)\n{l}:")
    a.gate(vZ, OG, P["dgate"])
    a.stamp(10)
    for m in range(8):
        if m in P["dwin"]: a(f"s_waitcnt vmcnt({P['dwin'][m]})")
        t = (m >> 1) + 4 * (m & 1)
        a(f"global_load_dwordx4 {R(W+4*t)}, v{vW}, {S2(sA)} offset:{2048*(m&1)} nt")
        if m & 1 and m < 7: a(f"v_add_u32 v{vW}, 0x2000, v{vW}")
    a.stamp(11)
    if P["gafter"]: a("s_waitcnt vmcnt(0)")
    a.poll(a.ldn(GD, vGA, sC, 512, 2), GD, 2, sleep=P["gusleep"])
    a("s_setprio 3")
    a.stamp(12)
    a.extract(u0, GD); a.extract(u1, GD + 4)
    a(f"""
    v_pk_add_f32 {R(GD,2)}, {R(GD,2)}, {R(GD+4,2)}
    v_pk_add_f32 {R(GD+2,2)}, {R(GD+2,2)}, {R(GD+6,2)}
    v_add_f32 v{u0}, v{u0}, v{u1}
    v_permlane16_swap_b32 v{GD}, v{GD+2}
    v_mov_b32 v{u1}, v{u0}
    v_permlane16_swap_b32 v{GD+1}, v{GD+3}
    v_permlane16_swap_b32 v{u0}, v{u1}
    v_pk_add_f32 {R(GD,2)}, {R(GD,2)}, {R(GD+2,2)}
    v_add_f32 v{u0}, v{u0}, v{u1}
    v_mov_b32 v{u1}, v{u0}
    v_permlane32_swap_b32 v{GD}, v{GD+1}
    v_permlane32_swap_b32 v{u0}, v{u1}
    v_add_f32 v{GD}, v{GD}, v{GD+1}
    v_add_f32 v{u0}, v{u0}, v{u1}
    v_mul_f32_dpp v{u1}, -v{u0}, v{vINV} {DPP('row_newbcast:0')}
    v_mul_f32_dpp v{u2}, v{u0}, v{vINV} {DPP('row_newbcast:1')}
    v_fma_f32 v{u2}, -v{u1}, v{u1}, v{u2}
    v_fmac_f32_dpp v{GD}, v{GD}, v{u1} {DPP('row_shl:4', 0x5)}
    v_max_f32 v{u2}, 0, v{u2}
    v_add_f32 v{u2}, 0x3727c5ac, v{u2}
    v_rsq_f32 v{u2}, v{u2}
    v_mul_f32 v{GD}, v{GD}, v{u2}
    v_cvt_pk_bf16_f32 v{GD}, v{GD}, v{GD}
    v_lshlrev_b32 v{GD}, 16, v{GD}
    v_mul_f32 v{u0}, v{GD}, v{GD}
    v_mul_f32 v{u1}, 0xc0135761, v{GD}
    v_fma_f32 v{u0}, v{u0}, s{sGC}, 1.0
    v_mul_f32 v{u0}, v{u0}, v{u1}
    v_exp_f32 v{u0}, v{u0}
    v_add_f32 v{u0}, 1.0, v{u0}
    v_rcp_f32 v{u0}, v{u0}
    v_mul_f32 v{u0}, v{u0}, v{GD}
    v_cvt_pk_bf16_f32 v{u0}, v{u0}, v{u0}
    v_lshlrev_b32 v{u0}, 16, v{u0}
    v_mul_f32_dpp v{u0}, v{GD}, v{u0} {DPP('row_ror:8')}
    v_cvt_pk_bf16_f32 v{AH}, v{u0}, v{u0}
    v_cvt_pk_bf16_f32 v{AH+1}, v{u0}, v{u0}
    v_permlane32_swap_b32 v{AH}, v{AH+1}
    """)
    a.gemv([W], ACC, A0, [(t, AH + (t >> 2), t & 3) for t in range(8)])
    a.stamp(13)
    a.publish(ACC, PD, CD, GD, vFA, sB, 7, False)
    a.stamp(14)
    a("s_branch L_out")

def role_bw(a):
    P = a.P
    W, D, ACC, A0, WK = 16, 80, 96, 100, 108
    vW, vHA = 124, 125
    XF, XU, vXO, vXA, u0 = 16, 24, 40, 41, 42
    a(f"""
    L_BW:
    s_setprio 3
    v_lshlrev_b32 v{u0}, 5, v{vL}
    s_lshr_b32 s{t0}, s{sI}, 2
    s_lshl_b32 s{t0}, s{t0}, 2
    s_add_u32 s{t0}, s{t0}, s{sK}
    s_lshl_b32 s{t0}, s{t0}, 7
    v_lshl_add_u32 v{u0+1}, v{vL}, 1, s{t0}
    s_waitcnt lgkmcnt(0)
    s_load_dword s{sT}, s[26:27], 0
    global_load_dwordx4 {R(XF)}, v{u0}, s[4:5]
    global_load_dwordx4 {R(XF+4)}, v{u0}, s[4:5] offset:16
    global_load_ushort v{vXO}, v{u0+1}, s[4:5]
    {"s_barrier" if P["xbar"] else ""}
    s_lshl_b32 s{t1}, s{sK}, 8
    v_lshl_add_u32 v{vXA}, v{vL}, 2, s{t1}
    s_and_b32 s{t1}, s{sI}, 3
    s_lshl_b32 s{t2}, s{sJ}, 2
    s_add_u32 s{sX}, s{t1}, s{t2}
    s_lshl_b32 s{t3}, s{sX}, 2
    s_add_u32 s{t3}, s{t3}, s{sK}
    s_lshl_b32 s{t0}, s{t3}, 16
    s_lshr_b32 s{t2}, s{sI}, 2
    s_lshl_b32 s{t1}, s{t2}, 9
    s_add_u32 s{t1}, s{t0}, s{t1}
    """)
    a.zero_flags(vW)
    a.sadd(sA, 12, f"s{t1}")
    a(f"s_lshl_b32 s{t3}, s{t3}, 12\ns_add_u32 s{t3}, s{t3}, {O2}")
    a.sadd(sC, 26, f"s{t3}")
    a.sadd(sB, 26, HB)
    a.consts(); a.masks(True); a.pwaddr(sK, 1024); a.wideaddr(vW, 2048); a.slotaddr(vHA, t2, sX)
    a("s_waitcnt vmcnt(0)")
    a.stamp(9)
    layernorm(a, XF, XU, vXO, u0)
    a(f"ds_write_b32 v{vXA}, v{vXO} offset:{XN}\ns_setprio 0")
    a.epoch_barrier()
    a.xt_publish(WK, WK + 1)
    a.stamp(1)
    for m in range(16):
        if m in P["wgate"]:
            if P["wgate"][m] == "p": a.gate(vZ, PP, 4)
            else: a.gate(vF, PX, P["wgate"][m])
        if m in P["wwin"]: a(f"s_waitcnt vmcnt({P['wwin'][m]})")
        if m == 0: a.stamp(2)
        t = (m >> 1) + 8 * (m & 1)
        a(f"global_load_dwordx4 {R(W+4*t)}, v{vW}, {S2(sA)} offset:{2048*(m&1)} nt")
        if m & 1 and m < 15: a(f"v_add_u32 v{vW}, 0x2000, v{vW}")
    a.stamp(3)
    def first():
        a("s_waitcnt vmcnt(4)"); a.stamp(4)
    if P["oafter"]: a("s_waitcnt vmcnt(0)"); a.stamp(4)
    a.poll(a.ldn(D, vPR, sC, 1024), D, 4, first=first if P["dev"] and not P["oafter"] else None, sleep=P["osleep"])
    a("s_setprio 3")
    if P["dafter"] == "o": a.sig_add(vZ, OG)
    a.stamp(5)
    val, wt, mx, tt, acc, al, y = WK, WK + 4, WK + 8, WK + 9, WK + 12, WK + 10, WK + 11
    for v in range(4): a.extract(val + v, D + 4 * v)
    a(f"v_max3_f32 v{mx}, v{val}, v{val+1}, v{val+2}\nv_max_f32 v{mx}, v{mx}, v{val+3}")
    a(f"v_max_f32_dpp v{mx}, v{mx}, v{mx} {DPP('row_ror:8')}")
    a.rows_all(mx, tt, "v_max_f32")
    a(f"v_mov_b32_dpp v{mx}, v{mx} {DPP('quad_perm:[0,0,2,2]')}")
    for v in range(4): a(f"v_sub_f32_dpp v{wt+v}, v{val+v}, v{mx} {DPP('quad_perm:[0,0,2,2]')}")
    a(f"v_pk_mul_f32 {R(wt,2)}, {R(wt,2)}, {S2(sL2E)}\nv_pk_mul_f32 {R(wt+2,2)}, {R(wt+2,2)}, {S2(sL2E)}")
    for v in range(4): a(f"v_exp_f32 v{wt+v}, v{wt+v}")
    for v in range(4):
        sel = v & 1; wp = R(wt + (v & 2), 2)
        a(f"v_mul_f32 v{al}, v{val}, v{wt}" if v == 0 else f"v_fmac_f32 v{al}, v{val+v}, v{wt+v}")
        for h in (0, 2):
            if v == 0: a(f"v_pk_mul_f32 {R(acc+h,2)}, {R(D+h,2)}, {wp} op_sel:[0,0] op_sel_hi:[1,0]")
            else: a(f"v_pk_fma_f32 {R(acc+h,2)}, {R(D+4*v+h,2)}, {wp}, {R(acc+h,2)} op_sel:[0,{sel},0] op_sel_hi:[1,{sel},1]")
    la = [f"v_add_f32_dpp v{al}, v{al}, v{al} {DPP('row_ror:8')}", f"v_mov_b32 v{tt}, v{al}", f"v_permlane16_swap_b32 v{al}, v{tt}",
          f"v_add_f32 v{al}, v{al}, v{tt}", f"v_mov_b32 v{tt}, v{al}", f"v_permlane32_swap_b32 v{al}, v{tt}", f"v_add_f32 v{al}, v{al}, v{tt}",
          f"v_rcp_f32 v{al}, v{al}"]
    for x in interleave(la, a.red32(acc, y, mx)): a(x)
    a(f"v_mul_f32_dpp v{y}, v{al}, v{y} {DPP('quad_perm:[1,1,3,3]')}\nv_cvt_pk_bf16_f32 v{vH2}, v{y}, v{y}")
    a.stamp(6)
    a.gemv([W], ACC, A0, [(t, vH2, t) for t in range(16)])
    a.stamp(7)
    a.publish(ACC, PO, CO, D, vHA, sB, 4, False)
    if P["dafter"] == "h": a.sig_add(vZ, OG)
    a("s_setprio 0")
    a.stamp(8)
    a("s_cmp_eq_u32 s3, 7\ns_cbranch_scc1 L_out\ns_branch L_D")

def role_ax(a):
    P = a.P
    KF, VF, QD, QF, ACC, SR, F, D, ONES = 16, 48, 80, 80, 96, 104, 112, 128, 144
    vK0, vA0 = 148, 152
    vQW, vQR, vSW, vVA, vOW, vOR, vO2 = 156, 157, 158, 159, 161, 162, 163
    u0, u1, u2, u3, u4 = 164, 165, 166, 167, 168
    a(f"""
    L_AX:
    v_xor_b32 v1, v{vKB}, v{vN}
    v_lshlrev_b32 v1, 4, v1
    v_lshl_add_u32 v{vK0}, v{vKB}, 8, v1
    v_xor_b32 v{vK0+1}, 64, v{vK0}
    v_xor_b32 v{vK0+2}, 0x80, v{vK0}
    v_xor_b32 v{vK0+3}, 0xc0, v{vK0}
    s_and_b32 s{sX}, s{sJ}, 1
    s_lshl_b32 s{sX}, s{sX}, 4
    s_add_u32 s{sX}, s{sX}, s{sI}
    s_lshl_b32 s{t0}, s{sG}, 24
    s_lshl_b32 s{t1}, s{sX}, 15
    s_add_u32 s{t0}, s{t0}, s{t1}
    s_lshl_b32 s{t3}, s{sK}, 13
    s_add_u32 s{t0}, s{t0}, s{t3}
    s_add_u32 s{t0}, s{t0}, {KOFF}
    s_add_u32 m0, s{t3}, {KL}
    s_waitcnt lgkmcnt(0)
    s_load_dword s{sT}, s[26:27], 0
    """)
    a.sadd(sA, 6, f"s{t0}"); a.sadd(sB, sA, 4096)
    def kload(m):
        if m == 4: a(f"s_add_u32 m0, s{t3}, {KL+4096}")
        a(f"global_load_lds_dwordx4 v{vK0+(m&3)}, {S2(sA if m < 4 else sB)} offset:{1024*(m&3)} nt")
    n0 = min(list(P["kwin"]) + [8])
    for m in range(n0): kload(m)
    a.stamp(1)
    a.consts()
    a(f"s_lshl_b32 s{t0}, s{sG}, 14\ns_lshl_b32 s{t1}, s{sK}, 12\ns_add_u32 s{t0}, s{t0}, s{t1}\ns_add_u32 s{t0}, s{t0}, {QB}")
    a.sadd(sC, 26, f"s{t0}")
    a(f"s_lshl_b32 s{t0}, s{sG}, 17\ns_add_u32 s{t0}, s{t0}, {O2}")
    a.sadd(sD, 26, f"s{t0}")
    a(f"""
    v_xor_b32 v1, v{vKB}, v{vN}
    v_lshlrev_b32 v1, 4, v1
    v_lshl_add_u32 v{vA0}, v{vN}, 8, v1
    v_add_u32 v{vA0}, s{t3}, v{vA0}
    v_xor_b32 v{vA0+1}, 64, v{vA0}
    v_xor_b32 v{vA0+2}, 0x80, v{vA0}
    v_xor_b32 v{vA0+3}, 0xc0, v{vA0}
    v_lshrrev_b32 v1, 5, v{vL}
    v_mul_u32_u24 v{vQW}, 288, v1
    v_and_b32 v1, 31, v{vL}
    v_lshl_add_u32 v{vQW}, v1, 3, v{vQW}
    s_mul_i32 s{t0}, s{sK}, 576
    v_add_u32 v{vQW}, s{t0}, v{vQW}
    v_and_b32 v{u0}, 7, v{vN}
    v_mul_u32_u24 v{vQR}, 288, v{u0}
    v_lshl_add_u32 v{vQR}, v{vKB}, 4, v{vQR}
    v_lshrrev_b32 v1, 1, v{vKB}
    v_lshlrev_b32 v{vSW}, 8, v1
    v_lshrrev_b32 v1, 3, v{vN}
    v_lshl_add_u32 v{vSW}, v1, 9, v{vSW}
    v_lshl_add_u32 v{vSW}, v{u0}, 4, v{vSW}
    v_and_b32 v1, 1, v{vKB}
    v_lshl_add_u32 v{vSW}, v1, 3, v{vSW}
    s_and_b32 s{t0}, s{sK}, 1
    s_lshl_b32 s{t0}, s{t0}, 7
    s_lshr_b32 s{t1}, s{sK}, 1
    s_lshl_b32 s{t1}, s{t1}, 10
    s_add_u32 s{t0}, s{t0}, s{t1}
    v_add_u32 v{vSW}, s{t0}, v{vSW}
    v_lshrrev_b32 v{u1}, 2, v{vN}
    v_lshl_add_u32 v{u2}, v1, 2, v{u1}
    v_lshlrev_b32 v{u2}, 1, v{u2}
    v_and_b32 v{u3}, 3, v{vN}
    v_lshrrev_b32 v{u4}, 1, v{u3}
    s_lshl_b32 s{t0}, s{sK}, 2
    v_add_u32 v{u4}, s{t0}, v{u4}
    v_xor_b32 v{u4}, v{u4}, v{u2}
    v_lshlrev_b32 v{u4}, 4, v{u4}
    v_and_b32 v{u3}, 1, v{u3}
    v_lshl_add_u32 v{u4}, v{u3}, 3, v{u4}
    v_lshl_add_u32 v{u1}, v{vKB}, 3, v{u1}
    v_lshl_add_u32 v{vVA}, v{u1}, 8, v{u4}
    v_add_u32 v{vVA}, {VL}, v{vVA}
    v_xor_b32 v{vVA+1}, 32, v{vVA}
    v_mul_u32_u24 v{vOW}, 144, v{u0}
    v_lshrrev_b32 v1, 3, v{vN}
    v_lshl_add_u32 v1, v1, 2, v{vKB}
    v_lshl_add_u32 v{vOW}, v1, 4, v{vOW}
    s_mul_i32 s{t0}, s{sK}, 1152
    v_add_u32 v{vOW}, s{t0}, v{vOW}
    v_lshrrev_b32 v{u1}, 3, v{vL}
    v_and_b32 v{u2}, 7, v{vL}
    v_mul_u32_u24 v{vOR}, 144, v{u1}
    v_lshl_add_u32 v{vOR}, v{u2}, 4, v{vOR}
    v_add_u32 v{vOR}, s{t0}, v{vOR}
    v_lshlrev_b32 v{u1}, 2, v{u1}
    v_add_u32 v{u1}, s{sK}, v{u1}
    v_add_u32 v1, s{sX}, v{u1}
    v_and_b32 v1, 31, v1
    v_lshlrev_b32 v1, 7, v1
    v_lshl_add_u32 v{vO2}, v{u1}, 12, v1
    v_lshl_add_u32 v{vO2}, v{u2}, 4, v{vO2}
    s_mov_b32 s{sN8}, 0xff00ff00
    s_mov_b32 s{sN8+1}, 0xff00ff00
    s_mov_b32 s{sSC}, 0x3db504f3
    s_mov_b32 s{sSC+1}, 0x3db504f3
    s_mov_b32 s{sB1}, 0xffff0000
    s_mov_b32 s{sB1+1}, 0xffff0000
    """)
    for d in range(4): a(f"v_mov_b32 v{ONES+d}, 0x3f803f80")
    a.epoch_barrier()
    landed = -1
    def land(n):
        nonlocal landed
        for x in range(landed + 1, n + 1):
            if x in P["ksig"]: a.sig_add(vF, PK)
        landed = max(landed, n)
    for m in range(n0, 8):
        if m in P["kwin"]:
            a(f"s_waitcnt vmcnt({P['kwin'][m]})"); land(m - 1 - P["kwin"][m])
        kload(m)
    a.stamp(2)
    def first(n=4):
        for x in sorted(P["ksig"]):
            if landed < x < 7: a(f"s_waitcnt vmcnt({n+7-x})"); land(x)
        a(f"s_waitcnt vmcnt({n})"); land(7)
        a.stamp(3)
        for z in range(2):
            for s in range(4): a(f"ds_read_b128 {R(KF+16*z+4*s)}, v{vA0+s} offset:{KL+4096*z}")
    if P["qafter"]: first(0); a.gate(vZ, SC, 4)
    a.poll(a.ldn(QD, vPR, sC, 1024), QD, 4, first=None if P["qafter"] else first, sleep=P["qsleep"])
    a("s_setprio 3")
    a.stamp(4)
    for h in (0, 8):
        for p in (0, 2): a(f"v_pk_add_f32 {R(QD+h+p,2)}, {R(QD+h+p,2)}, {R(QD+h+4+p,2)}")
    for d in range(4): a(f"v_permlane32_swap_b32 v{QD+d}, v{QD+8+d}")
    a(f"""
    v_pk_add_f32 {R(QD,2)}, {R(QD,2)}, {R(QD+8,2)}
    v_pk_add_f32 {R(QD+2,2)}, {R(QD+2,2)}, {R(QD+10,2)}
    v_cvt_pk_bf16_f32 v{u0}, v{QD}, v{QD+1}
    v_cvt_pk_bf16_f32 v{u1}, v{QD+2}, v{QD+3}
    ds_write_b64 v{vQW}, {R(u0,2)} offset:{QL}
    """)
    a.sig_add(vZ, QC)
    top, done = a.lab("qs"), a.lab("qsd")
    a(f"{top}:\nds_read_b32 v1, v{vZ} offset:{QC}")
    for s in range(4): a(f"ds_read_b128 {R(QF+4*s)}, v{vQR} offset:{QL+64*s}")
    a(f"s_waitcnt lgkmcnt(0)\nv_readfirstlane_b32 s{t0}, v1\ns_cmp_eq_u32 s{t0}, 4\ns_cbranch_scc1 {done}")
    a.budget(top); a(f"{done}:")
    a.stamp(5)
    for s in range(4):
        for z in range(2): a(f"v_mfma_f32_16x16x32_bf16 {R(ACC+4*z)}, {R(KF+16*z+4*s)}, {R(QF+4*s)}, {R(ACC+4*z) if s else 0}")
    for r in range(4): a(f"v_cndmask_b32 v{ACC+r}, v{ACC+r}, v{ACC+4+r}, {S2(sN8)}")
    a(f"""
    v_cvt_pk_bf16_f32 v{u0}, v{ACC}, v{ACC+1}
    v_cvt_pk_bf16_f32 v{u1}, v{ACC+2}, v{ACC+3}
    v_lshlrev_b32 v{ACC}, 16, v{u0}
    v_and_b32 v{ACC+1}, 0xffff0000, v{u0}
    v_lshlrev_b32 v{ACC+2}, 16, v{u1}
    v_and_b32 v{ACC+3}, 0xffff0000, v{u1}
    v_pk_mul_f32 {R(ACC,2)}, {R(ACC,2)}, {S2(sSC)}
    v_pk_mul_f32 {R(ACC+2,2)}, {R(ACC+2,2)}, {S2(sSC)}
    v_cvt_pk_bf16_f32 v{u0}, v{ACC}, v{ACC+1}
    v_cvt_pk_bf16_f32 v{u1}, v{ACC+2}, v{ACC+3}
    ds_write_b64 v{vSW}, {R(u0,2)} offset:{SL}
    """)
    a.sig_add(vZ, SC)
    top, done = a.lab("ss"), a.lab("ssd")
    a(f"{top}:\nds_read_b32 v1, v{vZ} offset:{SC}\nds_read_b128 {R(SR)}, v{vPR} offset:{SL}\nds_read_b128 {R(SR+4)}, v{vPR} offset:{SL+1024}")
    a(f"s_waitcnt lgkmcnt(0)\nv_readfirstlane_b32 s{t0}, v1\ns_cmp_eq_u32 s{t0}, 8\ns_cbranch_scc1 {done}")
    a.budget(top); a(f"{done}:")
    for H in range(4):
        for b in range(2):
            for z in range(2):
                a(f"ds_read_b64_tr_b16 {R(VF+16*b+4*H+2*z,2)}, v{vVA+b} offset:{8192*H+1024*z}")
    a.stamp(6)
    for e in range(8): a(f"v_lshlrev_b32 v{F+2*e}, 16, v{SR+e}\nv_and_b32 v{F+2*e+1}, 0xffff0000, v{SR+e}")
    a(f"""
    v_max3_f32 v{u0}, v{F}, v{F+1}, v{F+2}
    v_max3_f32 v{u1}, v{F+3}, v{F+4}, v{F+5}
    v_max3_f32 v{u2}, v{F+6}, v{F+7}, v{F+8}
    v_max3_f32 v{u3}, v{F+9}, v{F+10}, v{F+11}
    v_max3_f32 v{u0}, v{u0}, v{F+12}, v{F+13}
    v_max3_f32 v{u1}, v{u1}, v{F+14}, v{F+15}
    v_max3_f32 v{u0}, v{u0}, v{u2}, v{u3}
    v_max_f32 v{u0}, v{u0}, v{u1}
    v_max_f32_dpp v{u0}, v{u0}, v{u0} {DPP('row_ror:8')}
    """)
    a.rows_all(u0, u1, "v_max_f32")
    for e in range(8): a(f"v_pk_add_f32 {R(F+2*e,2)}, {R(F+2*e,2)}, {R(u0,2)} op_sel_hi:[1,0] neg_lo:[0,1] neg_hi:[0,1]")
    for e in range(8): a(f"v_pk_mul_f32 {R(F+2*e,2)}, {R(F+2*e,2)}, {S2(sL2E)}")
    for p in range(2):
        for e in range(8): a(f"v_exp_f32 v{F+8*p+e}, v{F+8*p+e}")
        for e in range(4): a(f"v_cvt_pk_bf16_f32 v{SR+4*p+e}, v{F+8*p+2*e}, v{F+8*p+2*e+1}")
        if p == 0: a("s_waitcnt lgkmcnt(0)")
        a(f"v_mfma_f32_16x16x32_bf16 {R(ACC)}, {R(ONES)}, {R(SR+4*p)}, {R(ACC) if p else 0}")
        for b in range(2):
            for hi in range(2):
                dd = D + 8 * b + 4 * hi
                a(f"v_mfma_f32_16x16x32_bf16 {R(dd)}, {R(VF+16*b+4*(2*p+hi))}, {R(SR+4*p)}, {R(dd) if p else 0}")
    a(f"v_add_f32_dpp v{u2}, v{ACC}, v{ACC} {DPP('row_ror:8')}\nv_cndmask_b32 v{u2}, v{u0}, v{u2}, {S2(sB1)}")
    for r in range(4): a(f"v_add_f32_dpp v{F+r}, v{D+4+r}, v{D+r} {DPP('row_ror:8', 0x3)}")
    for r in range(4): a(f"v_add_f32_dpp v{F+r}, v{D+8+r}, v{D+12+r} {DPP('row_ror:8', 0xc)}")
    a.embed(F, u2)
    a(f"ds_write_b128 v{vOW}, {R(F)} offset:{OT}\nds_read_b128 {R(F+4)}, v{vOR} offset:{OT}\ns_waitcnt lgkmcnt(0)")
    a(f"global_store_dwordx4 v{vO2}, {R(F+4)}, {S2(sD)} sc1")
    a.sig_add(vZ, OG)
    a("s_setprio 0")
    a.stamp(7)
    a(f"s_cmp_ge_u32 s{sK}, 2\ns_cbranch_scc1 L_out")
    if P["local"]:
        top, done = a.lab("xt"), a.lab("xtd")
        a(f"""
        s_getreg_b32 s{t0}, hwreg(HW_REG_XCC_ID, 0, 4)
        s_add_u32 s{t0}, s{t0}, s{sT}
        v_mov_b32 v{u1}, s{t0}
        s_lshl_b32 s{t1}, s{sJ}, 7
        s_add_u32 s{t1}, s{t1}, {XT}
        v_and_b32 v{u0}, 31, v{vL}
        v_lshl_add_u32 v{u0}, v{u0}, 2, s{t1}
        {top}:
        global_load_dword v{u2}, v{u0}, s[26:27] sc1
        s_waitcnt vmcnt(0)
        v_sub_u32 v{u3}, v{u2}, v{vT}
        v_cmp_le_u32 vcc, 16, v{u3}
        s_cbranch_vccz {done}
        s_sleep 2
        """)
        a.budget(top)
        a(f"""
        {done}:
        v_cmp_ne_u32 vcc, v{u2}, v{u1}
        s_cmp_eq_u64 vcc, 0
        s_cselect_b32 s{sVERD}, 1, 2
        v_mov_b32 v{u2}, s{sVERD}
        ds_write_b32 v{vZ}, v{u2} offset:{VERD}
        """)
    a.stamp(8)
    guaddr(a, vO2, sA, sE, f"s{sK}" if P["bal"] else 0)
    a(f"s_lshl_b32 s{t0}, s{sK}, 11\ns_add_u32 s{t0}, s{t0}, 1024\nv_add_u32 v{vO2}, s{t0}, v{vO2}\nv_add_u32 v{u0}, s{t0}, v{vPR}")
    a.gate(vZ, CC, 4)
    for w in range(4): a(f"ds_read_b128 {R(KF+4*w)}, v{u0} offset:{PGU+4096*w}")
    a("s_waitcnt lgkmcnt(0)")
    a.sumn(KF, 4)
    a(f"v_perm_b32 v{KF}, v{KF}, v{vT}, s{sTAG}\ns_mov_b64 exec, {S2(sE)}")
    a.lstore(f"global_store_dwordx4 v{vO2}, {R(KF)}, {S2(sA)}")
    a("s_mov_b64 exec, -1")
    a.stamp(9)
    a("s_branch L_out")

def guaddr(a, dst, sbase, sE, flip):
    a(f"""
    s_xor_b32 s{t0}, s{sI}, {flip}
    s_and_b32 s{t0}, s{t0}, 1
    s_lshl_b32 s{t1}, s{t0}, 15
    s_lshr_b32 s{t2}, s{sI}, 1
    s_lshl_b32 s{t2}, s{t2}, 7
    s_add_u32 s{t1}, s{t1}, s{t2}
    s_lshl_b32 s{t2}, s{sJ}, 16
    s_add_u32 s{t1}, s{t1}, s{t2}
    s_add_u32 s{t1}, s{t1}, {GU}
    s_cmp_eq_u32 s{t0}, 0
    s_mov_b32 s{sE}, -1
    s_cselect_b32 s{sE+1}, -1, 0xffff
    """)
    if dst: a(f"v_lshrrev_b32 v1, 3, v{vL}\nv_lshlrev_b32 v{dst}, 12, v1\nv_and_b32 v1, 7, v{vL}\nv_lshl_add_u32 v{dst}, v1, 4, v{dst}")
    a.sadd(sbase, 26, f"s{t1}")

def role_ag(a):
    P = a.P
    WG, WU, ACC, CS, A0, UN, D, E = 16, 80, 144, 152, 160, 168, 172, 188
    vW, vX, vSA, vST, vOA, vV0 = 204, 205, 206, 207, 209, 210
    hv, z, zt, u0, u1, vWU = 212, 213, 214, 215, 216, 217
    sG1, sU1 = sC, sD
    a(f"""
    L_AG:
    v_lshlrev_b32 v1, 1, v{vKB}
    v_xor_b32 v1, v1, v{vN}
    v_lshlrev_b32 v1, 4, v1
    v_lshl_add_u32 v{vV0}, v{vKB}, 8, v1
    v_xor_b32 v{vV0+1}, 0x80, v{vV0}
    s_and_b32 s{sX}, s{sJ}, 1
    s_lshl_b32 s{sX}, s{sX}, 4
    s_add_u32 s{sX}, s{sX}, s{sI}
    s_lshl_b32 s{t0}, s{sG}, 24
    s_lshl_b32 s{t1}, s{sX}, 15
    s_add_u32 s{t0}, s{t0}, s{t1}
    s_lshl_b32 s{t3}, s{sK}, 13
    s_add_u32 s{t0}, s{t0}, s{t3}
    s_add_u32 s{t2}, s{t0}, {KOFF}
    s_add_u32 m0, s{t3}, {VL}
    """)
    a.zero_flags(vW)
    a(f"s_waitcnt lgkmcnt(0)\ns_load_dword s{sT}, s[26:27], 0")
    a.sadd(sA, 8, f"s{t2}"); a.sadd(sB, sA, 4096)
    def vload(m):
        if m == 4: a(f"s_add_u32 m0, s{t3}, {VL+4096}")
        a(f"global_load_lds_dwordx4 v{vV0+((m>>1)&1)}, {S2(sA if m < 4 else sB)} offset:{1024*(m&3)} nt")
    n0 = min(list(P["vwin"]) + list(P["vgate"]) + [8])
    for m in range(n0): vload(m)
    a.consts(); a.masks(True); a.pwaddr(sK, 4096)
    a(f"s_lshr_b32 s{sX}, s{sI}, 1\ns_lshl_b32 s{sX}, s{sX}, 2\ns_add_u32 s{sX}, s{sX}, s{sK}")
    a.idxaddr(vOA)
    a(f"s_lshl_b32 s{t0}, s{sX}, 6\nv_add_u32 v{vOA}, s{t0}, v{vOA}")
    for d in range(4): a(f"v_and_b32 v{UN+d}, 0x3f803f80, v{vM+d}")
    a.epoch_barrier()
    a.xt_publish(u0, u1)
    a(f"global_load_ushort v{vX}, v{vOA}, s[4:5]")
    a.stamp(1)
    for m in range(n0, 8):
        if m in P["vgate"]: a.gate(vF, PK, P["vgate"][m])
        if m in P["vwin"]: a(f"s_waitcnt vmcnt({P['vwin'][m]})")
        if m == n0: a.stamp(2)
        vload(m)
    a.wideaddr(vW, 7168)
    a(f"""
    s_mul_i32 s{t0}, s{sX}, {32*7168}
    s_mul_i32 s{t1}, s{sJ}, 896
    s_add_u32 s{t0}, s{t0}, s{t1}
    s_and_b32 s{t1}, s{sI}, 1
    s_xor_b32 s{t3}, s{t1}, {P["bal"]}
    s_mov_b32 s{sN8}, 0
    s_mul_i32 s{sN8+1}, s{t3}, 0xff00ff00
    v_subrev_u32 v1, 0x80, v{vW}
    v_cndmask_b32 v{vWU}, v{vW}, v1, {S2(sN8)}
    s_mul_i32 s{sN8+1}, s{t1}, 0xff00ff00
    s_lshl_b32 s{t3}, s{t3}, 9
    s_add_u32 s{t3}, s{t3}, s{t0}
    s_lshl_b32 s{t1}, s{t1}, 9
    s_add_u32 s{t0}, s{t0}, s{t1}
    v_cndmask_b32 v{vW}, v{vW}, v1, {S2(sN8)}
    v_lshrrev_b32 v1, 5, v{vL}
    v_lshl_add_u32 v{vST}, v1, 4, v{vF}
    v_and_b32 v1, 1, v{vL}
    v_lshlrev_b32 v{vST+1}, 4, v1
    s_mov_b32 s{sB1}, 0
    s_mov_b32 s{sB1+1}, -1
    s_mov_b32 s{sSC}, 1
    s_mov_b32 s{sSC+1}, 1
    """)
    a.sadd(sA, 16, f"s{t0}"); a.sadd(sB, 18, f"s{t3}"); a.sadd(sG1, sA, 7168); a.sadd(sU1, sB, 7168)
    def vlanded(n):
        a(f"s_waitcnt vmcnt({n})")
        a.sig_add(vZ, SC)
        a.stamp(3)
        a(f"v_lshlrev_b32 v{vX}, 16, v{vX}")
        if P["gq"]: a.gate(vZ, QC, P["gq"])
        a.stamp(4)
    order = []
    for c in range(8): order += [(WG, c, sA), (WU, c, sB), (WG, c + 8, sG1), (WU, c + 8, sU1)]
    done_c = 0
    def csum(n):
        nonlocal done_c
        for x in range(done_c, n):
            w, t, _ = order[x]; cc = CS + (4 if w == WU else 0)
            a(f"v_mfma_f32_16x16x32_bf16 {R(cc)}, {R(UN)}, {R(w+4*t)}, {R(cc) if x > 1 else 0}")
        done_c = max(done_c, n)
    for m, (w, t, sb) in enumerate(order):
        if m == 0 and P["gpre"] is not None: a(f"s_waitcnt vmcnt({P['gpre']})")
        if m == P["gearly"]: vlanded(m)
        if m in P["gwin"]:
            g = P["gwin"][m]
            if g == "o": a.gate(vZ, OG, 4)
            else: a(f"s_waitcnt vmcnt({g})"); csum(m - g)
        a(f"global_load_dwordx4 {R(w+4*t)}, v{vW if w == WG else vWU}, {S2(sb)} nt")
        if m & 3 == 2 and m < 30: a(f"v_add_u32 v{vW}, {4*7168}, v{vW}")
        if m & 3 == 3 and m < 30: a(f"v_add_u32 v{vWU}, {4*7168}, v{vWU}")
    a.stamp(5)
    a(f"s_lshl_b32 s{t1}, s{sX}, 12\ns_add_u32 s{t1}, s{t1}, {HB}")
    a.sadd(sC, 26, f"s{t1}")
    guaddr(a, vSA, sD, sE, 0); guaddr(a, None, sA, sB, P["bal"])
    def first(n=4):
        for x in range(done_c & ~1, 32, 2):
            a(f"s_waitcnt vmcnt({n+30-x})"); csum(x + 2)
        a.stamp(6)
        a(f"ds_write_b128 v{vPW}, {R(CS)} offset:{PGU+1024}\nds_write_b128 v{vPW}, {R(CS+4)} offset:{PGU+3072}")
        a.sig_add(vZ, CC)
    if P["hafter"]: first(0)
    a.poll(a.ldn(D, vPR, sC, 1024), D, 4, first=None if P["hafter"] else first, sleep=P["hsleep"])
    a("s_setprio 3")
    a.stamp(7)
    a.sumn(D, 4)
    for x in a.red32(D, hv, z): a(x)
    a(f"""
    v_cvt_pk_bf16_f32 v{hv}, v{hv}, v{hv}
    v_lshlrev_b32 v{hv}, 16, v{hv}
    v_add_f32 v{hv}, v{hv}, v{vX}
    v_cvt_pk_bf16_f32 v{vH2}, v{hv}, v{hv}
    """)
    fill = [f"v_lshlrev_b32 v{hv}, 16, v{vH2}", f"v_cndmask_b32 v{z}, 1.0, v{hv}, {S2(sB1)}", f"v_mul_f32 v{z}, v{z}, v{hv}"]
    fill += [f"v_add_f32_dpp v{z}, v{z}, v{z} {DPP(c)}" for c in ("quad_perm:[1,0,3,2]", "quad_perm:[2,3,0,1]", "row_ror:4", "row_ror:8")]
    fill += [f"v_mov_b32 v{zt}, v{z}", f"v_permlane16_swap_b32 v{z}, v{zt}", f"v_add_f32 v{z}, v{z}, v{zt}",
             f"s_mov_b64 exec, {S2(sSC)}\nds_write_b32 v{vST}, v{z} offset:{ST}\ns_mov_b64 exec, -1"]
    a.gemv([WG, WU], ACC, A0, [(t, vH2, t) for t in range(16)], fill=fill)
    a.stamp(8)
    skip = a.lab("pub")
    a(f"""
    ds_write_b128 v{vPW}, {R(ACC)} offset:{PGU}
    ds_write_b128 v{vPW}, {R(ACC+4)} offset:{PGU+2048}
    s_mov_b64 exec, 1
    ds_add_rtn_u32 v1, v{vZ}, v{vONE} offset:{CG}
    s_mov_b64 exec, -1
    ds_read_b32 v{u0}, v{vZ} offset:{VERD}
    ds_read_b128 {R(A0)}, v{vST+1} offset:{ST}
    """)
    for m in range(2):
        for w in range(4): a(f"ds_read_b128 {R(D+16*m+4*w)}, v{vPR} offset:{PGU+4096*w+2048*m}")
    a(f"""
    s_waitcnt lgkmcnt({a.lg(10)})
    v_readfirstlane_b32 s{t0}, v1
    s_cmp_eq_u32 s{t0}, 3
    s_cbranch_scc0 {skip}
    s_waitcnt lgkmcnt({a.lg(4)})
    v_readfirstlane_b32 s{sVERD}, v{u0}
    v_pk_add_f32 {R(A0,2)}, {R(A0,2)}, {R(A0+2,2)}
    v_add_f32 v{A0}, v{A0}, v{A0+1}
    """)
    a.sumn(D, 4)
    a.embed(D, A0)
    a(f"s_mov_b64 exec, {S2(sE)}")
    a.lstore(f"global_store_dwordx4 v{vSA}, {R(D)}, {S2(sD)}")
    a(f"s_mov_b64 exec, {S2(sB)}\ns_waitcnt lgkmcnt(0)")
    a.sumn(E, 4)
    a(f"v_perm_b32 v{E}, v{E}, v{vT}, s{sTAG}")
    a.lstore(f"global_store_dwordx4 v{vSA}, {R(E)}, {S2(sA)} offset:2048")
    a(f"s_mov_b64 exec, -1\n{skip}:\ns_waitcnt lgkmcnt(0)\ns_setprio 0")
    a.stamp(9)
    a(f"""
    s_and_b32 s{t0}, s{sX}, 7
    s_cmp_eq_u32 s{t0}, s{sJ}
    s_cbranch_scc0 L_out
    s_bitcmp1_b32 s{sI}, 0
    s_cbranch_scc0 L_out
    s_lshl_b32 s{t1}, s{sX}, 12
    s_add_u32 s{t1}, s{t1}, {F1}
    """)
    a.sadd(sC, 26, f"s{t1}")
    if P["prewarm"]: a(f"global_load_ushort v{u0}, v{vOA}, s[22:23]")
    a.poll(a.ldn(D, vPR, sC, 1024), D, 4, sleep=P["fsleep"])
    a.stamp(10)
    a.sumn(D, 4)
    for x in a.red32(D, z, zt): a(x)
    a(f"""
    v_cvt_pk_bf16_f32 v{z}, v{z}, v{z}
    v_lshlrev_b32 v{z}, 16, v{z}
    v_add_f32 v{z}, v{z}, v{hv}
    v_cvt_pk_bf16_f32 v{z}, v{z}, v{z}
    s_mov_b32 exec_hi, 0
    global_store_short v{vOA}, v{z}, s[22:23]
    s_mov_b64 exec, 1
    s_cmp_eq_u32 s{sX}, 0
    s_cbranch_scc0 L_fin
    global_store_dword v{vZ}, v{vT}, s[26:27] sc1
    L_fin:
    s_mov_b64 exec, -1
    """)
    a.stamp(11)

def gen(**kw):
    P = dict(DEF); P.update(kw)
    a = K(P)
    a.stamp(0)
    a(f"""
    s_cmp_ge_u32 s2, 256
    s_cbranch_scc1 L_end
    s_load_dwordx16 s[4:19], s[0:1], 0
    s_load_dwordx8 s[20:27], s[0:1], 64
    v_lshrrev_b32 v1, 6, v0
    v_and_b32 v0, 63, v0
    v_readfirstlane_b32 s3, v1
    v_and_b32 v{vN}, 15, v0
    v_lshrrev_b32 v{vKB}, 4, v0
    s_and_b32 s{sJ}, s2, 7
    s_bfe_u32 s{sI}, s2, 0x40003
    s_lshr_b32 s{sG}, s{sJ}, 1
    s_mov_b32 s{sBUD}, {P['bud']}
    s_and_b32 s{sK}, s3, 3
    """)
    if P["dev"]:
        for i in range(1, 15): a(f"s_mov_b32 s{STAMP0+2*i}, 0")
    a(f"""
    s_cmp_ge_u32 s2, 128
    s_cbranch_scc1 L_A
    s_cmp_ge_u32 s3, 4
    s_cbranch_scc1 L_BW
    """)
    role_bq(a); a("; @reset"); role_bw(a); a("; @reset")
    a("L_A:\ns_cmp_ge_u32 s3, 4\ns_cbranch_scc1 L_AG")
    role_ax(a); a("; @reset"); role_ag(a)
    a("L_out:")
    if P["dev"]:
        a("s_waitcnt lgkmcnt(0)")
        for i in range(15): a(f"v_writelane_b32 v1, s{STAMP0+2*i}, {i}")
        a(f"""
        v_writelane_b32 v1, s{sBUD}, 15
        s_lshl_b32 s{t0}, s2, 4
        s_add_u32 s{t0}, s{t0}, s3
        s_lshl_b32 s{t0}, s{t0}, 6
        s_add_u32 s{t0}, s{t0}, {128<<20}
        v_lshlrev_b32 v2, 2, v0
        v_add_u32 v2, s{t0}, v2
        s_mov_b64 exec, 0xffff
        global_store_dword v2, v1, s[26:27]
        """)
    a("L_end:\ns_endpgm")
    body = a.finish()
    assert 128 < a.maxv <= 256, a.maxv
    return wrap([(KNAME, body, 256, 512, LDS, a.maxv)]), a

if __name__ == "__main__":
    kw = eval("dict(" + (sys.argv[2] if len(sys.argv) > 2 else "") + ")")
    s, a = gen(**kw)
    open(sys.argv[1], "w").write(s)
    print("vgpr", a.maxv, "sgpr", a.maxs, "lines", s.count("\n"), "nops", s.count("s_nop"))
```

```python
import sys
from asm import *
KOFF = (65536 - 4096) * 256
XT, QB, O2, HB, F1, GU = 0x1000, 0x10000, 0x40000, 0xC0000, 0xE0000, 0x100000
PX, PK, QC, SC, CQ, CO, CG, CC, CD, VERD, OG, PP = 0, 16, 32, 36, 40, 44, 48, 52, 56, 60, 64, 68
QL, SL, ST, OT, PGU, KL, VL, LDS = 256, 2560, 4608, 4864, 9728, 26624, 59392, 92160
PQ, PO, PD, XN = 1024, 5120, 9216, 16384
sJ, sI, sG, sK, sX, sT, sBUD, sVERD = 28, 29, 30, 31, 32, 33, 40, 41
sTAG, sE1, sE2, sE3, sX1, sX2, sL2E, sGC = 34, 35, 36, 37, 38, 39, 42, 44
sB1, sN8, sSC = 46, 48, 50
sA, sB, sC, sD, sE, sQ = 52, 54, 56, 58, 60, 62
t0, t1, t2, t3 = 96, 97, 98, 99
STAMP0 = 64
vL, vN, vKB, vT, vT8, vZ, vONE, vM = 0, 2, 3, 4, 5, 6, 7, 8
vF, vPW, vPR, vH2 = 12, 13, 14, 15
DEF = dict(dev=1, bud=20000, local=1, gsleep=1, prewarm=1,
           xsig={7: 1},
           wgate={0: "p"}, wwin={},
           kby="x", qmap=0,
           kat=-1,
           vgate={}, vwin={},
           gq=4, gwin={}, dgate=4, dwin={}, psleep=0, dafter="h", bal=1, gearly=0, xbar=0, qsleep=None, osleep=None, oafter=0, hafter=0, hsleep=None, gafter=0, gusleep=None, fsleep=None, qafter=0, gpre=None)

def R(b, n=4): return f"v[{b}:{b+n-1}]"
def S2(b): return f"s[{b}:{b+1}]"
def DPP(ctl, bank=0xf): return f"{ctl} row_mask:0xf bank_mask:{bank:#x}"

class K(A):
    def __init__(a, P):
        super().__init__(); a.P = P
    def stamp(a, i):
        if a.P["dev"]: a(f"s_memrealtime s[{STAMP0+2*i}:{STAMP0+2*i+1}]")
    def lg(a, n): return 0 if a.P["dev"] else n
    def budget(a, top):
        a(f"s_sub_u32 s{sBUD}, s{sBUD}, 1\ns_cbranch_scc0 {top}\ns_mov_b32 s{sBUD}, 0")
    def gate(a, addr, off, thr, sleep=None, tmp=1):
        top, done = a.lab("gt"), a.lab("gd")
        if sleep is None: sleep = a.P["gsleep"]
        a(f"{top}:\nds_read_b32 v{tmp}, v{addr} offset:{off}\ns_waitcnt lgkmcnt(0)\nv_readfirstlane_b32 s{t0}, v{tmp}\ns_cmp_ge_u32 s{t0}, {thr}\ns_cbranch_scc1 {done}")
        if sleep: a(f"s_sleep {sleep}")
        a.budget(top); a(f"{done}:")
    def sig_add(a, addr, off):
        a(f"s_mov_b64 exec, 1\nds_add_u32 v{addr}, v{vONE} offset:{off}\ns_mov_b64 exec, -1")
    def sadd(a, d, base, off):
        a(f"s_add_u32 s{d}, s{base}, {off}\ns_addc_u32 s{d+1}, s{base+1}, 0")
    def bf(a, v):
        a(f"v_cvt_pk_bf16_f32 v{v}, v{v}, v{v}\nv_lshlrev_b32 v{v}, 16, v{v}")
    def masks(a, full):
        a(f"""
        v_and_b32 v1, 1, v{vN}
        v_lshlrev_b32 v1, 4, v1
        v_mov_b32 v{vM+3}, 0xffff
        v_lshlrev_b32 v1, v1, v{vM+3}
        v_lshrrev_b32 v{vH2}, 1, v{vN}
        """)
        if full == "both": a(f"v_and_b32 v{vH2}, 3, v{vH2}")
        elif full: a(f"v_and_b32 v{vM+3}, 2, v{vKB}\nv_lshlrev_b32 v{vM+3}, 1, v{vM+3}\nv_xor_b32 v{vH2}, v{vH2}, v{vM+3}")
        for d in range(4): a(f"v_cmp_eq_u32 vcc, {d}, v{vH2}\nv_cndmask_b32 v{vM+d}, 0, v1, vcc")
    def consts(a):
        a(f"""
        s_mov_b32 s{sTAG}, 0x07060500
        s_mov_b32 s{sE1}, 0x07060501
        s_mov_b32 s{sE2}, 0x07060502
        s_mov_b32 s{sE3}, 0x07060503
        s_mov_b32 s{sX1}, 0x04000c0c
        s_mov_b32 s{sX2}, 0x0706000c
        s_mov_b32 s{sL2E}, 0x3fb8aa3b
        s_mov_b32 s{sL2E+1}, 0x3fb8aa3b
        s_mov_b32 s{sVERD}, 0
        v_mov_b32 v{vZ}, 0
        v_mov_b32 v{vONE}, 1
        v_mov_b32 v{vF}, s{sK}
        v_lshlrev_b32 v{vF}, 2, v{vF}
        v_lshlrev_b32 v{vPR}, 4, v{vL}
        """)
    def pwaddr(a, sidx, stride):
        a(f"""
        v_and_b32 v1, 1, v{vKB}
        v_lshlrev_b32 v1, 4, v1
        v_lshl_or_b32 v{vPW}, v{vN}, 5, v1
        v_lshrrev_b32 v1, 1, v{vKB}
        v_lshl_or_b32 v{vPW}, v1, 9, v{vPW}
        s_mul_i32 s{t0}, s{sidx}, {stride}
        v_add_u32 v{vPW}, s{t0}, v{vPW}
        """)
    def wideaddr(a, dst, rowstride):
        a(f"""
        v_and_b32 v1, 1, v{vKB}
        v_mul_u32_u24 v{dst}, {2*rowstride}, v1
        v_lshrrev_b32 v1, 1, v{vKB}
        v_lshl_add_u32 v{dst}, v1, 8, v{dst}
        v_lshl_add_u32 v{dst}, v{vN}, 4, v{dst}
        """)
    def slotaddr(a, dst, sCQ, sPROD):
        a(f"""
        v_lshrrev_b32 v1, 3, v{vL}
        s_lshl_b32 s{t0}, s{sCQ}, 3
        v_add_u32 v1, s{t0}, v1
        v_add_u32 v{dst}, s{sPROD}, v1
        v_and_b32 v{dst}, 31, v{dst}
        v_lshlrev_b32 v{dst}, 7, v{dst}
        v_lshl_add_u32 v{dst}, v1, 12, v{dst}
        v_and_b32 v1, 7, v{vL}
        v_lshl_add_u32 v{dst}, v1, 4, v{dst}
        """)
    def epoch(a):
        a(f"""
        s_waitcnt lgkmcnt(0)
        s_add_u32 s{sT}, s{sT}, 0x9e3779b9
        v_mov_b32 v{vT}, s{sT}
        v_and_b32 v{vT8}, 0xff, v{vT}
        """)
    def zero_flags(a, tmp):
        l = a.lab("zf")
        a(f"s_cmp_eq_u32 s3, 7\ns_cbranch_scc0 {l}\nv_mov_b32 v1, 0\nv_lshlrev_b32 v{tmp}, 2, v{vL}\nds_write_b32 v{tmp}, v1\n{l}:")
    def xt_publish(a, u0, u1):
        l = a.lab("xp")
        a(f"""
        s_cmp_eq_u32 s3, 7
        s_cbranch_scc0 {l}
        s_getreg_b32 s{t0}, hwreg(HW_REG_XCC_ID, 0, 4)
        s_add_u32 s{t0}, s{t0}, s{sT}
        s_lshl_b32 s{t1}, s{sJ}, 7
        s_lshr_b32 s{t2}, s2, 3
        s_lshl_b32 s{t2}, s{t2}, 2
        s_add_u32 s{t1}, s{t1}, s{t2}
        s_add_u32 s{t1}, s{t1}, {XT}
        v_mov_b32 v{u0}, s{t1}
        v_mov_b32 v{u1}, s{t0}
        s_mov_b64 exec, 1
        global_store_dword v{u0}, v{u1}, s[26:27] sc1
        s_mov_b64 exec, -1
        {l}:
        """)
    def abuild(a, dst, lane, src=vH2):
        c = lane if isinstance(lane, str) else f"row_newbcast:{lane}"
        for d in range(4): a(f"v_and_b32_dpp v{dst+d}, v{src}, v{vM+d} {DPP(c)}")
    def gemv(a, W, acc, A0, steps, fill=None, pre=None):
        fill = list(fill or [])
        a.abuild(A0, steps[0][2], steps[0][1])
        for s, (t, src, lane) in enumerate(steps):
            if s + 1 < len(steps): a.abuild(A0 + 4 * ((s + 1) & 1), steps[s+1][2], steps[s+1][1])
            if pre: pre(s)
            for m, w in enumerate(W):
                a(f"v_mfma_f32_16x16x32_bf16 {R(acc+4*m)}, {R(A0+4*(s&1))}, {R(w+4*t)}, {R(acc+4*m) if s else 0}")
                if fill: a(fill.pop(0))
        for f in fill: a(f)
    def lstore(a, ins):
        if not a.P["local"]:
            a(ins + " sc1"); return
        l1, l2 = a.lab("ls"), a.lab("le")
        a(f"s_cmp_eq_u32 s{sVERD}, 1\ns_cbranch_scc1 {l1}\n{ins} sc1\ns_branch {l2}\n{l1}:\n{ins}\n{l2}:")
    def sumn(a, r0, n):
        live = list(range(n))
        while len(live) > 1:
            nxt = []
            for h in (0, 2):
                for x in range(0, len(live) - 1, 2):
                    p, q = r0 + 4 * live[x] + h, r0 + 4 * live[x+1] + h
                    a(f"v_pk_add_f32 {R(p,2)}, {R(p,2)}, {R(q,2)}")
            live = live[0::2]
    def publish(a, acc, base, cnt, r0, vaddr, sbase, n, half, nr=None, rd=vPR, stride=1024):
        skip = a.lab("pub")
        a(f"""
        ds_write_b128 v{vPW}, {R(acc)} offset:{base}
        s_mov_b64 exec, 1
        ds_add_rtn_u32 v1, v{vZ}, v{vONE} offset:{cnt}
        s_mov_b64 exec, -1
        """)
        nr = nr or n
        for w in range(nr): a(f"ds_read_b128 {R(r0+4*w)}, v{rd} offset:{base+stride*w}")
        a(f"s_waitcnt lgkmcnt({a.lg(nr)})\nv_readfirstlane_b32 s{t0}, v1\ns_cmp_eq_u32 s{t0}, {n-1}\ns_cbranch_scc0 {skip}\ns_waitcnt lgkmcnt(0)")
        a.sumn(r0, nr)
        a(f"v_perm_b32 v{r0}, v{r0}, v{vT}, s{sTAG}")
        if half: a("s_mov_b64 exec, 0xffff")
        a(f"global_store_dwordx4 v{vaddr}, {R(r0)}, {S2(sbase)} sc1")
        if half: a("s_mov_b64 exec, -1")
        a(f"{skip}:\ns_waitcnt lgkmcnt(0)")
    def tagcheck(a, d, n, tmp):
        for v in range(n): a(f"v_xor_b32 v{d+4*v}, v{d+4*v}, v{vT8}")
        if n == 4: a(f"v_or3_b32 v{tmp}, v{d}, v{d+4}, v{d+8}\nv_or_b32 v{tmp}, v{tmp}, v{d+12}")
        else: a(f"v_or_b32 v{tmp}, v{d}, v{d+4}")
        a(f"v_cmp_ne_u32_sdwa vcc, v{tmp}, v{vZ} src0_sel:BYTE_0 src1_sel:DWORD")
    def poll(a, loads, d, n, tmp=1, first=None, sleep=None):
        top, done = a.lab("pl"), a.lab("pd")
        ent = None
        if first:
            ent = a.lab("pe")
            a(loads); first(); a(f"s_branch {ent}")
        a(f"{top}:")
        a(loads)
        if ent: a(f"{ent}:")
        a("s_waitcnt vmcnt(0)")
        a.tagcheck(d, n, tmp)
        a(f"s_cbranch_vccz {done}")
        if sleep is None: sleep = a.P["psleep"]
        if sleep: a(f"s_sleep {sleep}")
        a.budget(top); a(f"{done}:")
    def ldn(a, d, vaddr, sbase, step, n=4):
        return "\n".join(f"global_load_dwordx4 {R(d+4*v)}, v{vaddr}, {S2(sbase)} offset:{step*v} sc1" for v in range(n))
    def extract(a, dst, d):
        a(f"v_perm_b32 v{dst}, v{d+3}, v{d+2}, s{sX1}\nv_perm_b32 v{dst}, v{dst}, v{d+1}, s{sX2}")
    def embed(a, d, val):
        a(f"v_perm_b32 v{d}, v{d}, v{vT}, s{sTAG}\nv_perm_b32 v{d+1}, v{d+1}, v{val}, s{sE1}\nv_perm_b32 v{d+2}, v{d+2}, v{val}, s{sE2}\nv_perm_b32 v{d+3}, v{d+3}, v{val}, s{sE3}")
    def rows_all(a, v, t, op):
        a(f"v_mov_b32 v{t}, v{v}\nv_permlane16_swap_b32 v{v}, v{t}\n{op} v{v}, v{v}, v{t}\nv_mov_b32 v{t}, v{v}\nv_permlane32_swap_b32 v{v}, v{t}\n{op} v{v}, v{v}, v{t}")
    def red32(a, d, y, t):
        return [f"v_permlane16_swap_b32 v{d}, v{d+2}", f"v_permlane16_swap_b32 v{d+1}, v{d+3}",
                f"v_pk_add_f32 {R(d,2)}, {R(d,2)}, {R(d+2,2)}",
                f"v_add_f32_dpp v{y}, v{d}, v{d} {DPP('row_ror:8', 0x3)}", f"v_add_f32_dpp v{y}, v{d+1}, v{d+1} {DPP('row_ror:8', 0xc)}",
                f"v_mov_b32 v{t}, v{y}", f"v_permlane32_swap_b32 v{y}, v{t}", f"v_add_f32 v{y}, v{y}, v{t}"]
    def idxaddr(a, dst):
        a(f"""
        v_and_b32 v1, 7, v{vN}
        v_lshlrev_b32 v{dst}, 3, v1
        v_and_b32 v1, 1, v{vKB}
        v_lshl_add_u32 v{dst}, v1, 2, v{dst}
        v_lshrrev_b32 v1, 3, v{vN}
        v_lshl_add_u32 v{dst}, v1, 1, v{dst}
        """)

def interleave(*ls):
    out = []; ls = [list(l) for l in ls]
    while any(ls):
        for l in ls:
            if l: out.append(l.pop(0))
    return out

QW, QXF, QXU, QXO, QU, QD_, QACC, QA0, QvW, QvXA, QvRD = 16, 48, 56, 72, 74, 48, 96, 100, 169, 170, 171
def q_pre(a, hf):
    a(f"""
    v_lshrrev_b32 v1, 3, v{vL}
    v_lshlrev_b32 v{QvW}, 16, v1
    v_lshlrev_b32 v{QvXA}, 4, v1
    v_and_b32 v1, 7, v{vL}
    v_lshl_add_u32 v{QvW}, v1, 4, v{QvW}
    v_and_b32 v1, 3, v{vL}
    v_lshl_add_u32 v{QvXA}, v1, 1, v{QvXA}
    v_lshlrev_b32 v{QU}, 5, v{vL}
    s_and_b32 s{t0}, s{sI}, 12
    s_add_u32 s{t0}, s{t0}, s{sK}
    s_lshl_b32 s{t1}, s{t0}, 7
    v_add_u32 v{QvXA}, s{t1}, v{QvXA}
    s_lshl_b32 s{t0}, s{t0}, 19
    """)
    if a.P["qmap"] == 0: a(f"s_and_b32 s{t1}, s{sI}, 3\ns_lshl_b32 s{t1}, s{t1}, 1\ns_add_u32 s{t1}, s{t1}, {hf}")
    else: a(f"s_and_b32 s{t1}, s{sI}, 3\ns_add_u32 s{t1}, s{t1}, {4*hf}")
    a(f"""
    s_lshl_b32 s{t2}, s{sJ}, 3
    s_add_u32 s{t1}, s{t1}, s{t2}
    s_lshl_b32 s{t2}, s{t1}, 7
    s_add_u32 s{sE}, s{t0}, s{t2}
    s_lshr_b32 s{t2}, s{t1}, 1
    s_lshl_b32 s{sQ}, s{t2}, 11
    s_and_b32 s{t1}, s{t1}, 1
    s_lshl_b32 s{t1}, s{t1}, 8
    s_add_u32 s{sQ}, s{sQ}, s{t1}
    s_lshr_b32 s{t0}, s{sI}, 2
    s_lshl_b32 s{t0}, s{t0}, 9
    s_add_u32 s{sQ}, s{sQ}, s{t0}
    s_add_u32 s{sQ}, s{sQ}, {QB}
    """)
def q_issue(a):
    a(f"""
    s_waitcnt lgkmcnt(0)
    s_load_dword s{sT}, s[26:27], 0
    global_load_dwordx4 {R(QXF)}, v{QU}, s[4:5]
    global_load_dwordx4 {R(QXF+4)}, v{QU}, s[4:5] offset:16
    global_load_ushort v{QXO}, v{QvXA}, s[4:5]
    global_load_ushort v{QXO+1}, v{QvXA}, s[4:5] offset:8
    """)
    a.sadd(sE, 10, f"s{sE}")
    a("s_barrier")
    for t in range(8):
        a(f"global_load_dwordx4 {R(QW+4*t)}, v{QvW}, {S2(sE)} nt")
        if t < 7: a(f"v_add_u32 v{QvW}, 0x2000, v{QvW}")
    a("s_barrier")
def q_norm(a, extra):
    a.sadd(sQ, 26, f"s{sQ}")
    a.consts(); a.masks("both")
    a(f"""
    v_and_b32 v1, 1, v{vKB}
    v_lshlrev_b32 v1, 4, v1
    v_lshl_or_b32 v{vPW}, v{vN}, 5, v1
    v_lshrrev_b32 v1, 2, v{vN}
    v_xor_b32 v1, v1, v{vKB}
    v_and_b32 v1, 2, v1
    v_lshl_or_b32 v{vPW}, v1, 10, v{vPW}
    s_lshl_b32 s{t0}, s{sK}, 9
    v_add_u32 v{vPW}, s{t0}, v{vPW}
    v_lshlrev_b32 v{QvRD}, 4, v{vN}
    s_waitcnt vmcnt({8+extra})
    """)
    layernorm(a, QXF, QXU, [QXO, QXO + 1], QU)
def q_gemv(a, extra, pq, st, at=None):
    P = a.P
    def pre(t):
        nonlocal extra
        a(f"s_waitcnt vmcnt({7-t+extra})")
        if t - 1 in P["xsig"]: a.sig_add(vF, PX)
        if at: extra += at(t)
    a.gemv([QW], QACC, QA0, [(t, QXO + (t >> 2), f"quad_perm:[{t&3},{t&3},{t&3},{t&3}]") for t in range(8)], pre=pre)
    if 7 in P["xsig"]: a.sig_add(vF, PX)
    a.stamp(st)
    a.publish(QACC, pq, CQ, QD_, QvRD, sQ, 4, True, nr=8, rd=QvRD, stride=256)

def role_bq(a):
    P = a.P
    a("L_BQ:")
    q_pre(a, 0); q_issue(a)
    a.stamp(1)
    q_norm(a, 0)
    a.epoch()
    a.stamp(2)
    q_gemv(a, 0, PQ, 4)
    a.sig_add(vZ, PP)
    a.stamp(5)
    a.masks(True)
    role_d(a)

def layernorm(a, XF, XU, vXO, u0):
    u1, u2, u3, u4, u5 = range(u0 + 1, u0 + 6)
    for e in range(8): a(f"v_lshlrev_b32 v{XU+2*e}, 16, v{XF+e}\nv_and_b32 v{XU+2*e+1}, 0xffff0000, v{XF+e}")
    def allsum(v, t):
        a(f"v_add_f32 v{v}, v{v}, v{v+1}")
        for c in ("quad_perm:[1,0,3,2]", "quad_perm:[2,3,0,1]", "row_ror:4", "row_ror:8"):
            a(f"v_add_f32_dpp v{v}, v{v}, v{v} {DPP(c)}")
        a.rows_all(v, t, "v_add_f32")
        a(f"v_mul_f32 v{v}, 0x3a800000, v{v}")
    a(f"v_pk_add_f32 {R(u0,2)}, {R(XU,2)}, {R(XU+2,2)}")
    for e in range(2, 8): a(f"v_pk_add_f32 {R(u0,2)}, {R(u0,2)}, {R(XU+2*e,2)}")
    allsum(u0, u4)
    for e in range(8): a(f"v_pk_add_f32 {R(XU+2*e,2)}, {R(XU+2*e,2)}, {R(u0,2)} op_sel_hi:[1,0] neg_lo:[0,1] neg_hi:[0,1]")
    a(f"v_pk_mul_f32 {R(u2,2)}, {R(XU,2)}, {R(XU,2)}")
    for e in range(1, 8): a(f"v_pk_fma_f32 {R(u2,2)}, {R(XU+2*e,2)}, {R(XU+2*e,2)}, {R(u2,2)}")
    allsum(u2, u4)
    a.bf(u0); a.bf(u2)
    a(f"v_add_f32 v{u2}, 0x3727c5ac, v{u2}"); a.bf(u2)
    a(f"v_sqrt_f32 v{u2}, v{u2}"); a.bf(u2)
    a(f"v_rcp_f32 v{u3}, v{u2}")
    for x in vXO:
        a(f"v_lshlrev_b32 v{x}, 16, v{x}\nv_sub_f32 v{x}, v{x}, v{u0}"); a.bf(x)
        a(f"v_mul_f32 v{u4}, v{x}, v{u3}\nv_fma_f32 v{u5}, -v{u4}, v{u2}, v{x}\nv_fma_f32 v{u4}, v{u5}, v{u3}, v{u4}\nv_cvt_pk_bf16_f32 v{x}, v{u4}, v{u4}")

def role_d(a):
    P = a.P
    W, GD, ACC, A0 = 16, 48, 80, 84
    vW, vGA, vFA, vINV, AH = 92, 93, 94, 95, 96
    u0, u1, u2, u3, u4 = 98, 99, 100, 101, 102
    a(f"""
    L_D:
    s_lshr_b32 s{t2}, s{sI}, 2
    s_mul_i32 s{t0}, s{t2}, 7
    s_add_u32 s{t0}, s{t0}, s3
    s_lshr_b32 s{t1}, s{t0}, 1
    s_lshl_b32 s{t1}, s{t1}, 12
    s_and_b32 s{t3}, s{t0}, 1
    s_lshl_b32 s{t3}, s{t3}, 6
    s_add_u32 s{t1}, s{t1}, s{t3}
    s_lshl_b32 s{t3}, s{sJ}, 16
    s_add_u32 s{t1}, s{t1}, s{t3}
    s_add_u32 s{t1}, s{t1}, {GU}
    """)
    a.sadd(sC, 26, f"s{t1}")
    a(f"""
    s_mul_i32 s{t1}, s{sJ}, 28
    s_add_u32 s{t0}, s{t0}, s{t1}
    s_lshl_b32 s{t0}, s{t0}, 15
    s_and_b32 s{t3}, s{sI}, 3
    s_lshl_b32 s{t1}, s{t3}, 9
    s_add_u32 s{t0}, s{t0}, s{t1}
    """)
    a.sadd(sA, 20, f"s{t0}")
    a(f"s_lshl_b32 s{t1}, s{sJ}, 2\ns_add_u32 s{t2}, s{t2}, s{t1}")
    a.slotaddr(vFA, t3, t2)
    a.sadd(sB, 26, F1)
    a.wideaddr(vW, 2048); a.pwaddr(3, 1024)
    a(f"""
    v_lshrrev_b32 v1, 2, v{vN}
    v_lshlrev_b32 v{vGA}, 10, v1
    v_lshl_add_u32 v{vGA}, v{vKB}, 7, v{vGA}
    v_and_b32 v1, 3, v{vN}
    v_lshl_add_u32 v{vGA}, v1, 4, v{vGA}
    v_mov_b32 v{vINV}, 0x3a800000
    s_mov_b32 s{sGC}, 0x3d372713
    """)
    if P["prewarm"]:
        l = a.lab("pw")
        a(f"s_cmp_ge_u32 s3, 4\ns_cbranch_scc1 {l}\n" + a.ldn(GD, vGA, sC, 512, 2) + f"\ns_waitcnt vmcnt(0)\n{l}:")
    a.gate(vZ, OG, P["dgate"])
    a.stamp(10)
    for m in range(8):
        if m in P["dwin"]: a(f"s_waitcnt vmcnt({P['dwin'][m]})")
        t = (m >> 1) + 4 * (m & 1)
        a(f"global_load_dwordx4 {R(W+4*t)}, v{vW}, {S2(sA)} offset:{2048*(m&1)} nt")
        if m & 1 and m < 7: a(f"v_add_u32 v{vW}, 0x2000, v{vW}")
    a.stamp(11)
    if P["gafter"]: a("s_waitcnt vmcnt(0)")
    a.poll(a.ldn(GD, vGA, sC, 512, 2), GD, 2, sleep=P["gusleep"])
    a("s_setprio 3")
    a.stamp(12)
    a.extract(u0, GD); a.extract(u1, GD + 4)
    a(f"""
    v_pk_add_f32 {R(GD,2)}, {R(GD,2)}, {R(GD+4,2)}
    v_pk_add_f32 {R(GD+2,2)}, {R(GD+2,2)}, {R(GD+6,2)}
    v_add_f32 v{u0}, v{u0}, v{u1}
    v_permlane16_swap_b32 v{GD}, v{GD+2}
    v_mov_b32 v{u1}, v{u0}
    v_permlane16_swap_b32 v{GD+1}, v{GD+3}
    v_permlane16_swap_b32 v{u0}, v{u1}
    v_pk_add_f32 {R(GD,2)}, {R(GD,2)}, {R(GD+2,2)}
    v_add_f32 v{u0}, v{u0}, v{u1}
    v_mov_b32 v{u1}, v{u0}
    v_permlane32_swap_b32 v{GD}, v{GD+1}
    v_permlane32_swap_b32 v{u0}, v{u1}
    v_add_f32 v{GD}, v{GD}, v{GD+1}
    v_add_f32 v{u0}, v{u0}, v{u1}
    v_mul_f32_dpp v{u1}, -v{u0}, v{vINV} {DPP('row_newbcast:0')}
    v_mul_f32_dpp v{u2}, v{u0}, v{vINV} {DPP('row_newbcast:1')}
    v_fma_f32 v{u2}, -v{u1}, v{u1}, v{u2}
    v_fmac_f32_dpp v{GD}, v{GD}, v{u1} {DPP('row_shl:4', 0x5)}
    v_max_f32 v{u2}, 0, v{u2}
    v_add_f32 v{u2}, 0x3727c5ac, v{u2}
    v_rsq_f32 v{u2}, v{u2}
    v_mul_f32 v{GD}, v{GD}, v{u2}
    v_cvt_pk_bf16_f32 v{GD}, v{GD}, v{GD}
    v_lshlrev_b32 v{GD}, 16, v{GD}
    v_mul_f32 v{u0}, v{GD}, v{GD}
    v_mul_f32 v{u1}, 0xc0135761, v{GD}
    v_fma_f32 v{u0}, v{u0}, s{sGC}, 1.0
    v_mul_f32 v{u0}, v{u0}, v{u1}
    v_exp_f32 v{u0}, v{u0}
    v_add_f32 v{u0}, 1.0, v{u0}
    v_rcp_f32 v{u0}, v{u0}
    v_mul_f32 v{u0}, v{u0}, v{GD}
    v_cvt_pk_bf16_f32 v{u0}, v{u0}, v{u0}
    v_lshlrev_b32 v{u0}, 16, v{u0}
    v_mul_f32_dpp v{u0}, v{GD}, v{u0} {DPP('row_ror:8')}
    v_cvt_pk_bf16_f32 v{AH}, v{u0}, v{u0}
    v_cvt_pk_bf16_f32 v{AH+1}, v{u0}, v{u0}
    v_permlane32_swap_b32 v{AH}, v{AH+1}
    """)
    a.gemv([W], ACC, A0, [(t, AH + (t >> 2), t & 3) for t in range(8)])
    a.stamp(13)
    a.publish(ACC, PD, CD, GD, vFA, sB, 7, False)
    a.stamp(14)
    a("s_branch L_out")

def role_bw(a):
    P = a.P
    W, D, ACC, A0, WK = 16, 80, 96, 100, 108
    vW, vHA = 124, 125
    a("L_BW:")
    a.zero_flags(vW)
    a(f"""
    s_and_b32 s{t1}, s{sI}, 3
    s_lshl_b32 s{t2}, s{sJ}, 2
    s_add_u32 s{sX}, s{t1}, s{t2}
    s_lshl_b32 s{t3}, s{sX}, 2
    s_add_u32 s{t3}, s{t3}, s{sK}
    s_lshl_b32 s{t0}, s{t3}, 16
    s_lshr_b32 s{t2}, s{sI}, 2
    s_lshl_b32 s{t1}, s{t2}, 9
    s_add_u32 s{t1}, s{t0}, s{t1}
    s_waitcnt lgkmcnt(0)
    s_load_dword s{sT}, s[26:27], 0
    s_barrier
    """)
    a.sadd(sA, 12, f"s{t1}")
    a(f"s_lshl_b32 s{t3}, s{t3}, 12\ns_add_u32 s{t3}, s{t3}, {O2}")
    a.sadd(sC, 26, f"s{t3}")
    a.sadd(sB, 26, HB)
    a.wideaddr(vW, 2048)
    a("s_barrier")
    a.consts(); a.masks(True); a.pwaddr(sK, 1024); a.slotaddr(vHA, t2, sX)
    a.epoch()
    a.xt_publish(WK, WK + 1)
    a.stamp(1)
    for m in range(16):
        if m in P["wgate"]:
            if P["wgate"][m] == "p": a.gate(vZ, PP, 4)
            else: a.gate(vF, PX, P["wgate"][m])
        if m in P["wwin"]: a(f"s_waitcnt vmcnt({P['wwin'][m]})")
        if m == 0: a.stamp(2)
        t = (m >> 1) + 8 * (m & 1)
        a(f"global_load_dwordx4 {R(W+4*t)}, v{vW}, {S2(sA)} offset:{2048*(m&1)} nt")
        if m & 1 and m < 15: a(f"v_add_u32 v{vW}, 0x2000, v{vW}")
    a.stamp(3)
    def first():
        a("s_waitcnt vmcnt(4)"); a.stamp(4)
    if P["oafter"]: a("s_waitcnt vmcnt(0)"); a.stamp(4)
    a.poll(a.ldn(D, vPR, sC, 1024), D, 4, first=first if P["dev"] and not P["oafter"] else None, sleep=P["osleep"])
    a("s_setprio 3")
    if P["dafter"] == "o": a.sig_add(vZ, OG)
    a.stamp(5)
    val, wt, mx, tt, acc, al, y = WK, WK + 4, WK + 8, WK + 9, WK + 12, WK + 10, WK + 11
    for v in range(4): a.extract(val + v, D + 4 * v)
    a(f"v_max3_f32 v{mx}, v{val}, v{val+1}, v{val+2}\nv_max_f32 v{mx}, v{mx}, v{val+3}")
    a(f"v_max_f32_dpp v{mx}, v{mx}, v{mx} {DPP('row_ror:8')}")
    a.rows_all(mx, tt, "v_max_f32")
    a(f"v_mov_b32_dpp v{mx}, v{mx} {DPP('quad_perm:[0,0,2,2]')}")
    for v in range(4): a(f"v_sub_f32_dpp v{wt+v}, v{val+v}, v{mx} {DPP('quad_perm:[0,0,2,2]')}")
    a(f"v_pk_mul_f32 {R(wt,2)}, {R(wt,2)}, {S2(sL2E)}\nv_pk_mul_f32 {R(wt+2,2)}, {R(wt+2,2)}, {S2(sL2E)}")
    for v in range(4): a(f"v_exp_f32 v{wt+v}, v{wt+v}")
    for v in range(4):
        sel = v & 1; wp = R(wt + (v & 2), 2)
        a(f"v_mul_f32 v{al}, v{val}, v{wt}" if v == 0 else f"v_fmac_f32 v{al}, v{val+v}, v{wt+v}")
        for h in (0, 2):
            if v == 0: a(f"v_pk_mul_f32 {R(acc+h,2)}, {R(D+h,2)}, {wp} op_sel:[0,0] op_sel_hi:[1,0]")
            else: a(f"v_pk_fma_f32 {R(acc+h,2)}, {R(D+4*v+h,2)}, {wp}, {R(acc+h,2)} op_sel:[0,{sel},0] op_sel_hi:[1,{sel},1]")
    la = [f"v_add_f32_dpp v{al}, v{al}, v{al} {DPP('row_ror:8')}", f"v_mov_b32 v{tt}, v{al}", f"v_permlane16_swap_b32 v{al}, v{tt}",
          f"v_add_f32 v{al}, v{al}, v{tt}", f"v_mov_b32 v{tt}, v{al}", f"v_permlane32_swap_b32 v{al}, v{tt}", f"v_add_f32 v{al}, v{al}, v{tt}",
          f"v_rcp_f32 v{al}, v{al}"]
    for x in interleave(la, a.red32(acc, y, mx)): a(x)
    a(f"v_mul_f32_dpp v{y}, v{al}, v{y} {DPP('quad_perm:[1,1,3,3]')}\nv_cvt_pk_bf16_f32 v{vH2}, v{y}, v{y}")
    a.stamp(6)
    a.gemv([W], ACC, A0, [(t, vH2, t) for t in range(16)])
    a.stamp(7)
    a.publish(ACC, PO, CO, D, vHA, sB, 4, False)
    if P["dafter"] == "h": a.sig_add(vZ, OG)
    a("s_setprio 0")
    a.stamp(8)
    a("s_cmp_eq_u32 s3, 7\ns_cbranch_scc1 L_out\ns_branch L_D")

def role_ax(a):
    P = a.P
    KF, VF, QD, QF, ACC, SR, F, D, ONES = 16, 48, 80, 80, 96, 104, 112, 128, 144
    vK0, vA0 = 148, 152
    vQW, vQR, vSW, vVA, vOW, vOR, vO2 = 156, 157, 158, 159, 161, 162, 163
    u0, u1, u2, u3, u4 = 164, 165, 166, 167, 168
    a(f"""
    L_AX:
    v_xor_b32 v1, v{vKB}, v{vN}
    v_lshlrev_b32 v1, 4, v1
    v_lshl_add_u32 v{vK0}, v{vKB}, 8, v1
    v_xor_b32 v{vK0+1}, 64, v{vK0}
    v_xor_b32 v{vK0+2}, 0x80, v{vK0}
    v_xor_b32 v{vK0+3}, 0xc0, v{vK0}
    s_and_b32 s{sX}, s{sJ}, 1
    s_lshl_b32 s{sX}, s{sX}, 4
    s_add_u32 s{sX}, s{sX}, s{sI}
    s_lshl_b32 s{t0}, s{sG}, 24
    s_lshl_b32 s{t1}, s{sX}, 15
    s_add_u32 s{t0}, s{t0}, s{t1}
    s_lshl_b32 s{t3}, s{sK}, 13
    s_add_u32 s{t0}, s{t0}, s{t3}
    s_add_u32 s{t0}, s{t0}, {KOFF}
    s_add_u32 s{sA}, s{t0}, 0
    s_add_u32 m0, s{t3}, {KL}
    """)
    q_pre(a, 1); q_issue(a)
    a.sadd(sA, 6, f"s{sA}"); a.sadd(sB, sA, 4096)
    def kload(m):
        if m == 4: a(f"s_add_u32 m0, m0, 4096")
        a(f"global_load_lds_dwordx4 v{vK0+(m&3)}, {S2(sA if m < 4 else sB)} offset:{1024*(m&3)} nt")
    kat = P["kat"] if isinstance(P["kat"], dict) else {P["kat"]: 8}
    if P["kby"] == "g": kat = {}
    kn = 0
    def kat_(t):
        nonlocal kn
        n = kat.get(t, 0)
        for m in range(kn, kn + n): kload(m)
        kn += n
        return n
    ex = kat_(-1)
    a.stamp(1)
    q_norm(a, ex)
    a.stamp(10)
    a(f"s_lshl_b32 s{t3}, s{sK}, 13")
    a(f"s_lshl_b32 s{t0}, s{sG}, 14\ns_lshl_b32 s{t1}, s{sK}, 12\ns_add_u32 s{t0}, s{t0}, s{t1}\ns_add_u32 s{t0}, s{t0}, {QB}")
    a.sadd(sC, 26, f"s{t0}")
    a(f"s_lshl_b32 s{t0}, s{sG}, 17\ns_add_u32 s{t0}, s{t0}, {O2}")
    a.sadd(sD, 26, f"s{t0}")
    a(f"""
    v_xor_b32 v1, v{vKB}, v{vN}
    v_lshlrev_b32 v1, 4, v1
    v_lshl_add_u32 v{vA0}, v{vN}, 8, v1
    v_add_u32 v{vA0}, s{t3}, v{vA0}
    v_xor_b32 v{vA0+1}, 64, v{vA0}
    v_xor_b32 v{vA0+2}, 0x80, v{vA0}
    v_xor_b32 v{vA0+3}, 0xc0, v{vA0}
    v_lshrrev_b32 v1, 5, v{vL}
    v_mul_u32_u24 v{vQW}, 288, v1
    v_and_b32 v1, 31, v{vL}
    v_lshl_add_u32 v{vQW}, v1, 3, v{vQW}
    s_mul_i32 s{t0}, s{sK}, 576
    v_add_u32 v{vQW}, s{t0}, v{vQW}
    v_and_b32 v{u0}, 7, v{vN}
    v_mul_u32_u24 v{vQR}, 288, v{u0}
    v_lshl_add_u32 v{vQR}, v{vKB}, 4, v{vQR}
    v_lshrrev_b32 v1, 1, v{vKB}
    v_lshlrev_b32 v{vSW}, 8, v1
    v_lshrrev_b32 v1, 3, v{vN}
    v_lshl_add_u32 v{vSW}, v1, 9, v{vSW}
    v_lshl_add_u32 v{vSW}, v{u0}, 4, v{vSW}
    v_and_b32 v1, 1, v{vKB}
    v_lshl_add_u32 v{vSW}, v1, 3, v{vSW}
    s_and_b32 s{t0}, s{sK}, 1
    s_lshl_b32 s{t0}, s{t0}, 7
    s_lshr_b32 s{t1}, s{sK}, 1
    s_lshl_b32 s{t1}, s{t1}, 10
    s_add_u32 s{t0}, s{t0}, s{t1}
    v_add_u32 v{vSW}, s{t0}, v{vSW}
    v_lshrrev_b32 v{u1}, 2, v{vN}
    v_lshl_add_u32 v{u2}, v1, 2, v{u1}
    v_lshlrev_b32 v{u2}, 1, v{u2}
    v_and_b32 v{u3}, 3, v{vN}
    v_lshrrev_b32 v{u4}, 1, v{u3}
    s_lshl_b32 s{t0}, s{sK}, 2
    v_add_u32 v{u4}, s{t0}, v{u4}
    v_xor_b32 v{u4}, v{u4}, v{u2}
    v_lshlrev_b32 v{u4}, 4, v{u4}
    v_and_b32 v{u3}, 1, v{u3}
    v_lshl_add_u32 v{u4}, v{u3}, 3, v{u4}
    v_lshl_add_u32 v{u1}, v{vKB}, 3, v{u1}
    v_lshl_add_u32 v{vVA}, v{u1}, 8, v{u4}
    v_add_u32 v{vVA}, {VL}, v{vVA}
    v_xor_b32 v{vVA+1}, 32, v{vVA}
    v_mul_u32_u24 v{vOW}, 144, v{u0}
    v_lshrrev_b32 v1, 3, v{vN}
    v_lshl_add_u32 v1, v1, 2, v{vKB}
    v_lshl_add_u32 v{vOW}, v1, 4, v{vOW}
    s_mul_i32 s{t0}, s{sK}, 1152
    v_add_u32 v{vOW}, s{t0}, v{vOW}
    v_lshrrev_b32 v{u1}, 3, v{vL}
    v_and_b32 v{u2}, 7, v{vL}
    v_mul_u32_u24 v{vOR}, 144, v{u1}
    v_lshl_add_u32 v{vOR}, v{u2}, 4, v{vOR}
    v_add_u32 v{vOR}, s{t0}, v{vOR}
    v_lshlrev_b32 v{u1}, 2, v{u1}
    v_add_u32 v{u1}, s{sK}, v{u1}
    v_add_u32 v1, s{sX}, v{u1}
    v_and_b32 v1, 31, v1
    v_lshlrev_b32 v1, 7, v1
    v_lshl_add_u32 v{vO2}, v{u1}, 12, v1
    v_lshl_add_u32 v{vO2}, v{u2}, 4, v{vO2}
    s_mov_b32 s{sN8}, 0xff00ff00
    s_mov_b32 s{sN8+1}, 0xff00ff00
    s_mov_b32 s{sSC}, 0x3db504f3
    s_mov_b32 s{sSC+1}, 0x3db504f3
    s_mov_b32 s{sB1}, 0xffff0000
    s_mov_b32 s{sB1+1}, 0xffff0000
    """)
    for d in range(4): a(f"v_mov_b32 v{ONES+d}, 0x3f803f80")
    a.epoch()
    q_gemv(a, ex, OT, 11, at=kat_)
    a.sig_add(vZ, PP)
    kat_(8)
    assert kn == 8 or P["kby"] == "g"
    a.stamp(12)
    def first(n=4):
        if P["kby"] == "g": a.gate(vF, PK, 1)
        else: a(f"s_waitcnt vmcnt({n})")
        a.stamp(3)
        for z in range(2):
            for s in range(4): a(f"ds_read_b128 {R(KF+16*z+4*s)}, v{vA0+s} offset:{KL+4096*z}")
    if P["qafter"]: first(0); a.gate(vZ, SC, 4)
    a.poll(a.ldn(QD, vPR, sC, 1024), QD, 4, first=None if P["qafter"] else first, sleep=P["qsleep"])
    a("s_setprio 3")
    a.stamp(4)
    for h in (0, 8):
        for p in (0, 2): a(f"v_pk_add_f32 {R(QD+h+p,2)}, {R(QD+h+p,2)}, {R(QD+h+4+p,2)}")
    for d in range(4): a(f"v_permlane32_swap_b32 v{QD+d}, v{QD+8+d}")
    a(f"""
    v_pk_add_f32 {R(QD,2)}, {R(QD,2)}, {R(QD+8,2)}
    v_pk_add_f32 {R(QD+2,2)}, {R(QD+2,2)}, {R(QD+10,2)}
    v_cvt_pk_bf16_f32 v{u0}, v{QD}, v{QD+1}
    v_cvt_pk_bf16_f32 v{u1}, v{QD+2}, v{QD+3}
    ds_write_b64 v{vQW}, {R(u0,2)} offset:{QL}
    """)
    a.sig_add(vZ, QC)
    top, done = a.lab("qs"), a.lab("qsd")
    a(f"{top}:\nds_read_b32 v1, v{vZ} offset:{QC}")
    for s in range(4): a(f"ds_read_b128 {R(QF+4*s)}, v{vQR} offset:{QL+64*s}")
    a(f"s_waitcnt lgkmcnt(0)\nv_readfirstlane_b32 s{t0}, v1\ns_cmp_eq_u32 s{t0}, 4\ns_cbranch_scc1 {done}")
    a.budget(top); a(f"{done}:")
    a.stamp(5)
    for s in range(4):
        for z in range(2): a(f"v_mfma_f32_16x16x32_bf16 {R(ACC+4*z)}, {R(KF+16*z+4*s)}, {R(QF+4*s)}, {R(ACC+4*z) if s else 0}")
    for r in range(4): a(f"v_cndmask_b32 v{ACC+r}, v{ACC+r}, v{ACC+4+r}, {S2(sN8)}")
    a(f"""
    v_cvt_pk_bf16_f32 v{u0}, v{ACC}, v{ACC+1}
    v_cvt_pk_bf16_f32 v{u1}, v{ACC+2}, v{ACC+3}
    v_lshlrev_b32 v{ACC}, 16, v{u0}
    v_and_b32 v{ACC+1}, 0xffff0000, v{u0}
    v_lshlrev_b32 v{ACC+2}, 16, v{u1}
    v_and_b32 v{ACC+3}, 0xffff0000, v{u1}
    v_pk_mul_f32 {R(ACC,2)}, {R(ACC,2)}, {S2(sSC)}
    v_pk_mul_f32 {R(ACC+2,2)}, {R(ACC+2,2)}, {S2(sSC)}
    v_cvt_pk_bf16_f32 v{u0}, v{ACC}, v{ACC+1}
    v_cvt_pk_bf16_f32 v{u1}, v{ACC+2}, v{ACC+3}
    ds_write_b64 v{vSW}, {R(u0,2)} offset:{SL}
    """)
    a.sig_add(vZ, SC)
    top, done = a.lab("ss"), a.lab("ssd")
    a(f"{top}:\nds_read_b32 v1, v{vZ} offset:{SC}\nds_read_b128 {R(SR)}, v{vPR} offset:{SL}\nds_read_b128 {R(SR+4)}, v{vPR} offset:{SL+1024}")
    a(f"s_waitcnt lgkmcnt(0)\nv_readfirstlane_b32 s{t0}, v1\ns_cmp_eq_u32 s{t0}, 8\ns_cbranch_scc1 {done}")
    a.budget(top); a(f"{done}:")
    for H in range(4):
        for b in range(2):
            for z in range(2):
                a(f"ds_read_b64_tr_b16 {R(VF+16*b+4*H+2*z,2)}, v{vVA+b} offset:{8192*H+1024*z}")
    a.stamp(6)
    for e in range(8): a(f"v_lshlrev_b32 v{F+2*e}, 16, v{SR+e}\nv_and_b32 v{F+2*e+1}, 0xffff0000, v{SR+e}")
    a(f"""
    v_max3_f32 v{u0}, v{F}, v{F+1}, v{F+2}
    v_max3_f32 v{u1}, v{F+3}, v{F+4}, v{F+5}
    v_max3_f32 v{u2}, v{F+6}, v{F+7}, v{F+8}
    v_max3_f32 v{u3}, v{F+9}, v{F+10}, v{F+11}
    v_max3_f32 v{u0}, v{u0}, v{F+12}, v{F+13}
    v_max3_f32 v{u1}, v{u1}, v{F+14}, v{F+15}
    v_max3_f32 v{u0}, v{u0}, v{u2}, v{u3}
    v_max_f32 v{u0}, v{u0}, v{u1}
    v_max_f32_dpp v{u0}, v{u0}, v{u0} {DPP('row_ror:8')}
    """)
    a.rows_all(u0, u1, "v_max_f32")
    for e in range(8): a(f"v_pk_add_f32 {R(F+2*e,2)}, {R(F+2*e,2)}, {R(u0,2)} op_sel_hi:[1,0] neg_lo:[0,1] neg_hi:[0,1]")
    for e in range(8): a(f"v_pk_mul_f32 {R(F+2*e,2)}, {R(F+2*e,2)}, {S2(sL2E)}")
    for p in range(2):
        for e in range(8): a(f"v_exp_f32 v{F+8*p+e}, v{F+8*p+e}")
        for e in range(4): a(f"v_cvt_pk_bf16_f32 v{SR+4*p+e}, v{F+8*p+2*e}, v{F+8*p+2*e+1}")
        if p == 0: a("s_waitcnt lgkmcnt(0)")
        a(f"v_mfma_f32_16x16x32_bf16 {R(ACC)}, {R(ONES)}, {R(SR+4*p)}, {R(ACC) if p else 0}")
        for b in range(2):
            for hi in range(2):
                dd = D + 8 * b + 4 * hi
                a(f"v_mfma_f32_16x16x32_bf16 {R(dd)}, {R(VF+16*b+4*(2*p+hi))}, {R(SR+4*p)}, {R(dd) if p else 0}")
    a(f"v_add_f32_dpp v{u2}, v{ACC}, v{ACC} {DPP('row_ror:8')}\nv_cndmask_b32 v{u2}, v{u0}, v{u2}, {S2(sB1)}")
    for r in range(4): a(f"v_add_f32_dpp v{F+r}, v{D+4+r}, v{D+r} {DPP('row_ror:8', 0x3)}")
    for r in range(4): a(f"v_add_f32_dpp v{F+r}, v{D+8+r}, v{D+12+r} {DPP('row_ror:8', 0xc)}")
    a.embed(F, u2)
    a(f"ds_write_b128 v{vOW}, {R(F)} offset:{OT}\nds_read_b128 {R(F+4)}, v{vOR} offset:{OT}\ns_waitcnt lgkmcnt(0)")
    a(f"global_store_dwordx4 v{vO2}, {R(F+4)}, {S2(sD)} sc1")
    a.sig_add(vZ, OG)
    a("s_setprio 0")
    a.stamp(7)
    a(f"s_cmp_ge_u32 s{sK}, 2\ns_cbranch_scc1 L_out")
    if P["local"]:
        top, done = a.lab("xt"), a.lab("xtd")
        a(f"""
        s_getreg_b32 s{t0}, hwreg(HW_REG_XCC_ID, 0, 4)
        s_add_u32 s{t0}, s{t0}, s{sT}
        v_mov_b32 v{u1}, s{t0}
        s_lshl_b32 s{t1}, s{sJ}, 7
        s_add_u32 s{t1}, s{t1}, {XT}
        v_and_b32 v{u0}, 31, v{vL}
        v_lshl_add_u32 v{u0}, v{u0}, 2, s{t1}
        {top}:
        global_load_dword v{u2}, v{u0}, s[26:27] sc1
        s_waitcnt vmcnt(0)
        v_sub_u32 v{u3}, v{u2}, v{vT}
        v_cmp_le_u32 vcc, 16, v{u3}
        s_cbranch_vccz {done}
        s_sleep 2
        """)
        a.budget(top)
        a(f"""
        {done}:
        v_cmp_ne_u32 vcc, v{u2}, v{u1}
        s_cmp_eq_u64 vcc, 0
        s_cselect_b32 s{sVERD}, 1, 2
        v_mov_b32 v{u2}, s{sVERD}
        ds_write_b32 v{vZ}, v{u2} offset:{VERD}
        """)
    a.stamp(8)
    guaddr(a, vO2, sA, sE, f"s{sK}" if P["bal"] else 0)
    a(f"s_lshl_b32 s{t0}, s{sK}, 11\ns_add_u32 s{t0}, s{t0}, 1024\nv_add_u32 v{vO2}, s{t0}, v{vO2}\nv_add_u32 v{u0}, s{t0}, v{vPR}")
    a.gate(vZ, CC, 4)
    for w in range(4): a(f"ds_read_b128 {R(KF+4*w)}, v{u0} offset:{PGU+4096*w}")
    a("s_waitcnt lgkmcnt(0)")
    a.sumn(KF, 4)
    a(f"v_perm_b32 v{KF}, v{KF}, v{vT}, s{sTAG}\ns_mov_b64 exec, {S2(sE)}")
    a.lstore(f"global_store_dwordx4 v{vO2}, {R(KF)}, {S2(sA)}")
    a("s_mov_b64 exec, -1")
    a.stamp(9)
    a("s_branch L_out")

def guaddr(a, dst, sbase, sE, flip):
    a(f"""
    s_xor_b32 s{t0}, s{sI}, {flip}
    s_and_b32 s{t0}, s{t0}, 1
    s_lshl_b32 s{t1}, s{t0}, 15
    s_lshr_b32 s{t2}, s{sI}, 1
    s_lshl_b32 s{t2}, s{t2}, 7
    s_add_u32 s{t1}, s{t1}, s{t2}
    s_lshl_b32 s{t2}, s{sJ}, 16
    s_add_u32 s{t1}, s{t1}, s{t2}
    s_add_u32 s{t1}, s{t1}, {GU}
    s_cmp_eq_u32 s{t0}, 0
    s_mov_b32 s{sE}, -1
    s_cselect_b32 s{sE+1}, -1, 0xffff
    """)
    if dst: a(f"v_lshrrev_b32 v1, 3, v{vL}\nv_lshlrev_b32 v{dst}, 12, v1\nv_and_b32 v1, 7, v{vL}\nv_lshl_add_u32 v{dst}, v1, 4, v{dst}")
    a.sadd(sbase, 26, f"s{t1}")

def role_ag(a):
    P = a.P
    WG, WU, ACC, CS, A0, UN, D, E = 16, 80, 144, 152, 160, 168, 172, 188
    vW, vX, vSA, vST, vOA, vV0 = 204, 205, 206, 207, 209, 210
    hv, z, zt, u0, u1, vWU = 212, 213, 214, 215, 216, 217
    sG1, sU1 = sC, sD
    a(f"""
    L_AG:
    v_lshlrev_b32 v1, 1, v{vKB}
    v_xor_b32 v1, v1, v{vN}
    v_lshlrev_b32 v1, 4, v1
    v_lshl_add_u32 v{vV0}, v{vKB}, 8, v1
    v_xor_b32 v{vV0+1}, 0x80, v{vV0}
    s_and_b32 s{sX}, s{sJ}, 1
    s_lshl_b32 s{sX}, s{sX}, 4
    s_add_u32 s{sX}, s{sX}, s{sI}
    s_lshl_b32 s{t0}, s{sG}, 24
    s_lshl_b32 s{t1}, s{sX}, 15
    s_add_u32 s{t0}, s{t0}, s{t1}
    s_lshl_b32 s{t3}, s{sK}, 13
    s_add_u32 s{t0}, s{t0}, s{t3}
    s_add_u32 s{t2}, s{t0}, {KOFF}
    s_add_u32 m0, s{t3}, {VL}
    """)
    a.zero_flags(vW)
    kg = P["kby"] == "g"
    if kg: a(f"""
    v_xor_b32 v1, v{vKB}, v{vN}
    v_lshlrev_b32 v1, 4, v1
    v_lshl_add_u32 v{D}, v{vKB}, 8, v1
    v_xor_b32 v{D+1}, 64, v{D}
    v_xor_b32 v{D+2}, 0x80, v{D}
    v_xor_b32 v{D+3}, 0xc0, v{D}
    s_add_u32 m0, s{t3}, {KL}
    """)
    a(f"s_waitcnt lgkmcnt(0)\ns_load_dword s{sT}, s[26:27], 0\ns_barrier")
    a.sadd(sA, 8, f"s{t2}"); a.sadd(sB, sA, 4096)
    if kg: a.sadd(sC, 6, f"s{t2}"); a.sadd(sD, sC, 4096)
    a("s_barrier")
    if kg:
        for m in range(8):
            if m == 4: a(f"s_add_u32 m0, m0, 4096")
            a(f"global_load_lds_dwordx4 v{D+(m&3)}, {S2(sC if m < 4 else sD)} offset:{1024*(m&3)} nt")
        a(f"s_add_u32 m0, s{t3}, {VL}")
    def vload(m):
        if m == 4: a(f"s_add_u32 m0, s{t3}, {VL+4096}")
        a(f"global_load_lds_dwordx4 v{vV0+((m>>1)&1)}, {S2(sA if m < 4 else sB)} offset:{1024*(m&3)} nt")
    n0 = min(list(P["vwin"]) + list(P["vgate"]) + [8])
    for m in range(n0): vload(m)
    a.consts(); a.masks(True); a.pwaddr(sK, 4096)
    a(f"s_lshr_b32 s{sX}, s{sI}, 1\ns_lshl_b32 s{sX}, s{sX}, 2\ns_add_u32 s{sX}, s{sX}, s{sK}")
    a.idxaddr(vOA)
    a(f"s_lshl_b32 s{t0}, s{sX}, 6\nv_add_u32 v{vOA}, s{t0}, v{vOA}")
    for d in range(4): a(f"v_and_b32 v{UN+d}, 0x3f803f80, v{vM+d}")
    a.epoch()
    a.xt_publish(u0, u1)
    a(f"global_load_ushort v{vX}, v{vOA}, s[4:5]")
    a.stamp(1)
    for m in range(n0, 8):
        if m in P["vgate"]:
            if P["vgate"][m] == "p": a.gate(vZ, PP, 4)
            else: a.gate(vF, PX, P["vgate"][m])
        if m in P["vwin"]: a(f"s_waitcnt vmcnt({P['vwin'][m]})")
        if m == n0: a.stamp(2)
        vload(m)
    if kg: a("s_waitcnt vmcnt(9)"); a.sig_add(vF, PK)
    a.wideaddr(vW, 7168)
    a(f"""
    s_mul_i32 s{t0}, s{sX}, {32*7168}
    s_mul_i32 s{t1}, s{sJ}, 896
    s_add_u32 s{t0}, s{t0}, s{t1}
    s_and_b32 s{t1}, s{sI}, 1
    s_xor_b32 s{t3}, s{t1}, {P["bal"]}
    s_mov_b32 s{sN8}, 0
    s_mul_i32 s{sN8+1}, s{t3}, 0xff00ff00
    v_subrev_u32 v1, 0x80, v{vW}
    v_cndmask_b32 v{vWU}, v{vW}, v1, {S2(sN8)}
    s_mul_i32 s{sN8+1}, s{t1}, 0xff00ff00
    s_lshl_b32 s{t3}, s{t3}, 9
    s_add_u32 s{t3}, s{t3}, s{t0}
    s_lshl_b32 s{t1}, s{t1}, 9
    s_add_u32 s{t0}, s{t0}, s{t1}
    v_cndmask_b32 v{vW}, v{vW}, v1, {S2(sN8)}
    v_lshrrev_b32 v1, 5, v{vL}
    v_lshl_add_u32 v{vST}, v1, 4, v{vF}
    v_and_b32 v1, 1, v{vL}
    v_lshlrev_b32 v{vST+1}, 4, v1
    s_mov_b32 s{sB1}, 0
    s_mov_b32 s{sB1+1}, -1
    s_mov_b32 s{sSC}, 1
    s_mov_b32 s{sSC+1}, 1
    """)
    a.sadd(sA, 16, f"s{t0}"); a.sadd(sB, 18, f"s{t3}"); a.sadd(sG1, sA, 7168); a.sadd(sU1, sB, 7168)
    def vlanded(n):
        a(f"s_waitcnt vmcnt({n})")
        a.sig_add(vZ, SC)
        a.stamp(3)
        a(f"v_lshlrev_b32 v{vX}, 16, v{vX}")
        if P["gq"]: a.gate(vZ, QC, P["gq"])
        a.stamp(4)
    order = []
    for c in range(8): order += [(WG, c, sA), (WU, c, sB), (WG, c + 8, sG1), (WU, c + 8, sU1)]
    done_c = 0
    def csum(n):
        nonlocal done_c
        for x in range(done_c, n):
            w, t, _ = order[x]; cc = CS + (4 if w == WU else 0)
            a(f"v_mfma_f32_16x16x32_bf16 {R(cc)}, {R(UN)}, {R(w+4*t)}, {R(cc) if x > 1 else 0}")
        done_c = max(done_c, n)
    for m, (w, t, sb) in enumerate(order):
        if m == 0 and P["gpre"] is not None: a(f"s_waitcnt vmcnt({P['gpre']})")
        if m == P["gearly"]: vlanded(m)
        if m in P["gwin"]:
            g = P["gwin"][m]
            if g == "o": a.gate(vZ, OG, 4)
            else: a(f"s_waitcnt vmcnt({g})"); csum(m - g)
        a(f"global_load_dwordx4 {R(w+4*t)}, v{vW if w == WG else vWU}, {S2(sb)} nt")
        if m & 3 == 2 and m < 30: a(f"v_add_u32 v{vW}, {4*7168}, v{vW}")
        if m & 3 == 3 and m < 30: a(f"v_add_u32 v{vWU}, {4*7168}, v{vWU}")
    a.stamp(5)
    a(f"s_lshl_b32 s{t1}, s{sX}, 12\ns_add_u32 s{t1}, s{t1}, {HB}")
    a.sadd(sC, 26, f"s{t1}")
    guaddr(a, vSA, sD, sE, 0); guaddr(a, None, sA, sB, P["bal"])
    def first(n=4):
        for x in range(done_c & ~1, 32, 2):
            a(f"s_waitcnt vmcnt({n+30-x})"); csum(x + 2)
        a.stamp(6)
        a(f"ds_write_b128 v{vPW}, {R(CS)} offset:{PGU+1024}\nds_write_b128 v{vPW}, {R(CS+4)} offset:{PGU+3072}")
        a.sig_add(vZ, CC)
    if P["hafter"]: first(0)
    a.poll(a.ldn(D, vPR, sC, 1024), D, 4, first=None if P["hafter"] else first, sleep=P["hsleep"])
    a("s_setprio 3")
    a.stamp(7)
    a.sumn(D, 4)
    for x in a.red32(D, hv, z): a(x)
    a(f"""
    v_cvt_pk_bf16_f32 v{hv}, v{hv}, v{hv}
    v_lshlrev_b32 v{hv}, 16, v{hv}
    v_add_f32 v{hv}, v{hv}, v{vX}
    v_cvt_pk_bf16_f32 v{vH2}, v{hv}, v{hv}
    """)
    fill = [f"v_lshlrev_b32 v{hv}, 16, v{vH2}", f"v_cndmask_b32 v{z}, 1.0, v{hv}, {S2(sB1)}", f"v_mul_f32 v{z}, v{z}, v{hv}"]
    fill += [f"v_add_f32_dpp v{z}, v{z}, v{z} {DPP(c)}" for c in ("quad_perm:[1,0,3,2]", "quad_perm:[2,3,0,1]", "row_ror:4", "row_ror:8")]
    fill += [f"v_mov_b32 v{zt}, v{z}", f"v_permlane16_swap_b32 v{z}, v{zt}", f"v_add_f32 v{z}, v{z}, v{zt}",
             f"s_mov_b64 exec, {S2(sSC)}\nds_write_b32 v{vST}, v{z} offset:{ST}\ns_mov_b64 exec, -1"]
    a.gemv([WG, WU], ACC, A0, [(t, vH2, t) for t in range(16)], fill=fill)
    a.stamp(8)
    skip = a.lab("pub")
    a(f"""
    ds_write_b128 v{vPW}, {R(ACC)} offset:{PGU}
    ds_write_b128 v{vPW}, {R(ACC+4)} offset:{PGU+2048}
    s_mov_b64 exec, 1
    ds_add_rtn_u32 v1, v{vZ}, v{vONE} offset:{CG}
    s_mov_b64 exec, -1
    ds_read_b32 v{u0}, v{vZ} offset:{VERD}
    ds_read_b128 {R(A0)}, v{vST+1} offset:{ST}
    """)
    for m in range(2):
        for w in range(4): a(f"ds_read_b128 {R(D+16*m+4*w)}, v{vPR} offset:{PGU+4096*w+2048*m}")
    a(f"""
    s_waitcnt lgkmcnt({a.lg(10)})
    v_readfirstlane_b32 s{t0}, v1
    s_cmp_eq_u32 s{t0}, 3
    s_cbranch_scc0 {skip}
    s_waitcnt lgkmcnt({a.lg(4)})
    v_readfirstlane_b32 s{sVERD}, v{u0}
    v_pk_add_f32 {R(A0,2)}, {R(A0,2)}, {R(A0+2,2)}
    v_add_f32 v{A0}, v{A0}, v{A0+1}
    """)
    a.sumn(D, 4)
    a.embed(D, A0)
    a(f"s_mov_b64 exec, {S2(sE)}")
    a.lstore(f"global_store_dwordx4 v{vSA}, {R(D)}, {S2(sD)}")
    a(f"s_mov_b64 exec, {S2(sB)}\ns_waitcnt lgkmcnt(0)")
    a.sumn(E, 4)
    a(f"v_perm_b32 v{E}, v{E}, v{vT}, s{sTAG}")
    a.lstore(f"global_store_dwordx4 v{vSA}, {R(E)}, {S2(sA)} offset:2048")
    a(f"s_mov_b64 exec, -1\n{skip}:\ns_waitcnt lgkmcnt(0)\ns_setprio 0")
    a.stamp(9)
    a(f"""
    s_and_b32 s{t0}, s{sX}, 7
    s_cmp_eq_u32 s{t0}, s{sJ}
    s_cbranch_scc0 L_out
    s_bitcmp1_b32 s{sI}, 0
    s_cbranch_scc0 L_out
    s_lshl_b32 s{t1}, s{sX}, 12
    s_add_u32 s{t1}, s{t1}, {F1}
    """)
    a.sadd(sC, 26, f"s{t1}")
    if P["prewarm"]: a(f"global_load_ushort v{u0}, v{vOA}, s[22:23]")
    a.poll(a.ldn(D, vPR, sC, 1024), D, 4, sleep=P["fsleep"])
    a.stamp(10)
    a.sumn(D, 4)
    for x in a.red32(D, z, zt): a(x)
    a(f"""
    v_cvt_pk_bf16_f32 v{z}, v{z}, v{z}
    v_lshlrev_b32 v{z}, 16, v{z}
    v_add_f32 v{z}, v{z}, v{hv}
    v_cvt_pk_bf16_f32 v{z}, v{z}, v{z}
    s_mov_b32 exec_hi, 0
    global_store_short v{vOA}, v{z}, s[22:23]
    s_mov_b64 exec, 1
    s_cmp_eq_u32 s{sX}, 0
    s_cbranch_scc0 L_fin
    global_store_dword v{vZ}, v{vT}, s[26:27] sc1
    L_fin:
    s_mov_b64 exec, -1
    """)
    a.stamp(11)

def gen(**kw):
    P = dict(DEF); P.update(kw)
    a = K(P)
    a.stamp(0)
    a(f"""
    s_cmp_ge_u32 s2, 256
    s_cbranch_scc1 L_end
    s_load_dwordx16 s[4:19], s[0:1], 0
    s_load_dwordx8 s[20:27], s[0:1], 64
    v_lshrrev_b32 v1, 6, v0
    v_and_b32 v0, 63, v0
    v_readfirstlane_b32 s3, v1
    v_and_b32 v{vN}, 15, v0
    v_lshrrev_b32 v{vKB}, 4, v0
    s_and_b32 s{sJ}, s2, 7
    s_bfe_u32 s{sI}, s2, 0x40003
    s_lshr_b32 s{sG}, s{sJ}, 1
    s_mov_b32 s{sBUD}, {P['bud']}
    s_and_b32 s{sK}, s3, 3
    """)
    if P["dev"]:
        for i in range(1, 15): a(f"s_mov_b32 s{STAMP0+2*i}, 0")
    a(f"""
    s_cmp_ge_u32 s2, 128
    s_cbranch_scc1 L_A
    s_cmp_ge_u32 s3, 4
    s_cbranch_scc1 L_BW
    """)
    role_bq(a); a("; @reset"); role_bw(a); a("; @reset")
    a("L_A:\ns_cmp_ge_u32 s3, 4\ns_cbranch_scc1 L_AG")
    role_ax(a); a("; @reset"); role_ag(a)
    a("L_out:")
    if P["dev"]:
        a("s_waitcnt lgkmcnt(0)")
        for i in range(15): a(f"v_writelane_b32 v1, s{STAMP0+2*i}, {i}")
        a(f"""
        v_writelane_b32 v1, s{sBUD}, 15
        s_lshl_b32 s{t0}, s2, 4
        s_add_u32 s{t0}, s{t0}, s3
        s_lshl_b32 s{t0}, s{t0}, 6
        s_add_u32 s{t0}, s{t0}, {128<<20}
        v_lshlrev_b32 v2, 2, v0
        v_add_u32 v2, s{t0}, v2
        s_mov_b64 exec, 0xffff
        global_store_dword v2, v1, s[26:27]
        """)
    a("L_end:\ns_endpgm")
    body = a.finish()
    assert 128 < a.maxv <= 256, a.maxv
    return wrap([(KNAME, body, 256, 512, LDS, a.maxv)]), a

if __name__ == "__main__":
    kw = eval("dict(" + (sys.argv[2] if len(sys.argv) > 2 else "") + ")")
    s, a = gen(**kw)
    open(sys.argv[1], "w").write(s)
    print("vgpr", a.maxv, "sgpr", a.maxs, "lines", s.count("\n"), "nops", s.count("s_nop"))
```
